```python
import torch

def _softmax(x, axis=-1):
    return torch.softmax(x, dim=axis)
def _gelu(x):
    return torch.nn.functional.gelu(x, approximate="tanh")
def _silu(x):
    return torch.nn.functional.silu(x)
def _sigmoid(x):
    return torch.sigmoid(x)
def _layernorm(x, axis=-1, eps=1e-5):
    m = x.mean(dim=axis, keepdim=True)
    v = x.var(dim=axis, keepdim=True, unbiased=False)
    return (x - m) / torch.sqrt(v + eps)
def _scatter_add(tgt, idx, src, axis=0):
    return tgt.clone().index_add_(axis, idx, src)
def _segment_sum(src, seg, n):
    out = torch.zeros((n,) + src.shape[1:], dtype=src.dtype)
    return out.index_add_(0, seg, src)
def _pad(x, pw):
    flat = tuple(v for pair in reversed(pw) for v in pair)
    return torch.nn.functional.pad(x, flat)

kernel_name = 'standalone__mha_block_cached__near_ridge'

def setup_inputs():

    _w = (lambda a: (lambda t: t.to(torch.bfloat16) if t.is_floating_point() else t)(torch.as_tensor(a)))
    B, Sq, D = 8, 240, 640
    H, Sk, Dh = 32, 2048, 128
    return {
        "x": _w((lambda *s: torch.randn(*s, dtype=torch.bfloat16) * 0.8)(B, Sq, D)),
        "k_cache": _w((lambda *s: torch.randn(*s, dtype=torch.bfloat16) * 0.8)(B, H, Sk, Dh)),
        "v_cache": _w((lambda *s: torch.randn(*s, dtype=torch.bfloat16) * 0.05)(B, H, Sk, Dh)),
        "wq": _w((lambda *s: torch.randn(*s, dtype=torch.bfloat16) * 0.8)(D, H * Dh) * (D ** -0.5)),
        "wo": _w((lambda *s: torch.randn(*s, dtype=torch.bfloat16) * 0.05)(H * Dh, D) * ((H * Dh) ** -0.5)),
    }

def reference(x, k_cache, v_cache, wq, wo):
    B, Sq, D = x.shape
    H, Dh = 32, 128
    q = (lambda x, *d: x.permute(*d))((x @ wq).reshape(B, Sq, H, Dh), 0, 2, 1, 3)
    scores = torch.einsum("bhqd,bhkd->bhqk", q, k_cache) * (Dh ** -0.5)
    p = _softmax(scores, axis=-1)
    o = torch.einsum("bhqk,bhkd->bhqd", p, v_cache)
    return (lambda x, *d: x.permute(*d))(o, 0, 2, 1, 3).reshape(B, Sq, H * Dh) @ wo
```

```python
import re


def v(i, n=1):
    return f"v{i}" if n == 1 else f"v[{i}:{i + n - 1}]"


def a(i, n=1):
    return f"a{i}" if n == 1 else f"a[{i}:{i + n - 1}]"


def s(i, n=1):
    return f"s{i}" if n == 1 else f"s[{i}:{i + n - 1}]"


_REG = re.compile(r"^(-|abs\()?([vas])(?:(\d+)|\[(\d+):(\d+)\])\)?$")
TRANS = ("v_exp_f32", "v_log_f32", "v_rcp_f32", "v_rsq_f32", "v_sqrt_f32")


def regs_of(op):
    op = op.strip()
    if op in ("vcc", "exec", "m0", "scc"):
        return {op}
    if op in ("vcc_lo", "vcc_hi"):
        return {"vcc"}
    m = _REG.match(op)
    if not m:
        return set()
    k = m.group(2)
    if m.group(3) is not None:
        return {f"{k}{m.group(3)}"}
    return {f"{k}{i}" for i in range(int(m.group(4)), int(m.group(5)) + 1)}


class Ins:
    __slots__ = ("text", "mn", "kind", "rd", "wr", "srcc", "passes", "states", "ab")

    def __init__(self, text):
        self.text = text
        t = text.split(";")[0].strip()
        parts = t.split(None, 1)
        self.mn = mn = parts[0]
        rest = parts[1] if len(parts) > 1 else ""
        ops = [o.strip() for o in rest.split(",")] if rest else []
        if ops:
            toks = ops[-1].split()
            mods = toks[1:]
            ops[-1] = toks[0] if toks else ""
        else:
            mods = []
        self.rd, self.wr, self.srcc, self.ab = set(), set(), set(), set()
        self.passes = 0
        self.states = 1
        R = [regs_of(o) for o in ops]
        if mn.startswith("v_mfma"):
            self.kind = "mfma"
            self.passes = 8 if "32x32x16" in mn else (4 if "16x16x32" in mn else 2)
            self.wr = R[0]
            self.ab = R[1] | R[2]
            self.srcc = R[3]
            self.rd = self.ab | self.srcc
        elif mn.startswith("ds_read"):
            self.kind = "ds"
            self.wr = R[0]
            self.rd = R[1]
        elif mn.startswith("ds_write"):
            self.kind = "ds"
            self.rd = set().union(*R)
        elif mn.startswith("buffer_load") or mn.startswith("global_load"):
            self.kind = "vmem"
            if "lds" in mods:
                self.rd = set().union(*R) | {"m0"}
                self.kind = "dma"
            else:
                self.wr = R[0]
                self.rd = set().union(*R[1:])
        elif mn.startswith("buffer_store") or mn.startswith("global_store"):
            self.kind = "store"
            self.rd = set().union(*R)
            self.ab = R[0] if mn.startswith("buffer") else R[1]
        elif mn.startswith("buffer_atomic") or mn.startswith("global_atomic"):
            self.kind = "vmem"
            self.rd = set().union(*R)
            if "sc0" in mods:
                self.wr = R[0]
        elif mn in ("buffer_wbl2", "buffer_inv"):
            self.kind = "vmem"
        elif mn.startswith("v_cmp"):
            self.kind = "valu"
            self.wr = R[0]
            self.rd = set().union(*R[1:])
        elif mn.startswith("v_permlane"):
            self.kind = "valu"
            self.wr = R[0] | R[1]
            self.rd = R[0] | R[1]
        elif mn.startswith("v_"):
            self.kind = "trans" if mn.replace("_e32", "").replace("_e64", "") in TRANS else "valu"
            self.wr = R[0]
            self.rd = set().union(*R[1:]) if len(R) > 1 else set()
            if mn.startswith("v_fmac") or mn.startswith("v_dot2c"):
                self.rd |= R[0]
            if mn.startswith("v_add_co") or mn.startswith("v_addc_co"):
                self.wr |= R[1]
                self.rd = set().union(*R[2:])
        elif mn == "s_nop":
            self.kind = "nop"
            self.states = int(ops[0], 0) + 1
        elif mn == "s_waitcnt":
            self.kind = "wait"
        elif mn.startswith("s_load") or mn in ("s_memtime", "s_memrealtime"):
            self.kind = "smem"
            self.wr = R[0]
            self.rd = set().union(*R[1:]) if len(R) > 1 else set()
        elif mn.startswith("s_cmp") or mn.startswith("s_cbranch") or mn in (
                "s_branch", "s_barrier", "s_endpgm", "s_setprio", "s_sleep", "s_bitcmp1_b32", "s_bitcmp0_b32"):
            self.kind = "salu"
            self.rd = set().union(*R) if R else set()
            if mn.startswith("s_cbranch_vcc"):
                self.rd |= {"vcc"}
        elif mn.startswith("s_"):
            self.kind = "salu"
            self.wr = R[0]
            self.rd = set().union(*R[1:]) if len(R) > 1 else set()
            if "saveexec" in mn:
                self.wr |= {"exec"}
        else:
            raise ValueError("unknown instruction: " + text)


class Block:
    def __init__(self):
        self.lines = []

    def __call__(self, text):
        for ln in text.strip("\n").split("\n"):
            ln = ln.strip()
            if ln:
                self.lines.append(ln)
        return self

    def extend(self, other):
        self.lines.extend(other.lines if isinstance(other, Block) else other)
        return self

    def text(self):
        out = []
        for ln in self.lines:
            if ln.endswith(":") or ln.startswith(";") or ln.startswith("."):
                out.append(ln)
            else:
                out.append("    " + ln)
        return "\n".join(out) + "\n"

    def instrs(self):
        return [ln for ln in self.lines if not (ln.endswith(":") or ln.startswith(";") or ln.startswith("."))]


_MF_VALU = {2: 5, 4: 8, 8: 12}
_MF_COVL = {2: 4, 4: 6, 8: 10}
_MF_WAR = {2: 1, 4: 3, 8: 7}


def check_trace(lines, name="trace", verbose=True):
    ins = [Ins(t) for t in lines]
    probs = []
    lg = []
    vm = []
    smem_out = False
    for i, c in enumerate(ins):
        if c.kind == "wait":
            m = re.search(r"lgkmcnt\((\d+)\)", c.text)
            if m:
                n = int(m.group(1))
                if smem_out and n != 0:
                    probs.append((i, c.text, "counted lgkmcnt with SMEM outstanding"))
                while len(lg) > n:
                    lg.pop(0)
                if n == 0:
                    smem_out = False
            m = re.search(r"vmcnt\((\d+)\)", c.text)
            if m:
                n = int(m.group(1))
                while len(vm) > n:
                    vm.pop(0)
        touched = c.rd | c.wr
        for q, nm in ((lg, "lgkm"), (vm, "vm")):
            for regs, j in q:
                hit = regs & touched
                if hit:
                    probs.append((i, c.text, f"touches {sorted(hit)[:4]} still being loaded by [{j}] {ins[j].text} ({nm})"))
        if c.kind in ("ds", "smem"):
            lg.append((set(c.wr), i))
            if c.kind == "smem":
                smem_out = True
        if c.kind in ("vmem", "dma", "store"):
            vm.append((set(c.wr), i))
            if len(vm) > 63:
                probs.append((i, c.text, "note: more than 63 vmem ops outstanding in model"))
                vm.pop(0)
        dist = 0
        for j in range(i - 1, max(-1, i - 24), -1):
            p = ins[j]
            need = 0
            why = ""
            isvalu = c.kind in ("valu", "trans")
            pvalu = p.kind in ("valu", "trans")
            if p.kind == "mfma":
                if c.kind == "mfma":
                    if p.wr & c.ab:
                        need, why = _MF_VALU[p.passes], "mfma D -> mfma A/B"
                    elif p.wr & c.srcc:
                        if p.wr == c.srcc and p.passes == c.passes:
                            need, why = (2 if p.passes == 2 else 0), "mfma chain"
                        else:
                            need, why = _MF_COVL[p.passes], "mfma D -> overlapping C"
                    elif p.wr & c.wr:
                        need, why = _MF_COVL[p.passes], "mfma D -> mfma D (WAW)"
                elif c.kind in ("valu", "trans", "ds", "vmem", "dma", "store"):
                    if p.wr & (c.rd | c.wr):
                        need, why = _MF_VALU[p.passes], "mfma D -> valu/mem"
                    elif (p.srcc & c.wr):
                        need, why = _MF_WAR[p.passes], "mfma C read -> write (WAR)"
            if pvalu:
                vw = {r for r in p.wr if r[0] in "va" and r != "vcc"}
                sw = {r for r in p.wr if r[0] == "s" or r == "vcc"}
                if c.kind == "mfma" and vw & c.rd:
                    need, why = max(need, 2), "valu -> mfma"
                if c.mn.startswith("v_permlane") and vw & c.rd:
                    need, why = max(need, 2), "valu -> permlane"
                if c.mn.startswith(("v_readfirstlane", "v_readlane")) and vw & c.rd:
                    need, why = max(need, 1), "valu -> readlane"
                if p.kind == "trans" and c.kind == "valu" and vw & c.rd:
                    need, why = max(need, 1), "trans -> valu"
                if p.kind == "trans" and c.kind in ("ds", "store", "vmem") and vw & c.rd:
                    need, why = max(need, 1), "trans -> mem"
                if sw & c.rd:
                    if c.kind in ("vmem", "dma", "store"):
                        need, why = max(need, 5), "valu sgpr -> vmem"
                    elif isvalu:
                        need, why = max(need, 2), "valu sgpr -> valu"
                    elif c.kind == "salu":
                        need, why = max(need, 1), "valu sgpr -> salu (pad)"
                if "exec" in p.wr and c.kind == "mfma":
                    need, why = max(need, 4), "exec -> mfma"
                if "dpp" in c.text and vw & c.rd:
                    need, why = max(need, 2), "valu -> dpp"
            if p.kind == "salu" and "m0" in p.wr and c.kind == "dma":
                need, why = max(need, 1), "m0 -> dma"
            if p.kind == "store" and ("x4" in p.mn or "x3" in p.mn) and p.ab & c.wr:
                need, why = max(need, 2), "store data WAR"
            if p.kind == "ds" and p.mn.startswith("ds_write") and False:
                pass
            if need > dist:
                probs.append((i, c.text, f"{why}: need {need} states after [{j}] {p.text}, have {dist}"))
            dist += p.states
    if verbose:
        for i, t, w in probs[:8]:
            print(f"[{name}] #{i} {t}\n      -> {w}")
        print(f"[{name}] {len(lines)} instrs checked, {len(probs)} problems")
    return probs


def interleave(mfmas, gaps):
    out = []
    for m, g in zip(mfmas, gaps):
        out.append(m)
        out.extend(g)
    return out
```

```python
import math
import struct
import sys
from asmlib import *

OPT = dict(stamp=0, nt=0, nocompute=0)
for arg in sys.argv[2:]:
    k, val = arg.split("=")
    OPT[k] = int(val)


def f32(x):
    return "0x%08x" % struct.unpack("<I", struct.pack("<f", x))[0]


SCALE = math.log2(math.e) / math.sqrt(128.0)
MF32 = "v_mfma_f32_32x32x16_bf16"
MF16 = "v_mfma_f32_16x16x32_bf16"
KVPOL = " nt" if OPT["nt"] else ""

S_WAVE = 3
SRD_X, SRD_WQ, SRD_K, SRD_V, SRD_O, SRD_J = 8, 12, 16, 20, 24, 28
S_B, S_H = 6, 7
S_JM0 = 32
S_J0, S_J1, S_JINC = 46, 47, 48
S_W4096 = 49
S_KV = 50
S_CNT = 51
S_T0, S_T1, S_T2 = 52, 53, 54
S_SCALE = 56
S_STAMP = 60

V_KA = 16
V_VA = 24
V_KD = 28
V_VD = 32
V_L0, V_L1 = 33, 34
V_JD = 36
V_WA = 40
V_XA = 44
V_OD = 46
V_Q = 48
V_S = 112
V_P = 144
V_NM = 160
V_QACC = 112
V_M0, V_M1 = 192, 193
V_T = 196

A_O = 0
A_K = 128
A_V = 192
A_QF = 128

XBUF = [0, 32768, 16384, 49152]
LDS_X0 = 32768
LDS_WQ = 131072
LDS_V = 65536


def kslot(T):
    return (T % 4) * 16384


def vslot(T):
    return ((T + 2) % 4) * 16384


nstamp = [0]


def stamp(b):
    if not OPT["stamp"]:
        return
    i = nstamp[0]
    nstamp[0] += 1
    b(f"s_memrealtime {s(S_STAMP + 2 * i, 2)}")
    b("s_waitcnt lgkmcnt(0)")


def k_dma(T, n, soff):
    return f"buffer_load_dwordx4 {v(V_KD + n)}, {s(SRD_K, 4)}, {soff} offen offset:{1024 * n}{KVPOL} lds"


def v_dma(T, n, soff):
    return f"buffer_load_dwordx4 {v(V_VD)}, {s(SRD_V, 4)}, {soff} offen offset:{1024 * n}{KVPOL} lds"


def k_read(t, sidx, T, u):
    return f"ds_read_b128 {a(A_K + 32 * (t % 2) + 4 * sidx, 4)}, {v(V_KA + sidx)} offset:{kslot(T) + 8192 * u}"


def v_read(t, ks, dt, j, T, u):
    return (f"ds_read_b64_tr_b16 {a(A_V + 32 * (t % 2) + 16 * ks + 4 * dt + 2 * j, 2)}, {v(V_VA + dt)} "
            f"offset:{vslot(T) + 8192 * u + (16 * ks + 8 * j) * 256}")


def qk(qt, t, sidx, c0):
    d = v(V_S + 16 * qt, 16)
    c = c0 if sidx == 0 else d
    return f"{MF32} {d}, {a(A_K + 32 * (t % 2) + 4 * sidx, 4)}, {v(V_Q + 32 * qt + 4 * sidx, 4)}, {c}"


def pv(qt, t, ks, dt):
    d = a(A_O + 64 * qt + 16 * dt, 16)
    return f"{MF32} {d}, {a(A_V + 32 * (t % 2) + 16 * ks + 4 * dt, 4)}, {v(V_P + 8 * qt + 4 * ks, 4)}, {d}"


def sm_exp(qt, e):
    r = v(V_S + 16 * qt + e)
    return f"v_exp_f32 {r}, {r}"


def sm_add(qt, e):
    l = v(V_L0 + qt)
    return f"v_add_f32 {l}, {l}, {v(V_S + 16 * qt + e)}"


def sm_cvt(qt, e):
    return f"v_cvt_pk_bf16_f32 {v(V_P + 8 * qt + e // 2)}, {v(V_S + 16 * qt + e - 1)}, {v(V_S + 16 * qt + e)}"


SM0_START = 11
SM1_START = 27


def sm_fill(gaps, qt, start, lo, hi):
    for e in range(16):
        g = start + e + 1
        if e % 2 == 1 and lo <= g < hi:
            gaps[g - lo].append(sm_cvt(qt, e))
    for e in range(16):
        g = start + e
        if lo <= g < hi:
            gaps[g - lo].append(sm_exp(qt, e))
    for e in range(16):
        g = start + e + 1
        if lo <= g < hi:
            gaps[g - lo].append(sm_add(qt, e))


def subtile(t):
    T, u = t // 2, t % 2
    mf = [qk(0, t, i, v(V_NM, 16)) for i in range(8)]
    mf += [pv(1, t - 1, ks, dt) for ks in range(2) for dt in range(4)]
    mf += [qk(1, t, i, v(V_NM + 16, 16)) for i in range(8)]
    mf += [pv(0, t, ks, dt) for ks in range(2) for dt in range(4)]
    gaps = [[] for _ in range(32)]
    sm_fill(gaps, 1, SM1_START, 32, 64)
    sm_fill(gaps, 0, SM0_START, 0, 32)
    sm_fill(gaps, 1, SM1_START, 0, 32)
    vr = [v_read(t, ks, dt, j, T, u) for ks in range(2) for dt in range(4) for j in range(2)]
    vg = [0, 0, 1, 2, 2, 3, 4, 4, 5, 6, 6, 7, 8, 8, 9, 10]
    for r, g in zip(vr, vg):
        gaps[g].append(r)
    if u == 1:
        gaps[15].append("s_waitcnt vmcnt(16) lgkmcnt(0)")
        gaps[15].append("s_barrier")
    else:
        gaps[15].append("s_waitcnt lgkmcnt(0)")
    Tn, un = (t + 1) // 2, (t + 1) % 2
    for i in range(8):
        gaps[16 + i].append(k_read(t + 1, i, Tn, un))
    if u == 1:
        Td = (t + 1) // 2 + 3
        gaps[23].append(f"s_add_u32 m0, {s(S_W4096)}, {kslot(Td)}")
        for n in range(4):
            gaps[24 + 2 * n].append(k_dma(Td, n, s(S_KV)))
    else:
        Td = T + 3
        gaps[23].append(f"s_add_u32 m0, {s(S_W4096)}, {LDS_V + vslot(Td)}")
        for n in range(4):
            gaps[24 + 2 * n].append(v_dma(Td, n, s(S_KV)))
        gaps[31].append(f"s_add_u32 {s(S_KV)}, {s(S_KV)}, 16384")
    gaps[31].append("s_waitcnt lgkmcnt(0)")
    if OPT["nocompute"]:
        out = []
        for g in gaps:
            out += [x for x in g if x.startswith(("s_", "buffer"))]
        return out
    return interleave(mf, gaps)


def qproj_phase(role3):
    b = Block()
    issued = []

    def job_dma(stage):
        out = []
        buf = stage % 4
        for g in range(2):
            if g == 0:
                out.append(f"s_mov_b32 m0, {s(S_JM0 + buf)}")
            else:
                out.append(f"s_add_u32 m0, {s(S_JM0 + buf)}, 4096")
            for j in range(4):
                ins = f"buffer_load_dwordx4 {v(V_JD + j)}, {s(SRD_J, 4)}, {s(S_J0 + g)} offen offset:{1024 * j} lds"
                if j == 0:
                    out.append("s_nop 0")
                out.append(ins)
                issued.append(("st", stage))
            out.append(f"s_add_u32 {s(S_J0 + g)}, {s(S_J0 + g)}, {s(S_JINC)}")
        return out

    def kv_quarter(T, isv, q):
        out = [f"s_mov_b32 m0, {(LDS_V + vslot(T) if isv else kslot(T)) + 4096 * q}",
               f"s_mov_b32 {s(S_T0)}, {T * 16384 + 4096 * q}"]
        if len(issued) > 58:
            out.append("s_waitcnt vmcnt(58)")
        for n in range(4):
            out.append((v_dma if isv else k_dma)(T, n, s(S_T0)))
            issued.append(("kv", T))
        return out

    def own_quarter(T, isv):
        out = [f"s_add_u32 m0, {s(S_W4096)}, {LDS_V + vslot(T) if isv else kslot(T)}",
               f"s_add_u32 {s(S_T0)}, {s(S_W4096)}, {T * 16384}"]
        if role3:
            out.append("s_waitcnt vmcnt(54)")
        for n in range(4):
            out.append((v_dma if isv else k_dma)(T, n, s(S_T0)))
            issued.append(("kv", T))
        return out

    def wait_for(tag):
        last = max(i for i, x in enumerate(issued) if x == tag)
        return len(issued) - 1 - last

    late = []
    if role3:
        quarters = [(0, 0, q) for q in range(4)] + [(0, 1, q) for q in range(4)] + \
                   [(1, 0, q) for q in range(4)] + [(1, 1, q) for q in range(4)]
        for T, isv, q in quarters[:14]:
            b.extend(kv_quarter(T, isv, q))
        late = quarters[14:]
    else:
        for st in range(3):
            b.extend(job_dma(st))
    for i in range(128):
        b(f"v_accvgpr_write_b32 {a(A_O + i)}, 0")
    for i in range(32):
        b(f"v_accvgpr_write_b32 {a(A_V + 32 + i)}, 0")

    def reads(st):
        f, buf = st % 2, st % 4
        base = A_QF + 48 * f
        out = []
        for ks in range(2):
            for qt in range(2):
                out.append(f"ds_read_b128 {a(base + 32 + 8 * ks + 4 * qt, 4)}, {v(V_XA + ks)} offset:{XBUF[buf] + 2048 * qt}")
            for dt in range(4):
                for j in range(2):
                    out.append(f"ds_read_b64_tr_b16 {a(base + 16 * ks + 4 * dt + 2 * j, 2)}, {v(V_WA + dt)} "
                               f"offset:{buf * 8192 + (16 * ks + 4 * j) * 256}")
        return out

    def mfmas(st):
        base = A_QF + 48 * (st % 2)
        out = []
        for ks in range(2):
            for qt in range(2):
                for dt in range(4):
                    d = v(V_QACC + 16 * (4 * qt + dt), 16)
                    c = "0" if (st == 0 and ks == 0) else d
                    out.append(f"{MF32} {d}, {a(base + 16 * ks + 4 * dt, 4)}, {a(base + 32 + 8 * ks + 4 * qt, 4)}, {c}")
        return out

    for st in range(21):
        fill = []
        if st < 20:
            if not role3:
                b(f"s_waitcnt vmcnt({wait_for(('st', st))})")
            b("s_barrier")
            if st == 1:
                stamp(b)
            rd = reads(st)
            dm = []
            if role3:
                if st in (6, 8) and late:
                    dm = kv_quarter(*late.pop(0))
            elif st + 3 < 20:
                dm = job_dma(st + 3)
            if st == 17:
                dm += own_quarter(2, 0)
            if st == 18:
                dm += own_quarter(2, 1)
            if st == 19:
                dm += own_quarter(3, 0)
            gaps = [[] for _ in range(16)]
            for i, r in enumerate(rd):
                gaps[i // 2].append(r)
            gi = 4
            for d in dm:
                gaps[min(gi, 15)].append(d)
                if d.startswith("buffer"):
                    gi += 1
            fill = gaps
        if st == 0:
            for g in fill:
                b.extend(g)
        elif st < 20:
            b.extend(interleave(mfmas(st - 1), fill))
        else:
            b.extend(mfmas(19))
        if st < 20:
            b("s_waitcnt lgkmcnt(0)")
    if role3:
        b(f"s_waitcnt vmcnt({wait_for(('kv', 0))})")
    return b


def kernel1():
    b = Block()
    b("attn_kernel:")
    b(f"""
    s_cmp_ge_u32 s2, 256
    s_cbranch_scc1 L1_end
    s_load_dwordx4 s[36:39], s[0:1], 0
    s_load_dwordx4 s[40:43], s[0:1], 16
    s_load_dwordx2 s[44:45], s[0:1], 56
    v_lshrrev_b32 v1, 6, v0
    v_and_b32 v0, 63, v0
    v_readfirstlane_b32 {s(S_WAVE)}, v1
    s_and_b32 s4, s2, 7
    s_lshr_b32 s5, s2, 3
    s_and_b32 {s(S_B)}, s4, 1
    s_lshl_b32 {s(S_B)}, {s(S_B)}, 2
    s_and_b32 {s(S_H)}, s5, 3
    s_add_u32 {s(S_B)}, {s(S_B)}, {s(S_H)}
    s_lshr_b32 {s(S_H)}, s4, 1
    s_lshl_b32 {s(S_H)}, {s(S_H)}, 3
    s_lshr_b32 s5, s5, 2
    s_add_u32 {s(S_H)}, {s(S_H)}, s5
    s_lshl_b32 {s(S_W4096)}, {s(S_WAVE)}, 12
    """)
    b("""
    v_lshrrev_b32 v1, 4, v0
    v_and_b32 v2, 15, v0
    v_lshrrev_b32 v3, 2, v0
    v_and_b32 v4, 3, v0
    v_and_b32 v5, 31, v0
    v_lshrrev_b32 v6, 5, v0
    v_and_b32 v7, 3, v3
    """)
    b(f"""
    v_xor_b32 v8, v2, v1
    v_lshlrev_b32 v8, 4, v8
    v_lshl_add_u32 {v(V_KD)}, v1, 8, v8
    v_xor_b32 {v(V_KD + 1)}, 64, {v(V_KD)}
    v_xor_b32 {v(V_KD + 2)}, 0x80, {v(V_KD)}
    v_xor_b32 {v(V_KD + 3)}, 0xc0, {v(V_KD)}
    v_lshlrev_b32 v9, 2, v1
    v_xor_b32 v9, v2, v9
    v_lshlrev_b32 v9, 4, v9
    v_lshl_add_u32 {v(V_VD)}, v1, 8, v9
    """)
    b(f"""
    v_lshl_add_u32 v10, v1, 13, v9
    v_mul_u32_u24 v11, 1280, v3
    v_xor_b32 v12, v4, v1
    v_lshl_add_u32 v11, v12, 4, v11
    s_mov_b32 {s(S_T0)}, {16 * 1280 - 1024}
    s_cmp_eq_u32 {s(S_WAVE)}, 0
    s_cselect_b64 vcc, -1, 0
    s_cselect_b32 {s(S_T0)}, {4 * 8192 - 1024}, {s(S_T0)}
    s_cselect_b32 {s(S_JINC)}, {32 * 8192}, 64
    v_cndmask_b32 {v(V_JD)}, v11, v10, vcc
    v_add_u32 {v(V_JD + 1)}, {s(S_T0)}, {v(V_JD)}
    v_add_u32 {v(V_JD + 2)}, {s(S_T0)}, {v(V_JD + 1)}
    v_add_u32 {v(V_JD + 3)}, {s(S_T0)}, {v(V_JD + 2)}
    """)
    b(f"""
    s_sub_u32 {s(S_T1)}, {s(S_WAVE)}, 1
    s_mul_i32 {s(S_T2)}, {s(S_T1)}, {2 * 81920}
    s_lshl_b32 {s(S_T1)}, {s(S_T1)}, 13
    s_add_u32 {s(S_T1)}, {s(S_T1)}, {LDS_X0}
    s_cmp_eq_u32 {s(S_WAVE)}, 0
    s_cselect_b32 {s(S_J0)}, 0, {s(S_T2)}
    s_mov_b32 {s(S_T2)}, 81920
    s_cselect_b32 {s(S_T2)}, 131072, {s(S_T2)}
    s_add_u32 {s(S_J1)}, {s(S_J0)}, {s(S_T2)}
    """)
    for buf in range(4):
        b(f"""
        s_add_u32 {s(S_T2)}, {s(S_T1)}, {XBUF[buf]}
        s_cmp_eq_u32 {s(S_WAVE)}, 0
        s_cselect_b32 {s(S_JM0 + buf)}, {LDS_WQ + 8192 * buf}, {s(S_T2)}
        """)
    b(f"""
    s_waitcnt lgkmcnt(0)
    s_mul_i32 {s(S_T0)}, {s(S_B)}, 307200
    s_add_u32 {s(SRD_X)}, s36, {s(S_T0)}
    s_addc_u32 {s(SRD_X + 1)}, s37, 0
    s_mov_b32 {s(SRD_X + 2)}, 307200
    s_mov_b32 {s(SRD_X + 3)}, 0x20000
    s_lshl_b32 {s(S_T0)}, {s(S_H)}, 8
    s_add_u32 {s(SRD_WQ)}, s42, {s(S_T0)}
    s_addc_u32 {s(SRD_WQ + 1)}, s43, 0
    s_sub_u32 {s(SRD_WQ + 2)}, {640 * 8192}, {s(S_T0)}
    s_mov_b32 {s(SRD_WQ + 3)}, 0x20000
    s_lshl_b32 {s(S_T0)}, {s(S_B)}, 5
    s_add_u32 {s(S_T0)}, {s(S_T0)}, {s(S_H)}
    s_lshl_b32 {s(S_T0)}, {s(S_T0)}, 19
    s_add_u32 {s(SRD_K)}, s38, {s(S_T0)}
    s_addc_u32 {s(SRD_K + 1)}, s39, 0
    s_mov_b32 {s(SRD_K + 2)}, 524288
    s_mov_b32 {s(SRD_K + 3)}, 0x20000
    s_add_u32 {s(SRD_V)}, s40, {s(S_T0)}
    s_addc_u32 {s(SRD_V + 1)}, s41, 0
    s_mov_b32 {s(SRD_V + 2)}, 524288
    s_mov_b32 {s(SRD_V + 3)}, 0x20000
    s_cmp_eq_u32 {s(S_WAVE)}, 0
    s_cselect_b32 {s(SRD_J)}, {s(SRD_WQ)}, {s(SRD_X)}
    s_cselect_b32 {s(SRD_J + 1)}, {s(SRD_WQ + 1)}, {s(SRD_X + 1)}
    s_cselect_b32 {s(SRD_J + 2)}, {s(SRD_WQ + 2)}, {s(SRD_X + 2)}
    s_mov_b32 {s(SRD_J + 3)}, 0x20000
    s_mul_i32 {s(S_T0)}, {s(S_B)}, {15 * 131072}
    s_add_u32 {s(SRD_O)}, s44, {s(S_T0)}
    s_addc_u32 {s(SRD_O + 1)}, s45, 0
    s_mov_b32 {s(SRD_O + 2)}, {15 * 131072}
    s_mov_b32 {s(SRD_O + 3)}, 0x20000
    """)
    stamp(b)
    b(f"""
    ; K read: (l%32)*256 + ((h ^ (l%16))*16) ^ (s*32)
    v_xor_b32 v8, v6, v2
    v_lshlrev_b32 v8, 4, v8
    v_lshl_add_u32 {v(V_KA)}, v5, 8, v8
    """)
    for i in range(1, 8):
        b(f"v_xor_b32 {v(V_KA + i)}, {32 * i}, {v(V_KA)}")
    b(f"""
    ; in-block byte: 32*(G%2) + 16*(c%2) + 8*(c/2)   (c = l%4)
    v_and_b32 v8, 1, v1
    v_lshlrev_b32 v8, 5, v8
    v_and_b32 v9, 1, v4
    v_lshl_add_u32 v8, v9, 4, v8
    v_lshrrev_b32 v9, 1, v4
    v_lshl_add_u32 v8, v9, 3, v8
    ; + r*64 (dt=0) + r*256
    v_lshl_add_u32 v8, v7, 6, v8
    v_lshl_add_u32 v8, v7, 8, v8
    v_lshl_add_u32 v9, v6, 10, v8
    v_add_u32 {v(V_VA)}, {LDS_V}, v9
    v_lshl_add_u32 v9, v6, 11, v8
    v_add_u32 {v(V_WA)}, {LDS_WQ}, v9
    """)
    for dt in range(1, 4):
        b(f"v_xor_b32 {v(V_VA + dt)}, {64 * dt}, {v(V_VA)}")
        b(f"v_xor_b32 {v(V_WA + dt)}, {64 * dt}, {v(V_WA)}")
    b(f"""
    ; x read: LDS_X0 + (64w + l%32)*64 + ((h ^ r)*16) ^ (ks*32)
    v_xor_b32 v8, v6, v7
    v_lshlrev_b32 v8, 4, v8
    v_lshl_add_u32 v8, v5, 6, v8
    v_add_u32 v8, {s(S_W4096)}, v8
    v_add_u32 {v(V_XA)}, {LDS_X0}, v8
    v_xor_b32 {v(V_XA + 1)}, 32, {v(V_XA)}
    ; O store voffset: ((l%32)/16)*131072 + (l%16)*16 + h*256
    v_and_b32 v8, 1, v1
    v_lshlrev_b32 v8, 17, v8
    v_lshl_add_u32 v8, v2, 4, v8
    v_lshl_add_u32 {v(V_OD)}, v6, 8, v8
    s_mov_b32 {s(S_SCALE)}, {f32(SCALE)}
    s_mov_b32 {s(S_SCALE + 1)}, {f32(SCALE)}
    s_add_u32 {s(S_KV)}, {s(S_W4096)}, {3 * 16384}
    s_cmp_eq_u32 {s(S_WAVE)}, 3
    s_cbranch_scc1 L1_q3
    """)
    pre = b
    ns = nstamp[0]
    qa = qproj_phase(False)
    nstamp[0] = ns
    qb = qproj_phase(True)

    mid = Block()
    mid("s_barrier")
    stamp(mid)
    mid("s_nop 7")
    for i in range(8):
        mid(k_read(0, i, 0, 0))
    mid("s_nop 3")
    for qt in range(2):
        for dt in range(4):
            acc = V_QACC + 16 * (4 * qt + dt)
            for i in range(8):
                mid(f"v_pk_mul_f32 {v(acc + 2 * i, 2)}, {v(acc + 2 * i, 2)}, {s(S_SCALE, 2)}")
            for i in range(8):
                mid(f"v_cvt_pk_bf16_f32 {v(V_Q + 32 * qt + 8 * dt + i)}, {v(acc + 2 * i)}, {v(acc + 2 * i + 1)}")
    mid("s_waitcnt lgkmcnt(0)")
    mid("s_nop 1")
    for qt in range(2):
        for i in range(8):
            mid(qk(qt, 0, i, "0"))
    mid("s_nop 11")
    for qt in range(2):
        S = V_S + 16 * qt
        m = V_T + 2 * qt
        mid(f"v_max3_f32 {v(m)}, {v(S)}, {v(S + 1)}, {v(S + 2)}")
        for i in range(3, 15, 2):
            mid(f"v_max3_f32 {v(m)}, {v(m)}, {v(S + i)}, {v(S + i + 1)}")
        mid(f"v_max_f32 {v(m)}, {v(m)}, {v(S + 15)}")
        mid(f"v_mov_b32 {v(m + 1)}, {v(m)}")
    mid("s_nop 1")
    for qt in range(2):
        m = V_T + 2 * qt
        mid(f"v_permlane32_swap_b32 {v(m)}, {v(m + 1)}")
    for qt in range(2):
        m = V_T + 2 * qt
        mid(f"v_max_f32 {v(m)}, {v(m)}, {v(m + 1)}")
        for i in range(16):
            mid(f"v_sub_f32 {v(V_NM + 16 * qt + i)}, 0, {v(m)}")
    n_done = 32 - SM1_START
    for e in range(16):
        mid(f"v_mov_b32 {v(V_S + 16 + e)}, {'0' if e < n_done else f32(-1e30)}")
    for i in range(8):
        mid(f"v_mov_b32 {v(V_P + 8 + i)}, 0")
    mid(f"v_mov_b32 {v(V_L0)}, 0")
    mid(f"v_mov_b32 {v(V_L1)}, 0")
    mid(f"s_mov_b32 {s(S_CNT)}, 8")
    stamp(mid)

    body = Block()
    for t in range(8):
        body.extend(subtile(t))
    body(f"s_sub_u32 {s(S_CNT)}, {s(S_CNT)}, 1")
    body(f"s_cmp_lg_u32 {s(S_CNT)}, 0")
    body("s_cbranch_scc1 L1_loop")

    post = Block()
    gaps = [[] for _ in range(32)]
    sm_fill(gaps, 1, SM1_START, 32, 64)
    for g in gaps:
        post.extend(g)
        if g:
            post("s_nop 0")
    post("s_nop 1")
    for ks in range(2):
        for dt in range(4):
            post(pv(1, 7, ks, dt))
    stamp(post)
    post("L1_sum:")
    for qt in range(2):
        post(f"v_mov_b32 {v(V_T + qt)}, {v(V_L0 + qt)}")
    post("s_nop 1")
    for qt in range(2):
        post(f"v_permlane32_swap_b32 {v(V_L0 + qt)}, {v(V_T + qt)}")
    for qt in range(2):
        post(f"v_add_f32 {v(V_L0 + qt)}, {v(V_L0 + qt)}, {v(V_T + qt)}")
    chk = Block()
    chk(f"""
    v_max_f32 {v(V_T)}, {v(V_L0)}, {v(V_L1)}
    v_add_f32 {v(V_T + 1)}, {v(V_L0)}, {v(V_L1)}
    s_mov_b32 {s(S_T0)}, {f32(2.0 ** 40)}
    v_cmp_nlt_f32 vcc, {v(V_T + 1)}, {s(S_T0)}
    s_nop 1
    s_cbranch_vccnz L1_fallback
    """)
    epi = Block()
    epi("L1_epi:")
    for qt in range(2):
        epi(f"v_rcp_f32 {v(V_T + 2 * qt)}, {v(V_L0 + qt)}")
    epi("s_nop 0")
    for qt in range(2):
        epi(f"v_mov_b32 {v(V_T + 2 * qt + 1)}, {v(V_T + 2 * qt)}")
    epi(f"s_lshl_b32 {s(S_T0)}, {s(S_WAVE)}, 19")
    epi(f"s_lshl_b32 {s(S_T1)}, {s(S_H)}, 12")
    epi(f"s_add_u32 {s(S_T0)}, {s(S_T0)}, {s(S_T1)}")
    epi(f"s_add_u32 {s(S_T1)}, {s(S_T0)}, {2 * 131072}")
    epi("s_nop 7")
    idx = 0
    for qt in range(2):
        for dt in range(4):
            tb = V_S + 24 * (idx % 3)
            idx += 1
            for i in range(16):
                epi(f"v_accvgpr_read_b32 {v(tb + i)}, {a(A_O + 64 * qt + 16 * dt + i)}")
            for i in range(8):
                epi(f"v_pk_mul_f32 {v(tb + 2 * i, 2)}, {v(tb + 2 * i, 2)}, {v(V_T + 2 * qt, 2)}")
            for i in range(8):
                epi(f"v_cvt_pk_bf16_f32 {v(tb + 16 + i)}, {v(tb + 2 * i)}, {v(tb + 2 * i + 1)}")
            for e in range(2):
                epi(f"buffer_store_dwordx4 {v(tb + 16 + 4 * e, 4)}, {v(V_OD)}, {s(SRD_O, 4)}, {s(S_T0 + qt)} offen offset:{dt * 1024 + e * 512}")
    if OPT["stamp"]:
        epi("s_waitcnt vmcnt(0)")
        stamp(epi)
        n = nstamp[0]
        epi(f"""
        s_cmp_lg_u32 {s(S_WAVE)}, 0
        s_cbranch_scc1 L1_end
        s_add_u32 s76, s44, 0x4000000
        s_addc_u32 s77, s45, 0
        s_mov_b32 s78, 0x100000
        s_mov_b32 s79, 0x20000
        s_lshl_b32 {s(S_T0)}, s2, 6
        v_mov_b32 v1, 0
        """)
        for i in range(n):
            epi(f"v_mov_b32 v2, {s(S_STAMP + 2 * i)}")
            epi(f"v_mov_b32 v3, {s(S_STAMP + 2 * i + 1)}")
            epi(f"buffer_store_dwordx2 v[2:3], v1, s[76:79], {s(S_T0)} offen offset:{8 * i}")
            epi("s_nop 1")
    epi("L1_end:")
    epi("s_endpgm")

    fb = Block()
    fb("L1_fallback:")
    fb(f"""
    s_waitcnt vmcnt(0) lgkmcnt(0)
    s_barrier
    s_lshl_b32 {s(S_T2)}, {s(S_WAVE)}, 14
    """)
    for i in range(8):
        fb(f"v_add_u32 {v(V_KA + i)}, {s(S_T2)}, {v(V_KA + i)}")
    for i in range(4):
        fb(f"v_add_u32 {v(V_VA + i)}, {s(S_T2)}, {v(V_VA + i)}")
    for i in range(128):
        fb(f"v_accvgpr_write_b32 {a(A_O + i)}, 0")
    fb(f"""
    v_mov_b32 {v(V_L0)}, 0
    v_mov_b32 {v(V_L1)}, 0
    v_mov_b32 {v(V_M0)}, {f32(-3e38)}
    v_mov_b32 {v(V_M1)}, {f32(-3e38)}
    s_mov_b32 {s(S_KV)}, 0
    """)
    fbl = Block()
    for q in range(4):
        fbl(f"s_add_u32 m0, {s(S_T2)}, {4096 * q}")
        fbl(f"s_add_u32 {s(S_T0)}, {s(S_KV)}, {4096 * q}")
        for n in range(4):
            fbl(k_dma(0, n, s(S_T0)))
        fbl(f"s_add_u32 m0, {s(S_T2)}, {LDS_V + 4096 * q}")
        fbl("s_nop 0")
        for n in range(4):
            fbl(v_dma(0, n, s(S_T0)))
    fbl("s_waitcnt vmcnt(0)")
    for u in range(2):
        for i in range(8):
            fbl(k_read(0, i, 0, u))
        for ks in range(2):
            for dt in range(4):
                for j in range(2):
                    fbl(v_read(0, ks, dt, j, 2, u))
                if dt % 2:
                    fbl("s_waitcnt lgkmcnt(0)")
        for qt in range(2):
            for i in range(8):
                fbl(qk(qt, 0, i, "0"))
        fbl("s_nop 11")
        for qt in range(2):
            S = V_S + 16 * qt
            m, m2, al = V_T, V_T + 1, V_T + 2
            M = V_M0 + qt
            fbl(f"v_max3_f32 {v(m)}, {v(S)}, {v(S + 1)}, {v(M)}")
            for i in range(2, 16, 2):
                fbl(f"v_max3_f32 {v(m)}, {v(m)}, {v(S + i)}, {v(S + i + 1)}")
            fbl(f"v_mov_b32 {v(m2)}, {v(m)}")
            fbl("s_nop 1")
            fbl(f"v_permlane32_swap_b32 {v(m)}, {v(m2)}")
            fbl(f"v_max_f32 {v(m)}, {v(m)}, {v(m2)}")
            fbl(f"v_sub_f32 {v(al)}, {v(M)}, {v(m)}")
            fbl(f"v_exp_f32 {v(al)}, {v(al)}")
            fbl(f"v_mov_b32 {v(M)}, {v(m)}")
            fbl(f"v_mul_f32 {v(V_L0 + qt)}, {v(V_L0 + qt)}, {v(al)}")
            for i in range(64):
                r = A_O + 64 * qt + i
                fbl(f"v_accvgpr_read_b32 {v(m2)}, {a(r)}")
                fbl(f"v_mul_f32 {v(m2)}, {v(m2)}, {v(al)}")
                fbl(f"v_accvgpr_write_b32 {a(r)}, {v(m2)}")
            for e in range(16):
                fbl(f"v_sub_f32 {v(S + e)}, {v(S + e)}, {v(m)}")
            for e in range(16):
                fbl(sm_exp(qt, e))
            fbl("s_nop 0")
            for e in range(16):
                fbl(sm_add(qt, e))
            for e in range(1, 16, 2):
                fbl(sm_cvt(qt, e))
            fbl("s_nop 1")
            for ks in range(2):
                for dt in range(4):
                    fbl(pv(qt, 0, ks, dt))
        fbl("s_nop 11")
    fbl(f"s_add_u32 {s(S_KV)}, {s(S_KV)}, 16384")
    fbl(f"s_cmp_lt_u32 {s(S_KV)}, 524288")
    fbl("s_cbranch_scc1 L1_fbloop")
    fbe = Block()
    for qt in range(2):
        fbe(f"v_mov_b32 {v(V_T + qt)}, {v(V_L0 + qt)}")
    fbe("s_nop 1")
    for qt in range(2):
        fbe(f"v_permlane32_swap_b32 {v(V_L0 + qt)}, {v(V_T + qt)}")
    for qt in range(2):
        fbe(f"v_add_f32 {v(V_L0 + qt)}, {v(V_L0 + qt)}, {v(V_T + qt)}")
    fbe("s_branch L1_epi")

    for nm, q in (("k1 w012", qa), ("k1 w3", qb)):
        tr = pre.instrs() + q.instrs() + mid.instrs() + body.instrs() * 2 + post.instrs() + chk.instrs() + epi.instrs()
        check_trace(tr, nm)
    check_trace(post.instrs() + chk.instrs() + fb.instrs() + fbl.instrs() * 2 + fbe.instrs() + epi.instrs(), "k1 fallback")

    out = Block()
    out.extend(pre)
    out.extend(qa)
    out("s_branch L1_qdone")
    out("L1_q3:")
    out.extend(qb)
    out("L1_qdone:")
    out.extend(mid)
    out(".p2align 6")
    out("L1_loop:")
    out.extend(body)
    out.extend(post)
    out.extend(chk)
    out.extend(epi)
    out.extend(fb)
    out("L1_fbloop:")
    out.extend(fbl)
    out.extend(fbe)
    return out


def kernel2():
    b = Block()
    SRD_OO, SRD_W, SRD_OUT = 8, 12, 16
    S_W, S_BB, S_RT, S_CT = 3, 6, 7, 20
    S_WO, S_OK, S_M0B, S_X0, S_X1 = 21, 22, 23, 24, 25
    V_WD = 8
    V_OA = 12
    V_AA = 18
    V_RED = 22
    V_OUT = 23
    V_B = 32
    V_ACC = 0
    A_A = 96
    PF = 6
    b("oproj_kernel:")
    b(f"""
    s_cmp_ge_u32 s2, 240
    s_cbranch_scc1 L2_end
    s_load_dwordx4 s[36:39], s[0:1], 32
    s_load_dwordx2 s[44:45], s[0:1], 56
    v_lshrrev_b32 v1, 6, v0
    v_and_b32 v0, 63, v0
    v_readfirstlane_b32 {s(S_W)}, v1
    s_and_b32 {s(S_BB)}, s2, 7
    s_lshr_b32 s5, s2, 3
    s_mul_i32 {s(S_RT)}, s5, 26
    s_lshr_b32 {s(S_RT)}, {s(S_RT)}, 8
    s_mul_i32 s4, {s(S_RT)}, 10
    s_sub_u32 {s(S_CT)}, s5, s4
    ; wo DMA voffset n: (8n + l/8)*1280 + (((l%8) ^ (f<<1))*16) - 1024n ; f = ((row>>1)&1) + 2*(n&1)
    v_lshrrev_b32 v1, 3, v0
    v_and_b32 v2, 7, v0
    v_and_b32 v3, 2, v1
    v_xor_b32 v2, v2, v3
    v_lshlrev_b32 v2, 4, v2
    v_mul_u32_u24 v4, 1280, v1
    v_add_u32 {v(V_WD)}, v4, v2
    v_xor_b32 v2, 64, v2
    v_add_u32 v4, v4, v2
    v_add_u32 {v(V_WD + 1)}, {8 * 1280 - 1024}, v4
    v_add_u32 {v(V_WD + 2)}, {2 * (8 * 1280 - 1024)}, {v(V_WD)}
    v_add_u32 {v(V_WD + 3)}, {3 * (8 * 1280 - 1024)}, v4
    v_lshlrev_b32 {v(V_OA)}, 4, v0
    v_add_u32 {v(V_OA + 1)}, 0x20000, {v(V_OA)}
    v_add_u32 {v(V_OA + 2)}, 0x40000, {v(V_OA)}
    v_add_u32 {v(V_OA + 3)}, 0x60000, {v(V_OA)}
    v_add_u32 {v(V_OA + 4)}, 0x80000, {v(V_OA)}
    s_mul_i32 {s(S_WO)}, {s(S_W)}, {1024 * 1280}
    s_lshl_b32 s4, {s(S_CT)}, 7
    s_add_u32 {s(S_WO)}, {s(S_WO)}, s4
    s_lshl_b32 {s(S_OK)}, {s(S_W)}, 15
    s_lshl_b32 {s(S_M0B)}, {s(S_W)}, 15
    s_waitcnt lgkmcnt(0)
    s_mul_i32 s4, {s(S_BB)}, 15
    s_mul_i32 s5, {s(S_RT)}, 5
    s_add_u32 s4, s4, s5
    s_lshl_b32 s5, s4, 17
    s_add_u32 {s(SRD_OO)}, s44, s5
    s_addc_u32 {s(SRD_OO + 1)}, s45, 0
    s_mov_b32 {s(SRD_OO + 2)}, {5 * 131072}
    s_mov_b32 {s(SRD_OO + 3)}, 0x20000
    s_mov_b32 {s(SRD_W)}, s36
    s_mov_b32 {s(SRD_W + 1)}, s37
    s_mov_b32 {s(SRD_W + 2)}, {4096 * 1280}
    s_mov_b32 {s(SRD_W + 3)}, 0x20000
    s_mul_i32 s5, s4, {16 * 1280}
    s_add_u32 {s(SRD_OUT)}, s38, s5
    s_addc_u32 {s(SRD_OUT + 1)}, s39, 0
    s_mov_b32 {s(SRD_OUT + 2)}, {80 * 1280}
    s_mov_b32 {s(SRD_OUT + 3)}, 0x20000
    """)

    def loads(ks):
        out = [f"s_add_u32 m0, {s(S_M0B)}, {(ks % 8) * 4096}"]
        for mt in range(5):
            out.append(f"buffer_load_dwordx4 {v(V_B + 20 * (ks % 8) + 4 * mt, 4)}, {v(V_OA + mt)}, {s(SRD_OO, 4)}, {s(S_OK)} offen offset:{(ks % 4) * 1024}")
        for n in range(4):
            out.append(f"buffer_load_dwordx4 {v(V_WD + n)}, {s(SRD_W, 4)}, {s(S_WO)} offen offset:{1024 * n} lds")
        out.append(f"s_add_u32 {s(S_WO)}, {s(S_WO)}, {32 * 1280}")
        if ks % 4 == 3:
            out.append(f"s_add_u32 {s(S_OK)}, {s(S_OK)}, 4096")
        return out

    for ks in range(PF):
        b.extend(loads(ks))
    b(f"""
    v_lshrrev_b32 v1, 4, v0
    v_bfe_u32 v2, v0, 2, 2
    v_and_b32 v3, 3, v0
    v_lshl_add_u32 v4, v1, 3, v2
    v_lshlrev_b32 v4, 7, v4
    v_lshl_add_u32 v4, v3, 3, v4
    v_lshrrev_b32 v5, 1, v2
    v_and_b32 v6, 1, v1
    v_lshl_add_u32 v5, v6, 1, v5
    v_lshl_add_u32 v4, v5, 5, v4
    v_add_u32 {v(V_AA)}, {s(S_M0B)}, v4
    v_xor_b32 {v(V_AA + 1)}, 32, {v(V_AA)}
    v_xor_b32 {v(V_AA + 2)}, 64, {v(V_AA)}
    v_xor_b32 {v(V_AA + 3)}, 0x60, {v(V_AA)}
    ; out voffset: (l%16)*1280 + (l/16)*8
    v_and_b32 v2, 15, v0
    v_mul_u32_u24 v2, 1280, v2
    v_lshl_add_u32 {v(V_OUT)}, v1, 3, v2
    v_lshlrev_b32 {v(V_RED)}, 4, v0
    """)

    def areads(ks):
        return [f"ds_read_b64_tr_b16 {a(A_A + 16 * (ks % 2) + 4 * nt + 2 * j, 2)}, {v(V_AA + nt)} offset:{(ks % 8) * 4096 + 512 * j}"
                for nt in range(4) for j in range(2)]

    def mfmas(ks):
        out = []
        for nt in range(4):
            for mt in range(5):
                d = a(V_ACC + 4 * (5 * nt + mt), 4)
                c = "0" if ks == 0 else d
                out.append(f"{MF16} {d}, {a(A_A + 16 * (ks % 2) + 4 * nt, 4)}, {v(V_B + 20 * (ks % 8) + 4 * mt, 4)}, {c}")
        return out

    for ks in range(33):
        gaps = [[] for _ in range(20)]
        if ks < 32:
            n_after = 9 * (min(ks + PF, 32) - ks - 1)
            b(f"s_waitcnt vmcnt({n_after})")
            for i, r in enumerate(areads(ks)):
                gaps[i].append(r)
            if ks + PF < 32:
                gi = 8
                for d in loads(ks + PF):
                    gaps[min(gi, 19)].append(d)
                    gi += 1
        if ks == 0:
            for g in gaps:
                b.extend(g)
        else:
            b.extend(interleave(mfmas(ks - 1), gaps))
        if ks < 32:
            b("s_waitcnt lgkmcnt(0)")
    b(f"""
    s_barrier
    s_mul_i32 {s(S_X0)}, {s(S_W)}, 20480
    v_add_u32 v1, {s(S_X0)}, {v(V_RED)}
    s_mul_i32 {s(S_X0)}, {s(S_W)}, 5120
    v_add_u32 v2, {s(S_X0)}, {v(V_RED)}
    v_add_u32 v3, 40960, v2
    s_nop 7
    """)
    for tl in range(20):
        b(f"ds_write_b128 v1, {a(V_ACC + 4 * tl, 4)} offset:{tl * 1024}")
    b("s_waitcnt lgkmcnt(0)")
    b("s_barrier")
    for mt in range(5):
        for w in range(4):
            b(f"ds_read_b128 {v(V_B + 16 * mt + 4 * w, 4)}, v{2 + w // 2} offset:{(w % 2) * 20480 + mt * 1024}")
        if mt % 2 == 1:
            b("s_waitcnt lgkmcnt(0)")
    b(f"""
    s_lshl_b32 {s(S_X0)}, {s(S_CT)}, 7
    s_lshl_b32 {s(S_X1)}, {s(S_W)}, 5
    s_add_u32 {s(S_X0)}, {s(S_X0)}, {s(S_X1)}
    s_waitcnt lgkmcnt(0)
    """)
    for mt in range(5):
        r = V_B + 16 * mt
        for i in range(4):
            b(f"v_add_f32 {v(r + i)}, {v(r + i)}, {v(r + 4 + i)}")
            b(f"v_add_f32 {v(r + 8 + i)}, {v(r + 8 + i)}, {v(r + 12 + i)}")
        for i in range(4):
            b(f"v_add_f32 {v(r + i)}, {v(r + i)}, {v(r + 8 + i)}")
        b(f"v_cvt_pk_bf16_f32 {v(r + 4)}, {v(r)}, {v(r + 1)}")
        b(f"v_cvt_pk_bf16_f32 {v(r + 5)}, {v(r + 2)}, {v(r + 3)}")
        b(f"buffer_store_dwordx2 {v(r + 4, 2)}, {v(V_OUT)}, {s(SRD_OUT, 4)}, {s(S_X0)} offen")
        b(f"s_add_u32 {s(S_X0)}, {s(S_X0)}, {16 * 1280}")
    b("L2_end:")
    b("s_endpgm")
    check_trace(b.instrs(), "k2")
    return b


HEADER = """; Fused MHA block: q = x@wq, softmax(q k^T / sqrt(128)) v, out = o@wo   (gfx950, generated by gen/gen.py)
; @launch kernel=attn_kernel grid=(256,1,1) block=(256,1,1) lds=163840
; @launch kernel=oproj_kernel grid=(240,1,1) block=(256,1,1) lds=131072
.amdgcn_target "amdgcn-amd-amdhsa--gfx950"
.text
"""


def kd(name, vg, acc):
    return f""".p2align 6
.amdhsa_kernel {name}
  .amdhsa_next_free_vgpr {vg}
  .amdhsa_next_free_sgpr 96
  .amdhsa_accum_offset {acc}
  .amdhsa_group_segment_fixed_size 0
  .amdhsa_kernarg_size 64
  .amdhsa_user_sgpr_count 2
  .amdhsa_user_sgpr_kernarg_segment_ptr 1
  .amdhsa_system_sgpr_workgroup_id_x 1
.end_amdhsa_kernel
"""


def main():
    k1 = kernel1()
    k2 = kernel2()
    txt = HEADER
    txt += ".globl attn_kernel\n.p2align 8\n.type attn_kernel,@function\n" + k1.text()
    txt += ".globl oproj_kernel\n.p2align 8\n.type oproj_kernel,@function\n" + k2.text()
    txt += '.section .rodata,"a"\n' + kd("attn_kernel", 512, 256) + kd("oproj_kernel", 384, 256)
    open(sys.argv[1], "w").write(txt)


main()
```

```python
import math
import struct
import sys
from asmlib import *

OPT = dict(stamp=0, nt=0, nocompute=0)
for arg in sys.argv[2:]:
    k, val = arg.split("=")
    OPT[k] = int(val)


def f32(x):
    return "0x%08x" % struct.unpack("<I", struct.pack("<f", x))[0]


SCALE = math.log2(math.e) / math.sqrt(128.0)
MF32 = "v_mfma_f32_32x32x16_bf16"
MF16 = "v_mfma_f32_16x16x32_bf16"
KVPOL = " nt" if OPT["nt"] else ""

S_WAVE = 3
SRD_X, SRD_WQ, SRD_K, SRD_V, SRD_O, SRD_J = 8, 12, 16, 20, 24, 28
S_B, S_H = 6, 7
S_JM0 = 32
S_J0, S_J1, S_JINC = 46, 47, 48
S_W4096 = 49
S_KV = 50
S_CNT = 51
S_T0, S_T1, S_T2 = 52, 53, 54
S_SCALE = 56
S_STAMP = 60

V_KA = 16
V_VA = 24
V_KD = 28
V_VD = 32
V_L0, V_L1 = 33, 34
V_JD = 36
V_WA = 40
V_XA = 44
V_OD = 46
V_Q = 48
V_S = 112
V_P = 144
V_NM = 160
V_QACC = 112
V_M0, V_M1 = 192, 193
V_T = 196

A_O = 0
A_K = 128
A_V = 192
A_QF = 128

XBUF = [0, 32768, 16384, 49152]
LDS_X0 = 32768
LDS_WQ = 131072
LDS_V = 65536


def kslot(T):
    return (T % 4) * 16384


def vslot(T):
    return ((T + 2) % 4) * 16384


nstamp = [0]


def stamp(b):
    if not OPT["stamp"]:
        return
    i = nstamp[0]
    nstamp[0] += 1
    b(f"s_memrealtime {s(S_STAMP + 2 * i, 2)}")
    b("s_waitcnt lgkmcnt(0)")


def k_dma(T, n, soff):
    return f"buffer_load_dwordx4 {v(V_KD + n)}, {s(SRD_K, 4)}, {soff} offen offset:{1024 * n}{KVPOL} lds"


def v_dma(T, n, soff):
    return f"buffer_load_dwordx4 {v(V_VD)}, {s(SRD_V, 4)}, {soff} offen offset:{1024 * n}{KVPOL} lds"


def k_read(t, sidx, T, u):
    return f"ds_read_b128 {a(A_K + 32 * (t % 2) + 4 * sidx, 4)}, {v(V_KA + sidx)} offset:{kslot(T) + 8192 * u}"


def v_read(t, ks, dt, j, T, u):
    return (f"ds_read_b64_tr_b16 {a(A_V + 32 * (t % 2) + 16 * ks + 4 * dt + 2 * j, 2)}, {v(V_VA + dt)} "
            f"offset:{vslot(T) + 8192 * u + (16 * ks + 8 * j) * 256}")


def qk(qt, t, sidx, c0):
    d = v(V_S + 16 * qt, 16)
    c = c0 if sidx == 0 else d
    return f"{MF32} {d}, {a(A_K + 32 * (t % 2) + 4 * sidx, 4)}, {v(V_Q + 32 * qt + 4 * sidx, 4)}, {c}"


def pv(qt, t, ks, dt):
    d = a(A_O + 64 * qt + 16 * dt, 16)
    return f"{MF32} {d}, {a(A_V + 32 * (t % 2) + 16 * ks + 4 * dt, 4)}, {v(V_P + 8 * qt + 4 * ks, 4)}, {d}"


def sm_exp(qt, e):
    r = v(V_S + 16 * qt + e)
    return f"v_exp_f32 {r}, {r}"


def sm_add(qt, e):
    l = v(V_L0 + qt)
    return f"v_add_f32 {l}, {l}, {v(V_S + 16 * qt + e)}"


def sm_cvt(qt, e):
    return f"v_cvt_pk_bf16_f32 {v(V_P + 8 * qt + e // 2)}, {v(V_S + 16 * qt + e - 1)}, {v(V_S + 16 * qt + e)}"


SM0_START = 11
SM1_START = 27


def sm_fill(gaps, qt, start, lo, hi):
    for e in range(16):
        g = start + e + 1
        if e % 2 == 1 and lo <= g < hi:
            gaps[g - lo].append(sm_cvt(qt, e))
    for e in range(16):
        g = start + e
        if lo <= g < hi:
            gaps[g - lo].append(sm_exp(qt, e))
    for e in range(16):
        g = start + e + 1
        if lo <= g < hi:
            gaps[g - lo].append(sm_add(qt, e))


def subtile(t):
    T, u = t // 2, t % 2
    mf = [qk(0, t, i, v(V_NM, 16)) for i in range(8)]
    mf += [pv(1, t - 1, ks, dt) for ks in range(2) for dt in range(4)]
    mf += [qk(1, t, i, v(V_NM + 16, 16)) for i in range(8)]
    mf += [pv(0, t, ks, dt) for ks in range(2) for dt in range(4)]
    gaps = [[] for _ in range(32)]
    sm_fill(gaps, 1, SM1_START, 32, 64)
    sm_fill(gaps, 0, SM0_START, 0, 32)
    sm_fill(gaps, 1, SM1_START, 0, 32)
    vr = [v_read(t, ks, dt, j, T, u) for ks in range(2) for dt in range(4) for j in range(2)]
    vg = [0, 0, 1, 2, 2, 3, 4, 4, 5, 6, 6, 7, 8, 8, 9, 10]
    for r, g in zip(vr, vg):
        gaps[g].append(r)
    if u == 1:
        gaps[15].append("s_waitcnt vmcnt(16) lgkmcnt(0)")
        gaps[15].append("s_barrier")
    else:
        gaps[15].append("s_waitcnt lgkmcnt(0)")
    Tn, un = (t + 1) // 2, (t + 1) % 2
    for i in range(8):
        gaps[16 + i].append(k_read(t + 1, i, Tn, un))
    if u == 1:
        Td = (t + 1) // 2 + 3
        gaps[23].append(f"s_add_u32 m0, {s(S_W4096)}, {kslot(Td)}")
        for n in range(4):
            gaps[24 + 2 * n].append(k_dma(Td, n, s(S_KV)))
    else:
        Td = T + 3
        gaps[23].append(f"s_add_u32 m0, {s(S_W4096)}, {LDS_V + vslot(Td)}")
        for n in range(4):
            gaps[24 + 2 * n].append(v_dma(Td, n, s(S_KV)))
        gaps[31].append(f"s_add_u32 {s(S_KV)}, {s(S_KV)}, 16384")
    gaps[31].append("s_waitcnt lgkmcnt(0)")
    if OPT["nocompute"]:
        out = []
        for g in gaps:
            for x in g:
                if x.startswith(("s_", "buffer")):
                    out.append(x)
                    if " m0," in x:
                        out.append("s_nop 0")
        return out
    return interleave(mf, gaps)


def qproj_phase(role3):
    b = Block()
    issued = []

    def job_dma(stage):
        out = []
        buf = stage % 4
        for g in range(2):
            if g == 0:
                out.append(f"s_mov_b32 m0, {s(S_JM0 + buf)}")
            else:
                out.append(f"s_add_u32 m0, {s(S_JM0 + buf)}, 4096")
            for j in range(4):
                ins = f"buffer_load_dwordx4 {v(V_JD + j)}, {s(SRD_J, 4)}, {s(S_J0 + g)} offen offset:{1024 * j} lds"
                if j == 0:
                    out.append("s_nop 0")
                out.append(ins)
                issued.append(("st", stage))
            out.append(f"s_add_u32 {s(S_J0 + g)}, {s(S_J0 + g)}, {s(S_JINC)}")
        return out

    def kv_quarter(T, isv, q):
        out = [f"s_mov_b32 m0, {(LDS_V + vslot(T) if isv else kslot(T)) + 4096 * q}",
               f"s_mov_b32 {s(S_T0)}, {T * 16384 + 4096 * q}"]
        if len(issued) > 58:
            out.append("s_waitcnt vmcnt(58)")
        for n in range(4):
            out.append((v_dma if isv else k_dma)(T, n, s(S_T0)))
            issued.append(("kv", T))
        return out

    def own_quarter(T, isv):
        out = [f"s_add_u32 m0, {s(S_W4096)}, {LDS_V + vslot(T) if isv else kslot(T)}",
               f"s_add_u32 {s(S_T0)}, {s(S_W4096)}, {T * 16384}"]
        if role3:
            out.append("s_waitcnt vmcnt(54)")
        for n in range(4):
            out.append((v_dma if isv else k_dma)(T, n, s(S_T0)))
            issued.append(("kv", T))
        return out

    def wait_for(tag):
        last = max(i for i, x in enumerate(issued) if x == tag)
        return len(issued) - 1 - last

    late = []
    if role3:
        quarters = [(0, 0, q) for q in range(4)] + [(0, 1, q) for q in range(4)] + \
                   [(1, 0, q) for q in range(4)] + [(1, 1, q) for q in range(4)]
        for T, isv, q in quarters[:14]:
            b.extend(kv_quarter(T, isv, q))
        late = quarters[14:]
    else:
        for st in range(3):
            b.extend(job_dma(st))
    for i in range(128):
        b(f"v_accvgpr_write_b32 {a(A_O + i)}, 0")
    for i in range(32):
        b(f"v_accvgpr_write_b32 {a(A_V + 32 + i)}, 0")

    def reads(st):
        f, buf = st % 2, st % 4
        base = A_QF + 48 * f
        out = []
        for ks in range(2):
            for qt in range(2):
                out.append(f"ds_read_b128 {a(base + 32 + 8 * ks + 4 * qt, 4)}, {v(V_XA + ks)} offset:{XBUF[buf] + 2048 * qt}")
            for dt in range(4):
                for j in range(2):
                    out.append(f"ds_read_b64_tr_b16 {a(base + 16 * ks + 4 * dt + 2 * j, 2)}, {v(V_WA + dt)} "
                               f"offset:{buf * 8192 + (16 * ks + 4 * j) * 256}")
        return out

    def mfmas(st):
        base = A_QF + 48 * (st % 2)
        out = []
        for ks in range(2):
            for qt in range(2):
                for dt in range(4):
                    d = v(V_QACC + 16 * (4 * qt + dt), 16)
                    c = "0" if (st == 0 and ks == 0) else d
                    out.append(f"{MF32} {d}, {a(base + 16 * ks + 4 * dt, 4)}, {a(base + 32 + 8 * ks + 4 * qt, 4)}, {c}")
        return out

    for st in range(21):
        fill = []
        if st < 20:
            if not role3:
                b(f"s_waitcnt vmcnt({wait_for(('st', st))})")
            b("s_barrier")
            if st == 1:
                stamp(b)
            rd = reads(st)
            dm = []
            if role3:
                if st in (6, 8) and late:
                    dm = kv_quarter(*late.pop(0))
            elif st + 3 < 20:
                dm = job_dma(st + 3)
            if st == 17:
                dm += own_quarter(2, 0)
            if st == 18:
                dm += own_quarter(2, 1)
            if st == 19:
                dm += own_quarter(3, 0)
            gaps = [[] for _ in range(16)]
            for i, r in enumerate(rd):
                gaps[i // 2].append(r)
            gi = 4
            for d in dm:
                gaps[min(gi, 15)].append(d)
                if d.startswith("buffer"):
                    gi += 1
            fill = gaps
        if st == 0:
            for g in fill:
                b.extend(g)
        elif st < 20:
            b.extend(interleave(mfmas(st - 1), fill))
        else:
            b.extend(mfmas(19))
        if st < 20:
            b("s_waitcnt lgkmcnt(0)")
    if role3:
        b(f"s_waitcnt vmcnt({wait_for(('kv', 0))})")
    return b


def kernel1():
    b = Block()
    b("attn_kernel:")
    b(f"""
    s_cmp_ge_u32 s2, 256
    s_cbranch_scc1 L1_end
    s_load_dwordx4 s[36:39], s[0:1], 0
    s_load_dwordx4 s[40:43], s[0:1], 16
    s_load_dwordx2 s[44:45], s[0:1], 56
    v_lshrrev_b32 v1, 6, v0
    v_and_b32 v0, 63, v0
    v_readfirstlane_b32 {s(S_WAVE)}, v1
    s_and_b32 s4, s2, 7
    s_lshr_b32 s5, s2, 3
    s_and_b32 {s(S_B)}, s4, 1
    s_lshl_b32 {s(S_B)}, {s(S_B)}, 2
    s_and_b32 {s(S_H)}, s5, 3
    s_add_u32 {s(S_B)}, {s(S_B)}, {s(S_H)}
    s_lshr_b32 {s(S_H)}, s4, 1
    s_lshl_b32 {s(S_H)}, {s(S_H)}, 3
    s_lshr_b32 s5, s5, 2
    s_add_u32 {s(S_H)}, {s(S_H)}, s5
    s_lshl_b32 {s(S_W4096)}, {s(S_WAVE)}, 12
    """)
    b("""
    v_lshrrev_b32 v1, 4, v0
    v_and_b32 v2, 15, v0
    v_lshrrev_b32 v3, 2, v0
    v_and_b32 v4, 3, v0
    v_and_b32 v5, 31, v0
    v_lshrrev_b32 v6, 5, v0
    v_and_b32 v7, 3, v3
    """)
    b(f"""
    v_xor_b32 v8, v2, v1
    v_lshlrev_b32 v8, 4, v8
    v_lshl_add_u32 {v(V_KD)}, v1, 8, v8
    v_xor_b32 {v(V_KD + 1)}, 64, {v(V_KD)}
    v_xor_b32 {v(V_KD + 2)}, 0x80, {v(V_KD)}
    v_xor_b32 {v(V_KD + 3)}, 0xc0, {v(V_KD)}
    v_lshlrev_b32 v9, 2, v1
    v_xor_b32 v9, v2, v9
    v_lshlrev_b32 v9, 4, v9
    v_lshl_add_u32 {v(V_VD)}, v1, 8, v9
    """)
    b(f"""
    v_lshl_add_u32 v10, v1, 13, v9
    v_mul_u32_u24 v11, 1280, v3
    v_xor_b32 v12, v4, v1
    v_lshl_add_u32 v11, v12, 4, v11
    s_mov_b32 {s(S_T0)}, {16 * 1280 - 1024}
    s_cmp_eq_u32 {s(S_WAVE)}, 0
    s_cselect_b64 vcc, -1, 0
    s_cselect_b32 {s(S_T0)}, {4 * 8192 - 1024}, {s(S_T0)}
    s_cselect_b32 {s(S_JINC)}, {32 * 8192}, 64
    v_cndmask_b32 {v(V_JD)}, v11, v10, vcc
    v_add_u32 {v(V_JD + 1)}, {s(S_T0)}, {v(V_JD)}
    v_add_u32 {v(V_JD + 2)}, {s(S_T0)}, {v(V_JD + 1)}
    v_add_u32 {v(V_JD + 3)}, {s(S_T0)}, {v(V_JD + 2)}
    """)
    b(f"""
    s_sub_u32 {s(S_T1)}, {s(S_WAVE)}, 1
    s_mul_i32 {s(S_T2)}, {s(S_T1)}, {2 * 81920}
    s_lshl_b32 {s(S_T1)}, {s(S_T1)}, 13
    s_add_u32 {s(S_T1)}, {s(S_T1)}, {LDS_X0}
    s_cmp_eq_u32 {s(S_WAVE)}, 0
    s_cselect_b32 {s(S_J0)}, 0, {s(S_T2)}
    s_mov_b32 {s(S_T2)}, 81920
    s_cselect_b32 {s(S_T2)}, 131072, {s(S_T2)}
    s_add_u32 {s(S_J1)}, {s(S_J0)}, {s(S_T2)}
    """)
    for buf in range(4):
        b(f"""
        s_add_u32 {s(S_T2)}, {s(S_T1)}, {XBUF[buf]}
        s_cmp_eq_u32 {s(S_WAVE)}, 0
        s_cselect_b32 {s(S_JM0 + buf)}, {LDS_WQ + 8192 * buf}, {s(S_T2)}
        """)
    b(f"""
    s_waitcnt lgkmcnt(0)
    s_mul_i32 {s(S_T0)}, {s(S_B)}, 307200
    s_add_u32 {s(SRD_X)}, s36, {s(S_T0)}
    s_addc_u32 {s(SRD_X + 1)}, s37, 0
    s_mov_b32 {s(SRD_X + 2)}, 307200
    s_mov_b32 {s(SRD_X + 3)}, 0x20000
    s_lshl_b32 {s(S_T0)}, {s(S_H)}, 8
    s_add_u32 {s(SRD_WQ)}, s42, {s(S_T0)}
    s_addc_u32 {s(SRD_WQ + 1)}, s43, 0
    s_sub_u32 {s(SRD_WQ + 2)}, {640 * 8192}, {s(S_T0)}
    s_mov_b32 {s(SRD_WQ + 3)}, 0x20000
    s_lshl_b32 {s(S_T0)}, {s(S_B)}, 5
    s_add_u32 {s(S_T0)}, {s(S_T0)}, {s(S_H)}
    s_lshl_b32 {s(S_T0)}, {s(S_T0)}, 19
    s_add_u32 {s(SRD_K)}, s38, {s(S_T0)}
    s_addc_u32 {s(SRD_K + 1)}, s39, 0
    s_mov_b32 {s(SRD_K + 2)}, 524288
    s_mov_b32 {s(SRD_K + 3)}, 0x20000
    s_add_u32 {s(SRD_V)}, s40, {s(S_T0)}
    s_addc_u32 {s(SRD_V + 1)}, s41, 0
    s_mov_b32 {s(SRD_V + 2)}, 524288
    s_mov_b32 {s(SRD_V + 3)}, 0x20000
    s_cmp_eq_u32 {s(S_WAVE)}, 0
    s_cselect_b32 {s(SRD_J)}, {s(SRD_WQ)}, {s(SRD_X)}
    s_cselect_b32 {s(SRD_J + 1)}, {s(SRD_WQ + 1)}, {s(SRD_X + 1)}
    s_cselect_b32 {s(SRD_J + 2)}, {s(SRD_WQ + 2)}, {s(SRD_X + 2)}
    s_mov_b32 {s(SRD_J + 3)}, 0x20000
    s_mul_i32 {s(S_T0)}, {s(S_B)}, {15 * 131072}
    s_add_u32 {s(SRD_O)}, s44, {s(S_T0)}
    s_addc_u32 {s(SRD_O + 1)}, s45, 0
    s_mov_b32 {s(SRD_O + 2)}, {15 * 131072}
    s_mov_b32 {s(SRD_O + 3)}, 0x20000
    """)
    stamp(b)
    b(f"""
    ; K read: (l%32)*256 + ((h ^ (l%16))*16) ^ (s*32)
    v_xor_b32 v8, v6, v2
    v_lshlrev_b32 v8, 4, v8
    v_lshl_add_u32 {v(V_KA)}, v5, 8, v8
    """)
    for i in range(1, 8):
        b(f"v_xor_b32 {v(V_KA + i)}, {32 * i}, {v(V_KA)}")
    b(f"""
    ; in-block byte: 32*(G%2) + 16*(c%2) + 8*(c/2)   (c = l%4)
    v_and_b32 v8, 1, v1
    v_lshlrev_b32 v8, 5, v8
    v_and_b32 v9, 1, v4
    v_lshl_add_u32 v8, v9, 4, v8
    v_lshrrev_b32 v9, 1, v4
    v_lshl_add_u32 v8, v9, 3, v8
    ; + r*64 (dt=0) + r*256
    v_lshl_add_u32 v8, v7, 6, v8
    v_lshl_add_u32 v8, v7, 8, v8
    v_lshl_add_u32 v9, v6, 10, v8
    v_add_u32 {v(V_VA)}, {LDS_V}, v9
    v_lshl_add_u32 v9, v6, 11, v8
    v_add_u32 {v(V_WA)}, {LDS_WQ}, v9
    """)
    for dt in range(1, 4):
        b(f"v_xor_b32 {v(V_VA + dt)}, {64 * dt}, {v(V_VA)}")
        b(f"v_xor_b32 {v(V_WA + dt)}, {64 * dt}, {v(V_WA)}")
    b(f"""
    ; x read: LDS_X0 + (64w + l%32)*64 + ((h ^ r)*16) ^ (ks*32)
    v_xor_b32 v8, v6, v7
    v_lshlrev_b32 v8, 4, v8
    v_lshl_add_u32 v8, v5, 6, v8
    v_add_u32 v8, {s(S_W4096)}, v8
    v_add_u32 {v(V_XA)}, {LDS_X0}, v8
    v_xor_b32 {v(V_XA + 1)}, 32, {v(V_XA)}
    ; O store voffset: ((l%32)/16)*131072 + (l%16)*16 + h*256
    v_and_b32 v8, 1, v1
    v_lshlrev_b32 v8, 17, v8
    v_lshl_add_u32 v8, v2, 4, v8
    v_lshl_add_u32 {v(V_OD)}, v6, 8, v8
    s_mov_b32 {s(S_SCALE)}, {f32(SCALE)}
    s_mov_b32 {s(S_SCALE + 1)}, {f32(SCALE)}
    s_add_u32 {s(S_KV)}, {s(S_W4096)}, {3 * 16384}
    s_cmp_eq_u32 {s(S_WAVE)}, 3
    s_cbranch_scc1 L1_q3
    """)
    pre = b
    ns = nstamp[0]
    qa = qproj_phase(False)
    nstamp[0] = ns
    qb = qproj_phase(True)

    mid = Block()
    mid("s_barrier")
    stamp(mid)
    mid("s_nop 7")
    for i in range(8):
        mid(k_read(0, i, 0, 0))
    mid("s_nop 3")
    for qt in range(2):
        for dt in range(4):
            acc = V_QACC + 16 * (4 * qt + dt)
            for i in range(8):
                mid(f"v_pk_mul_f32 {v(acc + 2 * i, 2)}, {v(acc + 2 * i, 2)}, {s(S_SCALE, 2)}")
            for i in range(8):
                mid(f"v_cvt_pk_bf16_f32 {v(V_Q + 32 * qt + 8 * dt + i)}, {v(acc + 2 * i)}, {v(acc + 2 * i + 1)}")
    mid("s_waitcnt lgkmcnt(0)")
    mid("s_nop 1")
    for qt in range(2):
        for i in range(8):
            mid(qk(qt, 0, i, "0"))
    mid("s_nop 11")
    for qt in range(2):
        S = V_S + 16 * qt
        m = V_T + 2 * qt
        mid(f"v_max3_f32 {v(m)}, {v(S)}, {v(S + 1)}, {v(S + 2)}")
        for i in range(3, 15, 2):
            mid(f"v_max3_f32 {v(m)}, {v(m)}, {v(S + i)}, {v(S + i + 1)}")
        mid(f"v_max_f32 {v(m)}, {v(m)}, {v(S + 15)}")
        mid(f"v_mov_b32 {v(m + 1)}, {v(m)}")
    mid("s_nop 1")
    for qt in range(2):
        m = V_T + 2 * qt
        mid(f"v_permlane32_swap_b32 {v(m)}, {v(m + 1)}")
    for qt in range(2):
        m = V_T + 2 * qt
        mid(f"v_max_f32 {v(m)}, {v(m)}, {v(m + 1)}")
        for i in range(16):
            mid(f"v_sub_f32 {v(V_NM + 16 * qt + i)}, 0, {v(m)}")
    n_done = 32 - SM1_START
    for e in range(16):
        mid(f"v_mov_b32 {v(V_S + 16 + e)}, {'0' if e < n_done else f32(-1e30)}")
    for i in range(8):
        mid(f"v_mov_b32 {v(V_P + 8 + i)}, 0")
    mid(f"v_mov_b32 {v(V_L0)}, 0")
    mid(f"v_mov_b32 {v(V_L1)}, 0")
    mid(f"s_mov_b32 {s(S_CNT)}, 8")
    stamp(mid)

    body = Block()
    for t in range(8):
        body.extend(subtile(t))
    body(f"s_sub_u32 {s(S_CNT)}, {s(S_CNT)}, 1")
    body(f"s_cmp_lg_u32 {s(S_CNT)}, 0")
    body("s_cbranch_scc1 L1_loop")

    post = Block()
    gaps = [[] for _ in range(32)]
    sm_fill(gaps, 1, SM1_START, 32, 64)
    for g in gaps:
        post.extend(g)
        if g:
            post("s_nop 0")
    post("s_nop 1")
    for ks in range(2):
        for dt in range(4):
            post(pv(1, 7, ks, dt))
    stamp(post)
    post("L1_sum:")
    for qt in range(2):
        post(f"v_mov_b32 {v(V_T + qt)}, {v(V_L0 + qt)}")
    post("s_nop 1")
    for qt in range(2):
        post(f"v_permlane32_swap_b32 {v(V_L0 + qt)}, {v(V_T + qt)}")
    for qt in range(2):
        post(f"v_add_f32 {v(V_L0 + qt)}, {v(V_L0 + qt)}, {v(V_T + qt)}")
    chk = Block()
    chk(f"""
    v_max_f32 {v(V_T)}, {v(V_L0)}, {v(V_L1)}
    v_add_f32 {v(V_T + 1)}, {v(V_L0)}, {v(V_L1)}
    s_mov_b32 {s(S_T0)}, {f32(2.0 ** 40)}
    v_cmp_nlt_f32 vcc, {v(V_T + 1)}, {s(S_T0)}
    s_nop 1
    s_cbranch_vccnz L1_fallback
    """)
    epi = Block()
    epi("L1_epi:")
    for qt in range(2):
        epi(f"v_rcp_f32 {v(V_T + 2 * qt)}, {v(V_L0 + qt)}")
    epi("s_nop 0")
    for qt in range(2):
        epi(f"v_mov_b32 {v(V_T + 2 * qt + 1)}, {v(V_T + 2 * qt)}")
    epi(f"s_lshl_b32 {s(S_T0)}, {s(S_WAVE)}, 19")
    epi(f"s_lshl_b32 {s(S_T1)}, {s(S_H)}, 12")
    epi(f"s_add_u32 {s(S_T0)}, {s(S_T0)}, {s(S_T1)}")
    epi(f"s_add_u32 {s(S_T1)}, {s(S_T0)}, {2 * 131072}")
    epi("s_nop 7")
    idx = 0
    for qt in range(2):
        for dt in range(4):
            tb = V_S + 24 * (idx % 3)
            idx += 1
            for i in range(16):
                epi(f"v_accvgpr_read_b32 {v(tb + i)}, {a(A_O + 64 * qt + 16 * dt + i)}")
            for i in range(8):
                epi(f"v_pk_mul_f32 {v(tb + 2 * i, 2)}, {v(tb + 2 * i, 2)}, {v(V_T + 2 * qt, 2)}")
            for i in range(8):
                epi(f"v_cvt_pk_bf16_f32 {v(tb + 16 + i)}, {v(tb + 2 * i)}, {v(tb + 2 * i + 1)}")
            for e in range(2):
                epi(f"buffer_store_dwordx4 {v(tb + 16 + 4 * e, 4)}, {v(V_OD)}, {s(SRD_O, 4)}, {s(S_T0 + qt)} offen offset:{dt * 1024 + e * 512}")
    if OPT["stamp"]:
        epi("s_waitcnt vmcnt(0)")
        stamp(epi)
        n = nstamp[0]
        epi(f"""
        s_cmp_lg_u32 {s(S_WAVE)}, 0
        s_cbranch_scc1 L1_end
        s_add_u32 s76, s44, 0x4000000
        s_addc_u32 s77, s45, 0
        s_mov_b32 s78, 0x100000
        s_mov_b32 s79, 0x20000
        s_lshl_b32 {s(S_T0)}, s2, 6
        v_mov_b32 v1, 0
        """)
        for i in range(n):
            epi(f"v_mov_b32 v2, {s(S_STAMP + 2 * i)}")
            epi(f"v_mov_b32 v3, {s(S_STAMP + 2 * i + 1)}")
            epi(f"buffer_store_dwordx2 v[2:3], v1, s[76:79], {s(S_T0)} offen offset:{8 * i}")
            epi("s_nop 1")
    epi("L1_end:")
    epi("s_endpgm")

    fb = Block()
    fb("L1_fallback:")
    fb(f"""
    s_waitcnt vmcnt(0) lgkmcnt(0)
    s_barrier
    s_lshl_b32 {s(S_T2)}, {s(S_WAVE)}, 14
    """)
    for i in range(8):
        fb(f"v_add_u32 {v(V_KA + i)}, {s(S_T2)}, {v(V_KA + i)}")
    for i in range(4):
        fb(f"v_add_u32 {v(V_VA + i)}, {s(S_T2)}, {v(V_VA + i)}")
    for i in range(128):
        fb(f"v_accvgpr_write_b32 {a(A_O + i)}, 0")
    fb(f"""
    v_mov_b32 {v(V_L0)}, 0
    v_mov_b32 {v(V_L1)}, 0
    v_mov_b32 {v(V_M0)}, {f32(-3e38)}
    v_mov_b32 {v(V_M1)}, {f32(-3e38)}
    s_mov_b32 {s(S_KV)}, 0
    """)
    fbl = Block()
    for q in range(4):
        fbl(f"s_add_u32 m0, {s(S_T2)}, {4096 * q}")
        fbl(f"s_add_u32 {s(S_T0)}, {s(S_KV)}, {4096 * q}")
        for n in range(4):
            fbl(k_dma(0, n, s(S_T0)))
        fbl(f"s_add_u32 m0, {s(S_T2)}, {LDS_V + 4096 * q}")
        fbl("s_nop 0")
        for n in range(4):
            fbl(v_dma(0, n, s(S_T0)))
    fbl("s_waitcnt vmcnt(0)")
    for u in range(2):
        for i in range(8):
            fbl(k_read(0, i, 0, u))
        for ks in range(2):
            for dt in range(4):
                for j in range(2):
                    fbl(v_read(0, ks, dt, j, 2, u))
                if dt % 2:
                    fbl("s_waitcnt lgkmcnt(0)")
        for qt in range(2):
            for i in range(8):
                fbl(qk(qt, 0, i, "0"))
        fbl("s_nop 11")
        for qt in range(2):
            S = V_S + 16 * qt
            m, m2, al = V_T, V_T + 1, V_T + 2
            M = V_M0 + qt
            fbl(f"v_max3_f32 {v(m)}, {v(S)}, {v(S + 1)}, {v(M)}")
            for i in range(2, 16, 2):
                fbl(f"v_max3_f32 {v(m)}, {v(m)}, {v(S + i)}, {v(S + i + 1)}")
            fbl(f"v_mov_b32 {v(m2)}, {v(m)}")
            fbl("s_nop 1")
            fbl(f"v_permlane32_swap_b32 {v(m)}, {v(m2)}")
            fbl(f"v_max_f32 {v(m)}, {v(m)}, {v(m2)}")
            fbl(f"v_sub_f32 {v(al)}, {v(M)}, {v(m)}")
            fbl(f"v_exp_f32 {v(al)}, {v(al)}")
            fbl(f"v_mov_b32 {v(M)}, {v(m)}")
            fbl(f"v_mul_f32 {v(V_L0 + qt)}, {v(V_L0 + qt)}, {v(al)}")
            for i in range(64):
                r = A_O + 64 * qt + i
                fbl(f"v_accvgpr_read_b32 {v(m2)}, {a(r)}")
                fbl(f"v_mul_f32 {v(m2)}, {v(m2)}, {v(al)}")
                fbl(f"v_accvgpr_write_b32 {a(r)}, {v(m2)}")
            for e in range(16):
                fbl(f"v_sub_f32 {v(S + e)}, {v(S + e)}, {v(m)}")
            for e in range(16):
                fbl(sm_exp(qt, e))
            fbl("s_nop 0")
            for e in range(16):
                fbl(sm_add(qt, e))
            for e in range(1, 16, 2):
                fbl(sm_cvt(qt, e))
            fbl("s_nop 1")
            for ks in range(2):
                for dt in range(4):
                    fbl(pv(qt, 0, ks, dt))
        fbl("s_nop 11")
    fbl(f"s_add_u32 {s(S_KV)}, {s(S_KV)}, 16384")
    fbl(f"s_cmp_lt_u32 {s(S_KV)}, 524288")
    fbl("s_cbranch_scc1 L1_fbloop")
    fbe = Block()
    for qt in range(2):
        fbe(f"v_mov_b32 {v(V_T + qt)}, {v(V_L0 + qt)}")
    fbe("s_nop 1")
    for qt in range(2):
        fbe(f"v_permlane32_swap_b32 {v(V_L0 + qt)}, {v(V_T + qt)}")
    for qt in range(2):
        fbe(f"v_add_f32 {v(V_L0 + qt)}, {v(V_L0 + qt)}, {v(V_T + qt)}")
    fbe("s_branch L1_epi")

    for nm, q in (("k1 w012", qa), ("k1 w3", qb)):
        tr = pre.instrs() + q.instrs() + mid.instrs() + body.instrs() * 2 + post.instrs() + chk.instrs() + epi.instrs()
        check_trace(tr, nm)
    check_trace(post.instrs() + chk.instrs() + fb.instrs() + fbl.instrs() * 2 + fbe.instrs() + epi.instrs(), "k1 fallback")

    out = Block()
    out.extend(pre)
    out.extend(qa)
    out("s_branch L1_qdone")
    out("L1_q3:")
    out.extend(qb)
    out("L1_qdone:")
    out.extend(mid)
    out(".p2align 6")
    out("L1_loop:")
    out.extend(body)
    out.extend(post)
    out.extend(chk)
    out.extend(epi)
    out.extend(fb)
    out("L1_fbloop:")
    out.extend(fbl)
    out.extend(fbe)
    return out


def kernel2():
    b = Block()
    SRD_OO, SRD_W, SRD_OUT = 8, 12, 16
    S_W, S_BB, S_RT, S_CT = 3, 6, 7, 20
    S_WO, S_OK, S_M0B, S_X0, S_X1 = 21, 22, 23, 24, 25
    V_WD = 8
    V_OA = 12
    V_AA = 18
    V_RED = 22
    V_OUT = 23
    V_B = 32
    V_ACC = 0
    A_A = 96
    PF = 6
    b("oproj_kernel:")
    b(f"""
    s_cmp_ge_u32 s2, 240
    s_cbranch_scc1 L2_end
    s_load_dwordx4 s[36:39], s[0:1], 32
    s_load_dwordx2 s[44:45], s[0:1], 56
    v_lshrrev_b32 v1, 6, v0
    v_and_b32 v0, 63, v0
    v_readfirstlane_b32 {s(S_W)}, v1
    s_and_b32 {s(S_BB)}, s2, 7
    s_lshr_b32 s5, s2, 3
    s_mul_i32 {s(S_RT)}, s5, 26
    s_lshr_b32 {s(S_RT)}, {s(S_RT)}, 8
    s_mul_i32 s4, {s(S_RT)}, 10
    s_sub_u32 {s(S_CT)}, s5, s4
    ; wo DMA voffset n: (8n + l/8)*1280 + (((l%8) ^ (f<<1))*16) - 1024n ; f = ((row>>1)&1) + 2*(n&1)
    v_lshrrev_b32 v1, 3, v0
    v_and_b32 v2, 7, v0
    v_and_b32 v3, 2, v1
    v_xor_b32 v2, v2, v3
    v_lshlrev_b32 v2, 4, v2
    v_mul_u32_u24 v4, 1280, v1
    v_add_u32 {v(V_WD)}, v4, v2
    v_xor_b32 v2, 64, v2
    v_add_u32 v4, v4, v2
    v_add_u32 {v(V_WD + 1)}, {8 * 1280 - 1024}, v4
    v_add_u32 {v(V_WD + 2)}, {2 * (8 * 1280 - 1024)}, {v(V_WD)}
    v_add_u32 {v(V_WD + 3)}, {3 * (8 * 1280 - 1024)}, v4
    v_lshlrev_b32 {v(V_OA)}, 4, v0
    v_add_u32 {v(V_OA + 1)}, 0x20000, {v(V_OA)}
    v_add_u32 {v(V_OA + 2)}, 0x40000, {v(V_OA)}
    v_add_u32 {v(V_OA + 3)}, 0x60000, {v(V_OA)}
    v_add_u32 {v(V_OA + 4)}, 0x80000, {v(V_OA)}
    s_mul_i32 {s(S_WO)}, {s(S_W)}, {1024 * 1280}
    s_lshl_b32 s4, {s(S_CT)}, 7
    s_add_u32 {s(S_WO)}, {s(S_WO)}, s4
    s_lshl_b32 {s(S_OK)}, {s(S_W)}, 15
    s_lshl_b32 {s(S_M0B)}, {s(S_W)}, 15
    s_waitcnt lgkmcnt(0)
    s_mul_i32 s4, {s(S_BB)}, 15
    s_mul_i32 s5, {s(S_RT)}, 5
    s_add_u32 s4, s4, s5
    s_lshl_b32 s5, s4, 17
    s_add_u32 {s(SRD_OO)}, s44, s5
    s_addc_u32 {s(SRD_OO + 1)}, s45, 0
    s_mov_b32 {s(SRD_OO + 2)}, {5 * 131072}
    s_mov_b32 {s(SRD_OO + 3)}, 0x20000
    s_mov_b32 {s(SRD_W)}, s36
    s_mov_b32 {s(SRD_W + 1)}, s37
    s_mov_b32 {s(SRD_W + 2)}, {4096 * 1280}
    s_mov_b32 {s(SRD_W + 3)}, 0x20000
    s_mul_i32 s5, s4, {16 * 1280}
    s_add_u32 {s(SRD_OUT)}, s38, s5
    s_addc_u32 {s(SRD_OUT + 1)}, s39, 0
    s_mov_b32 {s(SRD_OUT + 2)}, {80 * 1280}
    s_mov_b32 {s(SRD_OUT + 3)}, 0x20000
    """)

    def loads(ks):
        out = [f"s_add_u32 m0, {s(S_M0B)}, {(ks % 8) * 4096}"]
        for mt in range(5):
            out.append(f"buffer_load_dwordx4 {v(V_B + 20 * (ks % 8) + 4 * mt, 4)}, {v(V_OA + mt)}, {s(SRD_OO, 4)}, {s(S_OK)} offen offset:{(ks % 4) * 1024}")
        for n in range(4):
            out.append(f"buffer_load_dwordx4 {v(V_WD + n)}, {s(SRD_W, 4)}, {s(S_WO)} offen offset:{1024 * n} lds")
        out.append(f"s_add_u32 {s(S_WO)}, {s(S_WO)}, {32 * 1280}")
        if ks % 4 == 3:
            out.append(f"s_add_u32 {s(S_OK)}, {s(S_OK)}, 4096")
        return out

    for ks in range(PF):
        b.extend(loads(ks))
    b(f"""
    v_lshrrev_b32 v1, 4, v0
    v_bfe_u32 v2, v0, 2, 2
    v_and_b32 v3, 3, v0
    v_lshl_add_u32 v4, v1, 3, v2
    v_lshlrev_b32 v4, 7, v4
    v_lshl_add_u32 v4, v3, 3, v4
    v_lshrrev_b32 v5, 1, v2
    v_and_b32 v6, 1, v1
    v_lshl_add_u32 v5, v6, 1, v5
    v_lshl_add_u32 v4, v5, 5, v4
    v_add_u32 {v(V_AA)}, {s(S_M0B)}, v4
    v_xor_b32 {v(V_AA + 1)}, 32, {v(V_AA)}
    v_xor_b32 {v(V_AA + 2)}, 64, {v(V_AA)}
    v_xor_b32 {v(V_AA + 3)}, 0x60, {v(V_AA)}
    ; out voffset: (l%16)*1280 + (l/16)*8
    v_and_b32 v2, 15, v0
    v_mul_u32_u24 v2, 1280, v2
    v_lshl_add_u32 {v(V_OUT)}, v1, 3, v2
    v_lshlrev_b32 {v(V_RED)}, 4, v0
    """)

    def areads(ks):
        return [f"ds_read_b64_tr_b16 {a(A_A + 16 * (ks % 2) + 4 * nt + 2 * j, 2)}, {v(V_AA + nt)} offset:{(ks % 8) * 4096 + 512 * j}"
                for nt in range(4) for j in range(2)]

    def mfmas(ks):
        out = []
        for nt in range(4):
            for mt in range(5):
                d = a(V_ACC + 4 * (5 * nt + mt), 4)
                c = "0" if ks == 0 else d
                out.append(f"{MF16} {d}, {a(A_A + 16 * (ks % 2) + 4 * nt, 4)}, {v(V_B + 20 * (ks % 8) + 4 * mt, 4)}, {c}")
        return out

    for ks in range(33):
        gaps = [[] for _ in range(20)]
        if ks < 32:
            n_after = 9 * (min(ks + PF, 32) - ks - 1)
            b(f"s_waitcnt vmcnt({n_after})")
            for i, r in enumerate(areads(ks)):
                gaps[i].append(r)
            if ks + PF < 32:
                gi = 8
                for d in loads(ks + PF):
                    gaps[min(gi, 19)].append(d)
                    gi += 1
        if ks == 0:
            for g in gaps:
                b.extend(g)
        else:
            b.extend(interleave(mfmas(ks - 1), gaps))
        if ks < 32:
            b("s_waitcnt lgkmcnt(0)")
    b(f"""
    s_barrier
    s_mul_i32 {s(S_X0)}, {s(S_W)}, 20480
    v_add_u32 v1, {s(S_X0)}, {v(V_RED)}
    s_mul_i32 {s(S_X0)}, {s(S_W)}, 5120
    v_add_u32 v2, {s(S_X0)}, {v(V_RED)}
    v_add_u32 v3, 40960, v2
    s_nop 7
    """)
    for tl in range(20):
        b(f"ds_write_b128 v1, {a(V_ACC + 4 * tl, 4)} offset:{tl * 1024}")
    b("s_waitcnt lgkmcnt(0)")
    b("s_barrier")
    for mt in range(5):
        for w in range(4):
            b(f"ds_read_b128 {v(V_B + 16 * mt + 4 * w, 4)}, v{2 + w // 2} offset:{(w % 2) * 20480 + mt * 1024}")
        if mt % 2 == 1:
            b("s_waitcnt lgkmcnt(0)")
    b(f"""
    s_lshl_b32 {s(S_X0)}, {s(S_CT)}, 7
    s_lshl_b32 {s(S_X1)}, {s(S_W)}, 5
    s_add_u32 {s(S_X0)}, {s(S_X0)}, {s(S_X1)}
    s_waitcnt lgkmcnt(0)
    """)
    for mt in range(5):
        r = V_B + 16 * mt
        for i in range(4):
            b(f"v_add_f32 {v(r + i)}, {v(r + i)}, {v(r + 4 + i)}")
            b(f"v_add_f32 {v(r + 8 + i)}, {v(r + 8 + i)}, {v(r + 12 + i)}")
        for i in range(4):
            b(f"v_add_f32 {v(r + i)}, {v(r + i)}, {v(r + 8 + i)}")
        b(f"v_cvt_pk_bf16_f32 {v(r + 4)}, {v(r)}, {v(r + 1)}")
        b(f"v_cvt_pk_bf16_f32 {v(r + 5)}, {v(r + 2)}, {v(r + 3)}")
        b(f"buffer_store_dwordx2 {v(r + 4, 2)}, {v(V_OUT)}, {s(SRD_OUT, 4)}, {s(S_X0)} offen")
        b(f"s_add_u32 {s(S_X0)}, {s(S_X0)}, {16 * 1280}")
    b("L2_end:")
    b("s_endpgm")
    check_trace(b.instrs(), "k2")
    return b


HEADER = """; Fused MHA block: q = x@wq, softmax(q k^T / sqrt(128)) v, out = o@wo   (gfx950, generated by gen/gen.py)
; @launch kernel=attn_kernel grid=(256,1,1) block=(256,1,1) lds=163840
; @launch kernel=oproj_kernel grid=(240,1,1) block=(256,1,1) lds=131072
.amdgcn_target "amdgcn-amd-amdhsa--gfx950"
.text
"""


def kd(name, vg, acc):
    return f""".p2align 6
.amdhsa_kernel {name}
  .amdhsa_next_free_vgpr {vg}
  .amdhsa_next_free_sgpr 96
  .amdhsa_accum_offset {acc}
  .amdhsa_group_segment_fixed_size 0
  .amdhsa_kernarg_size 64
  .amdhsa_user_sgpr_count 2
  .amdhsa_user_sgpr_kernarg_segment_ptr 1
  .amdhsa_system_sgpr_workgroup_id_x 1
.end_amdhsa_kernel
"""


def main():
    k1 = kernel1()
    k2 = kernel2()
    txt = HEADER
    txt += ".globl attn_kernel\n.p2align 8\n.type attn_kernel,@function\n" + k1.text()
    txt += ".globl oproj_kernel\n.p2align 8\n.type oproj_kernel,@function\n" + k2.text()
    txt += '.section .rodata,"a"\n' + kd("attn_kernel", 512, 256) + kd("oproj_kernel", 384, 256)
    open(sys.argv[1], "w").write(txt)


main()
```

```python
import math
import struct
import sys
from asmlib import *

OPT = dict(stamp=0, nt=1, nocompute=0, nodma=0, nolds=0, touch=0, osc1=1, wotouch=1, kvlate=0, kvrot=1)
for arg in sys.argv[2:]:
    k, val = arg.split("=")
    assert k in OPT, k
    OPT[k] = int(val)


def f32(x):
    return "0x%08x" % struct.unpack("<I", struct.pack("<f", x))[0]


SCALE = math.log2(math.e) / math.sqrt(128.0)
MF = "v_mfma_f32_16x16x32_bf16"
KVPOL = " nt" if OPT["nt"] else ""

S_WAVE = 3
SRD_X, SRD_WQ, SRD_K, SRD_V, SRD_O = 8, 12, 16, 20, 24
S_B, S_H = 6, 7
S_X0, S_X1, S_WQO = 28, 29, 30
S_XM0, S_WM0 = 31, 32
S_W4096 = 49
S_KV = 50
S_CNT = 51
S_T0, S_T1, S_T2 = 52, 53, 54
S_SCALE = 56
S_STAMP = 60
SRD_WO, SRD_OO, SRD_OUT, SRD_DBG = 64, 68, 72, 80
S_WOO, S_OK, S_CT, S_IDX, S_W8192 = 33, 34, 35, 46, 47
S_ROT = 55
S_WS = 90

V_KA = 16
V_VA = 20
V_KD = 28
V_VD = 32
V_XD = 34
V_WD = 38
V_WA = 40
V_XA = 44
V_OD = 46
V_DUM = 47
V_Q = 48
V_S = 112
V_P = 144
V_NM = 160
V_LM = 176
V_L = 184
V_ONE = 188
V_M = 192
V_T = 196
V_QACC = 112
V_ST = 240
V_WDD = 244

A_O = 0
A_K = 128
A_V = 192
A_QA = 128
A_QB = 192

LDS_X0 = 32768
LDS_WQ = 131072
LDS_V = 65536


def kslot(T):
    return (T % 4) * 16384


def vslot(T):
    return ((T + 2) % 4) * 16384


nstamp = [0]


def stamp(b, lane=None):
    if not OPT["stamp"]:
        return
    if lane is None:
        lane = nstamp[0]
        nstamp[0] += 1
    b(f"s_memrealtime {s(S_STAMP, 2)}")
    b(f"s_memtime {s(S_STAMP + 2, 2)}")
    b("s_waitcnt lgkmcnt(0)")
    b(f"v_writelane_b32 {v(V_ST)}, {s(S_STAMP)}, {lane}")
    b(f"v_writelane_b32 {v(V_ST + 1)}, {s(S_STAMP + 2)}, {lane}")


def stamp_store(b, wave_reg, endlabel, lane0, nlanes):
    b(f"""
    s_cmp_lg_u32 {wave_reg}, 0
    s_cbranch_scc1 {endlabel}
    s_add_u32 s76, s90, 0x4000000
    s_addc_u32 s77, s91, 0
    s_mov_b32 s78, 0x100000
    s_mov_b32 s79, 0x20000
    s_lshl_b32 s4, s2, 9
    v_mbcnt_lo_u32_b32 v1, -1, 0
    v_mbcnt_hi_u32_b32 v1, -1, v1
    v_lshlrev_b32 v1, 3, v1
    buffer_store_dwordx2 {v(V_ST, 2)}, v1, s[76:79], s4 offen
    """)


def k_dma(n, soff):
    return f"buffer_load_dwordx4 {v(V_KD + n)}, {s(SRD_K, 4)}, {soff} offen offset:{1024 * n}{KVPOL} lds"


def v_dma(n, soff):
    return f"buffer_load_dwordx4 {v(V_VD + n % 2)}, {s(SRD_V, 4)}, {soff} offen offset:{1024 * n}{KVPOL} lds"


def k_read(t, kt, st, T, u):
    return (f"ds_read_b128 {a(A_K + 32 * (t % 2) + 16 * kt + 4 * st, 4)}, {v(V_KA + st)} "
            f"offset:{kslot(T) + 8192 * u + 4096 * kt}")


def v_read(t, dt, kt, T, u):
    return (f"ds_read_b64_tr_b16 {a(A_V + 32 * (t % 2) + 4 * dt + 2 * kt, 2)}, {v(V_VA + dt)} "
            f"offset:{vslot(T) + 8192 * u + 4096 * kt}")


def qk(qt, kt, st, t, c0):
    d = v(V_S + 8 * qt + 4 * kt, 4)
    c = c0 if st == 0 else d
    return f"{MF} {d}, {a(A_K + 32 * (t % 2) + 16 * kt + 4 * st, 4)}, {v(V_Q + 16 * qt + 4 * st, 4)}, {c}"


def qk_pair(pair, t, zero=False):
    return [qk(qt, kt, st, t, "0" if zero else v(V_NM + 4 * qt, 4))
            for qt in (2 * pair, 2 * pair + 1) for kt in range(2) for st in range(4)]


def pv(qt, dt, t):
    d = a(A_O + 32 * qt + 4 * dt, 4)
    return f"{MF} {d}, {a(A_V + 32 * (t % 2) + 4 * dt, 4)}, {v(V_P + 4 * qt, 4)}, {d}"


def pv_pair(pair, t):
    out = [pv(qt, dt, t) for qt in (2 * pair, 2 * pair + 1) for dt in range(8)]
    d = v(V_LM + 4 * pair, 4)
    out.append(f"{MF} {d}, {v(V_ONE, 4)}, {v(V_P + 4 * (2 * pair + 1), 4)}, {d}")
    return out


def sm_exp(pair, e):
    r = v(V_S + 16 * pair + e)
    return f"v_exp_f32 {r}, {r}"


def sm_add(pair, e):
    l = v(V_L + 2 * pair + e // 8)
    return f"v_add_f32 {l}, {l}, {v(V_S + 16 * pair + e)}"


def sm_cvt(pair, e):
    return f"v_cvt_pk_bf16_f32 {v(V_P + 8 * pair + e // 2)}, {v(V_S + 16 * pair + e - 1)}, {v(V_S + 16 * pair + e)}"


NG = 66
E0 = [12 + 2 * e for e in range(16)]
E1 = [45 + 2 * e for e in range(11)] + [NG + 1 + 2 * e for e in range(5)]
V_GAPS = [0, 2, 4, 6, 8, 10, 11, 13, 15, 17, 19, 21, 23, 25, 27, 29]
K_GAPS = [37, 39, 41, 43, 44, 46, 48, 50]
D_GAPS = [52, 56, 60, 62]
AA_GAPS = [31, 33, 35, 54, 58, 64]
G_WAIT, G_BAR, G_M0, G_KWAIT = 34, 35, 51, 65


def plan_valu():
    cap = {g: 1 for g in V_GAPS + K_GAPS}
    cap.update({g: 2 for g in AA_GAPS})
    placed = {}
    ready = []
    per = 4
    events = {}
    for p in range(per + 1):
        for pair, E in ((0, E0), (1, E1)):
            for e, g in enumerate(E):
                ops = []
                if e % 2 == 1:
                    ops.append((0, "c", pair, e, p))
                if e < 8:
                    ops.append((1, "a", pair, e, p))
                events.setdefault(p * NG + g + 1, []).extend(ops)
    for G in range((per + 1) * NG):
        ready += events.get(G, [])
        ready.sort(key=lambda x: (x[0], x[4], x[2], x[3]))
        n = cap.get(G % NG, 0)
        take, ready = ready[:n], ready[n:]
        for _, kind, pair, e, p in take:
            placed.setdefault(G, []).append((pair, kind, e, p))
    res = {}
    for g in range(NG):
        res[g] = [(pair, kind, e, (per - 1) - p) for pair, kind, e, p in placed.get((per - 1) * NG + g, [])]
        chk = [(pair, kind, e, (per - 2) - p) for pair, kind, e, p in placed.get((per - 2) * NG + g, [])]
        assert res[g] == chk, "valu plan not periodic"
    assert sum(len(x) for x in res.values()) == 32
    return res


VPLAN = plan_valu()


def vop(pair, kind, e):
    return sm_cvt(pair, e) if kind == "c" else sm_add(pair, e)


CELLS = [(S_W8192, LDS_WQ), (S_W4096, 0), (S_W8192, LDS_WQ + 4096), (S_W4096, LDS_V + 2 * 16384), (S_W4096, 16384),
         (S_W4096, LDS_V + 3 * 16384), (S_W4096, 2 * 16384), (S_W4096, LDS_V), (S_W4096, LDS_V + 16384), (S_W4096, 3 * 16384)]


def cell_m0(c):
    return f"s_add_u32 m0, {s(CELLS[c][0])}, {CELLS[c][1]}"


def wo_dma(n):
    return f"buffer_load_dwordx4 {v(V_WDD + n)}, {s(SRD_WO, 4)}, {s(S_WOO)} offen offset:{1024 * n} lds"


WO_INC = f"s_add_u32 {s(S_WOO)}, {s(S_WOO)}, {32 * 1280}"


def subtile(t, last=False):
    T, u = t // 2, t % 2
    mf = qk_pair(0, t) + pv_pair(1, t - 1) + qk_pair(1, t) + pv_pair(0, t)
    gaps = [[] for _ in range(NG)]
    vr = [v_read(t, dt, kt, T, u) for dt in range(8) for kt in range(2)]
    for r, g in zip(vr, V_GAPS):
        gaps[g].append(r)
    Tn, un = (t + 1) // 2, (t + 1) % 2
    if not (last and t == 7):
        kr = [k_read(t + 1, kt, st, Tn, un) for kt in range(2) for st in range(4)]
        for r, g in zip(kr, K_GAPS):
            gaps[g].append(r)
        gaps[G_KWAIT].append("s_waitcnt lgkmcnt(0)")
    ntouch = 1 if OPT["wotouch"] else 0
    if u == 1:
        n = 16
        if last:
            n = {1: 20 + ntouch, 3: 24 + ntouch, 5: 20, 7: 63}[t]
        gaps[G_WAIT].append(f"s_waitcnt vmcnt({n}) lgkmcnt(0)")
        gaps[G_BAR].append("s_barrier")
    else:
        gaps[G_WAIT].append("s_waitcnt lgkmcnt(0)")

    def wo_group(c, g_m0, gs, g_inc):
        gaps[g_m0].append(cell_m0(c))
        for n, g in enumerate(gs):
            gaps[g].append(wo_dma(n))
        gaps[g_inc].append(WO_INC)

    if last and t in (0, 2):
        wo_group(t, 1, [3, 5, 7, 9], 12)
    if last and t == 0 and OPT["wotouch"]:
        gaps[14].append(f"buffer_load_dword v242, v15, {s(SRD_WO, 4)}, {s(S_T2)} offen")
    if last and t == 7:
        wo_group(8, 36, [37, 39, 41, 43], 45)
    if last and t > 0:
        wo_group({1: 1, 2: 3, 3: 4, 4: 5, 5: 6, 6: 7, 7: 9}[t], G_M0, D_GAPS, 63)
    elif u == 1:
        Td = (t + 1) // 2 + 3
        gaps[G_M0].append(f"s_add_u32 m0, {s(S_W4096)}, {kslot(Td)}")
        for n, g in enumerate(D_GAPS):
            gaps[g].append(k_dma(n, s(S_KV)))
    else:
        Td = T + 3
        gaps[G_M0].append(f"s_add_u32 m0, {s(S_W4096)}, {LDS_V + vslot(Td)}")
        for n, g in enumerate(D_GAPS):
            gaps[g].append(v_dma(n, s(S_KV)))
        gaps[63].append(f"s_add_u32 {s(S_KV)}, {s(S_KV)}, 16384")
        gaps[64].append(f"s_and_b32 {s(S_KV)}, {s(S_KV)}, 0x7ffff")
    if t == 7 and not last:
        gaps[61].append(f"s_sub_u32 {s(S_CNT)}, {s(S_CNT)}, 1")
        gaps[63].append(f"s_cmp_lg_u32 {s(S_CNT)}, 0")
    for pair, E in ((0, E0), (1, E1)):
        for e, g in enumerate(E):
            gaps[g % NG].append(sm_exp(pair, e))
    for g in range(NG):
        for pair, kind, e, _ in VPLAN[g]:
            gaps[g].append(vop(pair, kind, e))
    if OPT["nocompute"]:
        out = []
        for g in gaps:
            for x in g:
                if x.startswith(("s_", "buffer")):
                    out.append(x)
                    if " m0," in x:
                        out.append("s_nop 0")
        return out
    drop = []
    if OPT["nodma"]:
        drop += ["buffer"]
    if OPT["nolds"]:
        drop += ["ds_"]
    if drop:
        gaps = [[x for x in g if not x.startswith(tuple(drop))] for g in gaps]
    return interleave(mf, gaps)


def qproj_phase():
    b = Block()
    issued = []

    def wq_dma(j):
        out = [f"s_add_u32 m0, {s(S_WM0)}, {(j % 4) * 8192}"]
        for n in range(2):
            out.append(f"buffer_load_dwordx4 {v(V_WD + n)}, {s(SRD_WQ, 4)}, {s(S_WQO)} offen offset:{1024 * n} lds")
            issued.append(("wq", j))
        out.append(f"s_add_u32 {s(S_WQO)}, {s(S_WQO)}, {32 * 8192}")
        return out

    def x_dma(st):
        out = []
        for g in range(2):
            out.append(f"s_add_u32 m0, {s(S_XM0)}, {(st % 2) * 32768 + 4096 * g}")
            for n in range(4):
                out.append(f"buffer_load_dwordx4 {v(V_XD + n)}, {s(SRD_X, 4)}, {s(S_X0 + g)} offen offset:{1024 * n} lds")
                issued.append(("x", st))
            out.append(f"s_add_u32 {s(S_X0 + g)}, {s(S_X0 + g)}, 128")
        return out

    def own_quarter(T, isv):
        out = [f"s_add_u32 m0, {s(S_W4096)}, {LDS_V + vslot(T) if isv else kslot(T)}",
               f"s_add_u32 {s(S_T0)}, {s(S_ROT)}, {T * 16384}",
               f"s_and_b32 {s(S_T0)}, {s(S_T0)}, 0x7ffff"]
        for n in range(4):
            out.append((v_dma if isv else k_dma)(n, s(S_T0)))
            issued.append(("kv", T))
        return out

    def wait_for(*tags):
        last = max(i for i, x in enumerate(issued) if x in tags)
        return min(63, len(issued) - 1 - last)

    def flat(lst):
        out = []
        for x in lst:
            out.append(x)
            if " m0," in x:
                out.append("s_nop 0")
        return out

    first = Block()
    first.extend(flat(wq_dma(0) + x_dma(0) + wq_dma(1) + wq_dma(2) + x_dma(1)))
    touch = Block()
    if OPT["touch"]:
        touch(f"""
        s_and_b32 {s(S_T0)}, {s(S_H)}, 7
        s_mul_i32 {s(S_T0)}, {s(S_T0)}, 38400
        s_and_b32 {s(S_T1)}, {s(S_B)}, 3
        s_mul_i32 {s(S_T1)}, {s(S_T1)}, {160 * 8192}
        v_lshlrev_b32 v8, 7, v15
        v_lshrrev_b32 v9, 1, v15
        v_lshlrev_b32 v9, 13, v9
        v_and_b32 v10, 1, v15
        v_lshl_add_u32 v9, v10, 7, v9
        buffer_load_dword v242, v8, {s(SRD_X, 4)}, {s(S_T0)} offen
        buffer_load_dword v243, v9, {s(SRD_WQ, 4)}, {s(S_T1)} offen
        s_add_u32 {s(S_T0)}, {s(S_T0)}, 32768
        s_add_u32 {s(S_T1)}, {s(S_T1)}, {128 * 8192}
        s_mov_b64 exec, 0xffff
        buffer_load_dword v244, v14, {s(SRD_X, 4)}, {s(S_T0)} offen
        buffer_load_dword v245, v13, {s(SRD_WQ, 4)}, {s(S_T1)} offen
        s_mov_b64 exec, -1
        """)
        issued.extend([("touch", 0)] * 4)
    kv0 = Block()
    for T in range(2):
        for isv in range(2):
            kv0.extend(own_quarter(T, isv))

    def a_reads(j):
        base = A_QA + 32 * (j % 2)
        return [f"ds_read_b64_tr_b16 {a(base + 4 * (2 * st + e) + 2 * jj, 2)}, {v(V_WA + st)} offset:{(j % 4) * 8192 + 1024 * jj + 8 * e}"
                for st in range(4) for e in range(2) for jj in range(2)]

    def b_reads(stg):
        base = A_QB + 32 * (stg % 2)
        return [f"ds_read_b128 {a(base + 16 * ks + 4 * qt, 4)}, {v(V_XA + ks)} offset:{(stg % 2) * 32768 + 2048 * qt}"
                for ks in range(2) for qt in range(4)]

    def mfmas(j):
        ab = A_QA + 32 * (j % 2)
        bb = A_QB + 32 * ((j // 2) % 2) + 16 * (j % 2)
        out = []
        for qt in range(4):
            for dtile in range(8):
                d = v(V_QACC + 4 * (8 * qt + dtile), 4)
                c = "0" if j == 0 else d
                out.append(f"{MF} {d}, {a(ab + 4 * dtile, 4)}, {a(bb + 4 * qt, 4)}, {c}")
        return out

    zero = [f"v_accvgpr_write_b32 {a(A_O + i)}, 0" for i in range(128)]
    for j in range(21):
        gaps = [[] for _ in range(32)]
        if j < 20:
            tags = [("wq", j)] + ([("x", j // 2)] if j % 2 == 0 else [])
            b(f"s_waitcnt vmcnt({wait_for(*tags)})")
            b("s_barrier")
            if j == 1:
                stamp(b)
            if OPT["stamp"] > 2:
                stamp(b, 32 + j)
            rd = (b_reads(j // 2) if j % 2 == 0 else []) + a_reads(j)
            dm = []
            if j + 3 < 20:
                dm += wq_dma(j + 3)
            if j % 2 == 1 and j // 2 + 2 < 10:
                dm += x_dma(j // 2 + 2)
            if j == 17:
                dm += own_quarter(2, 0)
            if j == 19:
                dm += own_quarter(2, 1) + own_quarter(3, 0)
            gi = 0
            for d in dm:
                if d.startswith("buffer"):
                    if gaps[gi] and " m0," in gaps[gi][-1]:
                        gi += 1
                    gaps[gi].append(d)
                    gi += 1
                else:
                    gaps[gi].append(d)
            for r in rd:
                gaps[min(gi, 31)].append(r)
                if zero and j > 0:
                    gaps[min(gi, 31)].append(zero.pop(0))
                gi += 1
        if j == 0:
            for g in gaps:
                b.extend(flat(g))
        else:
            b.extend(interleave(mfmas(j - 1), gaps))
        if j < 20:
            b("s_waitcnt lgkmcnt(0)")
    assert not zero
    b(f"s_waitcnt vmcnt({wait_for(('kv', 0))})")
    return first, touch, kv0, b


def kernel1():
    b = Block()
    b(KNAME + ":")
    b(f"""
    s_load_dwordx4 s[36:39], s[0:1], 0
    s_load_dwordx4 s[40:43], s[0:1], 16
    s_load_dwordx4 s[84:87], s[0:1], 32
    s_load_dwordx4 s[88:91], s[0:1], 48
    s_cmp_ge_u32 s2, 256
    s_cbranch_scc1 L1_end
    v_mov_b32 v15, v0
    v_lshrrev_b32 v1, 6, v0
    v_and_b32 v0, 63, v0
    v_readfirstlane_b32 {s(S_WAVE)}, v1
    s_and_b32 s4, s2, 7
    s_lshr_b32 s5, s2, 3
    s_and_b32 {s(S_B)}, s4, 1
    s_lshl_b32 {s(S_B)}, {s(S_B)}, 2
    s_and_b32 {s(S_H)}, s5, 3
    s_add_u32 {s(S_B)}, {s(S_B)}, {s(S_H)}
    s_lshr_b32 {s(S_H)}, s4, 1
    s_lshl_b32 {s(S_H)}, {s(S_H)}, 3
    s_lshr_b32 s5, s5, 2
    s_add_u32 {s(S_H)}, {s(S_H)}, s5
    s_lshl_b32 {s(S_W4096)}, {s(S_WAVE)}, 12
    s_mul_i32 {s(S_ROT)}, s2, {OPT["kvrot"] * 16384}
    s_and_b32 {s(S_ROT)}, {s(S_ROT)}, 0x7ffff
    s_add_u32 {s(S_ROT)}, {s(S_ROT)}, {s(S_W4096)}
    """)
    b(f"""
    v_lshrrev_b32 v1, 4, v0
    v_and_b32 v2, 15, v0
    v_lshrrev_b32 v3, 3, v0
    v_and_b32 v4, 3, v0
    v_and_b32 v5, 7, v0
    v_bfe_u32 v7, v0, 2, 2
    ; wq DMA voffsets: (4n + G)*8192 + ((l%16) ^ (G<<2))*16 - 1024n
    v_lshlrev_b32 v9, 2, v1
    v_xor_b32 v9, v2, v9
    v_lshlrev_b32 v9, 4, v9
    v_lshl_add_u32 {v(V_WD)}, v1, 13, v9
    v_add_u32 {v(V_WD + 1)}, {4 * 8192 - 1024}, {v(V_WD)}
    ; x DMA voffsets: (8n + l/8)*1280 + ((l%8) ^ (4(n&1) + G))*16 - 1024n
    v_xor_b32 v8, v5, v1
    v_lshlrev_b32 v8, 4, v8
    v_mul_u32_u24 v10, 1280, v3
    v_add_u32 {v(V_XD)}, v10, v8
    v_xor_b32 v8, 64, v8
    v_add_u32 v10, v10, v8
    v_add_u32 {v(V_XD + 1)}, {8 * 1280 - 1024}, v10
    v_add_u32 {v(V_XD + 2)}, {2 * (8 * 1280 - 1024)}, {v(V_XD)}
    v_add_u32 {v(V_XD + 3)}, {3 * (8 * 1280 - 1024)}, v10
    s_mul_i32 {s(S_X0)}, {s(S_WAVE)}, {64 * 1280}
    s_add_u32 {s(S_X1)}, {s(S_X0)}, {32 * 1280}
    s_lshl_b32 {s(S_WQO)}, {s(S_WAVE)}, 16
    s_lshl_b32 {s(S_XM0)}, {s(S_WAVE)}, 13
    s_add_u32 {s(S_XM0)}, {s(S_XM0)}, {LDS_X0}
    s_lshl_b32 {s(S_WM0)}, {s(S_WAVE)}, 11
    s_add_u32 {s(S_WM0)}, {s(S_WM0)}, {LDS_WQ}
    s_mul_i32 {s(S_T0)}, {s(S_B)}, 307200
    s_lshl_b32 {s(S_T1)}, {s(S_H)}, 8
    s_mov_b32 {s(SRD_X + 2)}, 307200
    s_mov_b32 {s(SRD_X + 3)}, 0x20000
    s_sub_u32 {s(SRD_WQ + 2)}, {640 * 8192}, {s(S_T1)}
    s_mov_b32 {s(SRD_WQ + 3)}, 0x20000
    s_waitcnt lgkmcnt(0)
    s_add_u32 {s(SRD_X)}, s36, {s(S_T0)}
    s_addc_u32 {s(SRD_X + 1)}, s37, 0
    s_add_u32 {s(SRD_WQ)}, s42, {s(S_T1)}
    s_addc_u32 {s(SRD_WQ + 1)}, s43, 0
    """)
    stamp(b)
    first, touch, kv0, qp = qproj_phase()
    b.extend(first)
    b(f"""
    ; second-round touch offsets (16 lanes per wave): x: (w*16 + l)*128 ; wq rows (w*8 + l/2), half l%2
    v_lshlrev_b32 v14, 7, v0
    s_lshl_b32 {s(S_T0)}, {s(S_WAVE)}, 11
    v_add_u32 v14, {s(S_T0)}, v14
    v_lshrrev_b32 v13, 1, v0
    v_lshlrev_b32 v13, 13, v13
    v_and_b32 v12, 1, v0
    v_lshl_add_u32 v13, v12, 7, v13
    s_lshl_b32 {s(S_T0)}, {s(S_WAVE)}, 16
    v_add_u32 v13, {s(S_T0)}, v13
    """)
    b.extend(touch)
    b(f"""
    s_lshl_b32 {s(S_T0)}, {s(S_B)}, 5
    s_add_u32 {s(S_T0)}, {s(S_T0)}, {s(S_H)}
    s_lshl_b32 {s(S_T0)}, {s(S_T0)}, 19
    s_add_u32 {s(SRD_K)}, s38, {s(S_T0)}
    s_addc_u32 {s(SRD_K + 1)}, s39, 0
    s_mov_b32 {s(SRD_K + 2)}, 524288
    s_mov_b32 {s(SRD_K + 3)}, 0x20000
    s_add_u32 {s(SRD_V)}, s40, {s(S_T0)}
    s_addc_u32 {s(SRD_V + 1)}, s41, 0
    s_mov_b32 {s(SRD_V + 2)}, 524288
    s_mov_b32 {s(SRD_V + 3)}, 0x20000
    ; K DMA voffsets: G*256 + ((l%16) ^ (4n + G))*16 ; V: G*256 + ((l%16) ^ ((4(n&1) + G)<<1))*16
    v_xor_b32 v8, v2, v1
    v_lshlrev_b32 v8, 4, v8
    v_lshl_add_u32 {v(V_KD)}, v1, 8, v8
    v_xor_b32 {v(V_KD + 1)}, 64, {v(V_KD)}
    v_xor_b32 {v(V_KD + 2)}, 0x80, {v(V_KD)}
    v_xor_b32 {v(V_KD + 3)}, 0xc0, {v(V_KD)}
    v_lshlrev_b32 v9, 1, v1
    v_xor_b32 v9, v2, v9
    v_lshlrev_b32 v9, 4, v9
    v_lshl_add_u32 {v(V_VD)}, v1, 8, v9
    v_xor_b32 {v(V_VD + 1)}, 0x80, {v(V_VD)}
    """)
    b.extend(kv0)
    b(f"""
    s_mul_i32 {s(S_T0)}, {s(S_B)}, {15 * 131072}
    s_add_u32 {s(SRD_O)}, s90, {s(S_T0)}
    s_addc_u32 {s(SRD_O + 1)}, s91, 0
    s_mov_b32 {s(SRD_O + 2)}, {15 * 131072}
    s_mov_b32 {s(SRD_O + 3)}, 0x20000
    ; K read: (l%16)*256 + ((G ^ (l%16))*16) ^ (s*64)
    v_lshl_add_u32 {v(V_KA)}, v2, 8, v8
    v_xor_b32 {v(V_KA + 1)}, 64, {v(V_KA)}
    v_xor_b32 {v(V_KA + 2)}, 0x80, {v(V_KA)}
    v_xor_b32 {v(V_KA + 3)}, 0xc0, {v(V_KA)}
    v_lshl_add_u32 v8, v1, 2, v7
    v_and_b32 v9, 7, v8
    v_lshlrev_b32 v8, 8, v8
    v_lshl_add_u32 v8, v9, 5, v8
    v_lshl_add_u32 v8, v4, 3, v8
    v_add_u32 {v(V_VA)}, {LDS_V}, v8
    """)
    for dt in range(1, 8):
        b(f"v_xor_b32 {v(V_VA + dt)}, {32 * dt}, {v(V_VA)}")
    b(f"""
    v_lshl_add_u32 v8, v1, 3, v7
    v_lshlrev_b32 v8, 8, v8
    v_lshl_add_u32 v8, v7, 6, v8
    v_lshl_add_u32 v8, v4, 4, v8
    v_add_u32 {v(V_WA)}, {LDS_WQ}, v8
    v_xor_b32 {v(V_WA + 1)}, 64, {v(V_WA)}
    v_xor_b32 {v(V_WA + 2)}, 0x80, {v(V_WA)}
    v_xor_b32 {v(V_WA + 3)}, 0xc0, {v(V_WA)}
    ; x read: LDS_X0 + w*8192 + (l%16)*128 + ((G ^ ((l%16)>>1))*16) ^ (ks*64)
    v_lshrrev_b32 v8, 1, v2
    v_xor_b32 v8, v1, v8
    v_lshlrev_b32 v8, 4, v8
    v_lshl_add_u32 v8, v2, 7, v8
    v_add_u32 {v(V_XA)}, {s(S_XM0)}, v8
    v_xor_b32 {v(V_XA + 1)}, 64, {v(V_XA)}
    v_lshlrev_b32 {v(V_OD)}, 4, v0
    s_mov_b32 {s(S_SCALE)}, {f32(SCALE)}
    s_mov_b32 {s(S_SCALE + 1)}, {f32(SCALE)}
    s_add_u32 {s(S_KV)}, {s(S_ROT)}, {3 * 16384}
    s_and_b32 {s(S_KV)}, {s(S_KV)}, 0x7ffff
    ; ---- O-projection tile of this workgroup: batch s2%8, row tile idx/10, column tile idx%10
    s_lshr_b32 {s(S_IDX)}, s2, 3
    s_mul_i32 {s(S_T1)}, {s(S_IDX)}, 26
    s_lshr_b32 {s(S_T1)}, {s(S_T1)}, 8
    s_mul_i32 {s(S_T0)}, {s(S_T1)}, 10
    s_sub_u32 {s(S_CT)}, {s(S_IDX)}, {s(S_T0)}
    s_and_b32 {s(S_T0)}, s2, 7
    s_mul_i32 {s(S_T0)}, {s(S_T0)}, 15
    s_min_u32 {s(S_T1)}, {s(S_T1)}, 2
    s_mul_i32 {s(S_T1)}, {s(S_T1)}, 5
    s_add_u32 {s(S_T0)}, {s(S_T0)}, {s(S_T1)}
    s_lshl_b32 {s(S_T1)}, {s(S_T0)}, 17
    s_add_u32 {s(SRD_OO)}, s90, {s(S_T1)}
    s_addc_u32 {s(SRD_OO + 1)}, s91, 0
    s_mov_b32 {s(SRD_OO + 2)}, {5 * 131072}
    s_mov_b32 {s(SRD_OO + 3)}, 0x20000
    s_mul_i32 {s(S_T1)}, {s(S_T0)}, {16 * 1280}
    s_add_u32 {s(SRD_OUT)}, s86, {s(S_T1)}
    s_addc_u32 {s(SRD_OUT + 1)}, s87, 0
    s_mov_b32 {s(SRD_OUT + 2)}, {80 * 1280}
    s_mov_b32 {s(SRD_OUT + 3)}, 0x20000
    s_mov_b32 {s(SRD_WO)}, s84
    s_mov_b32 {s(SRD_WO + 1)}, s85
    s_mov_b32 {s(SRD_WO + 2)}, {4096 * 1280}
    s_mov_b32 {s(SRD_WO + 3)}, 0x20000
    s_mov_b32 {s(SRD_DBG)}, s88
    s_mov_b32 {s(SRD_DBG + 1)}, s89
    s_mov_b32 {s(SRD_DBG + 2)}, 256
    s_mov_b32 {s(SRD_DBG + 3)}, 0x20000
    s_mul_i32 {s(S_WOO)}, {s(S_WAVE)}, {1024 * 1280}
    s_lshl_b32 {s(S_T0)}, {s(S_CT)}, 7
    s_add_u32 {s(S_WOO)}, {s(S_WOO)}, {s(S_T0)}
    s_lshl_b32 {s(S_OK)}, {s(S_WAVE)}, 15
    s_lshl_b32 {s(S_W8192)}, {s(S_WAVE)}, 13
    s_mul_i32 {s(S_T2)}, s2, 20480
    v_lshlrev_b32 v15, 7, v15
    ; wo DMA voffset n: (8n + l/8)*1280 + (((l%8) ^ (G<<1))*16) - 1024n
    v_lshlrev_b32 v8, 1, v1
    v_xor_b32 v8, v5, v8
    v_lshlrev_b32 v8, 4, v8
    v_mul_u32_u24 v9, 1280, v3
    v_add_u32 {v(V_WDD)}, v9, v8
    v_add_u32 {v(V_WDD + 1)}, {8 * 1280 - 1024}, {v(V_WDD)}
    v_add_u32 {v(V_WDD + 2)}, {2 * (8 * 1280 - 1024)}, {v(V_WDD)}
    v_add_u32 {v(V_WDD + 3)}, {3 * (8 * 1280 - 1024)}, {v(V_WDD)}
    """)
    b.extend(qp)
    pre = b

    mid = Block()
    mid("s_barrier")
    stamp(mid)
    for kt in range(2):
        for st in range(4):
            mid(k_read(0, kt, st, 0, 0))
    for qt in range(4):
        for st in range(4):
            acc = V_QACC + 4 * (8 * qt + 2 * st)
            for i in range(4):
                mid(f"v_pk_mul_f32 {v(acc + 2 * i, 2)}, {v(acc + 2 * i, 2)}, {s(S_SCALE, 2)}")
            for i in range(4):
                mid(f"v_cvt_pk_bf16_f32 {v(V_Q + 16 * qt + 4 * st + i)}, {v(acc + 2 * i)}, {v(acc + 2 * i + 1)}")
    mid("s_waitcnt lgkmcnt(0)")
    mid("s_nop 0")
    init = [f"v_accvgpr_write_b32 {a(A_V + 32 + i)}, 0" for i in range(32)]
    init += [f"v_mov_b32 {v(V_P + 8 + i)}, 0" for i in range(8)]
    init += [f"v_mov_b32 {v(V_LM + i)}, 0" for i in range(8)]
    init += [f"v_mov_b32 {v(V_L + i)}, 0" for i in range(4)]
    init += [f"v_mov_b32 {v(V_ONE + i)}, 0x3f803f80" for i in range(4)]
    mfp = qk_pair(0, 0, True) + qk_pair(1, 0, True)
    gaps = [init[2 * i:2 * i + 2] for i in range(32)]
    mid.extend(interleave(mfp, gaps))
    mid("s_nop 3")
    for qt in range(4):
        S = V_S + 8 * qt
        m = V_T + 2 * qt
        mid(f"v_max3_f32 {v(m)}, {v(S)}, {v(S + 1)}, {v(S + 2)}")
        mid(f"v_max3_f32 {v(m)}, {v(m)}, {v(S + 3)}, {v(S + 4)}")
        mid(f"v_max3_f32 {v(m)}, {v(m)}, {v(S + 5)}, {v(S + 6)}")
        mid(f"v_max_f32 {v(m)}, {v(m)}, {v(S + 7)}")
        mid(f"v_mov_b32 {v(m + 1)}, {v(m)}")
    for swap in ("v_permlane16_swap_b32", "v_permlane32_swap_b32"):
        mid("s_nop 1")
        for qt in range(4):
            m = V_T + 2 * qt
            mid(f"{swap} {v(m)}, {v(m + 1)}")
        for qt in range(4):
            m = V_T + 2 * qt
            mid(f"v_max_f32 {v(m)}, {v(m)}, {v(m + 1)}")
            if swap.startswith("v_permlane16"):
                mid(f"v_mov_b32 {v(m + 1)}, {v(m)}")
    for qt in range(4):
        for i in range(4):
            mid(f"v_sub_f32 {v(V_NM + 4 * qt + i)}, 0, {v(V_T + 2 * qt)}")
    for e in range(16):
        mid(f"v_mov_b32 {v(V_S + 16 + e)}, {'0' if E1[e] < NG else f32(-1e30)}")
    mid(f"s_mov_b32 {s(S_CNT)}, 7")
    stamp(mid)

    body = Block()
    for t in range(8):
        body.extend(subtile(t))
    if OPT["stamp"] > 1:
        body(f"s_sub_u32 {s(S_T0)}, 22, {s(S_CNT)}")
        body(f"s_mov_b32 m0, {s(S_T0)}")
        stamp(body, "m0")
        body(f"s_cmp_lg_u32 {s(S_CNT)}, 0")
    body("s_cbranch_scc1 L1_loop")

    post = Block()
    for t in range(8):
        post.extend(subtile(t, last=True))
    if OPT["stamp"] > 1:
        stamp(post, 23)
    for e in range(16):
        if E1[e] >= NG:
            post(sm_exp(1, e))
    post("s_nop 0")
    for g in range(NG):
        for pair, kind, e, wrapped in VPLAN[g]:
            if wrapped:
                post(vop(pair, kind, e))
    post("s_nop 1")
    post.extend(pv_pair(1, 7))
    stamp(post)

    def lane_sum(blk, regs):
        for swap in ("v_permlane16_swap_b32", "v_permlane32_swap_b32"):
            for i, r in enumerate(regs):
                blk(f"v_mov_b32 {v(V_T + i)}, {v(r)}")
            blk("s_nop 1")
            for i, r in enumerate(regs):
                blk(f"{swap} {v(r)}, {v(V_T + i)}")
            for i, r in enumerate(regs):
                blk(f"v_add_f32 {v(r)}, {v(r)}, {v(V_T + i)}")

    lane_sum(post, [V_L, V_L + 2])
    post(f"v_mov_b32 {v(V_L + 1)}, {v(V_LM)}")
    post(f"v_mov_b32 {v(V_L + 3)}, {v(V_LM + 4)}")
    chk = Block()
    chk(f"""
    v_add_f32 {v(V_T)}, {v(V_L)}, {v(V_L + 1)}
    v_add_f32 {v(V_T + 1)}, {v(V_L + 2)}, {v(V_L + 3)}
    v_add_f32 {v(V_T)}, {v(V_T)}, {v(V_T + 1)}
    s_mov_b32 {s(S_T0)}, {f32(2.0 ** 40)}
    v_cmp_nlt_f32 vcc, {v(V_T)}, {s(S_T0)}
    s_nop 1
    s_cbranch_vccnz L1_fallback
    """)
    epi = Block()
    epi("L1_epi:")
    for qt in range(4):
        epi(f"v_rcp_f32 {v(V_T + 2 * qt)}, {v(V_L + qt)}")
    epi("s_nop 0")
    for qt in range(4):
        epi(f"v_mov_b32 {v(V_T + 2 * qt + 1)}, {v(V_T + 2 * qt)}")
    epi(f"s_lshl_b32 {s(S_T0)}, {s(S_WAVE)}, 19")
    epi(f"s_lshl_b32 {s(S_T1)}, {s(S_H)}, 12")
    epi(f"s_add_u32 {s(S_T0)}, {s(S_T0)}, {s(S_T1)}")
    idx = 0
    for qt in range(4):
        for st in range(4):
            tb = V_S + 12 * (idx % 4)
            idx += 1
            for i in range(8):
                epi(f"v_accvgpr_read_b32 {v(tb + i)}, {a(A_O + 32 * qt + 8 * st + i)}")
            for i in range(4):
                epi(f"v_pk_mul_f32 {v(tb + 2 * i, 2)}, {v(tb + 2 * i, 2)}, {v(V_T + 2 * qt, 2)}")
            for i in range(4):
                epi(f"v_cvt_pk_bf16_f32 {v(tb + 8 + i)}, {v(tb + 2 * i)}, {v(tb + 2 * i + 1)}")
            epi(f"buffer_store_dwordx4 {v(tb + 8, 4)}, {v(V_OD)}, {s(SRD_O, 4)}, {s(S_T0)} offen offset:{st * 1024} sc1")
        epi(f"s_add_u32 {s(S_T0)}, {s(S_T0)}, 131072")
    stamp(epi)
    tail1, tail2 = oproj_tail()
    epi.extend(tail1)
    poll = Block()
    poll("L1_poll:")
    poll(f"""
    buffer_load_dword v8, v9, {s(SRD_DBG, 4)}, {s(S_T0)} offen sc1
    s_sub_u32 {s(S_CNT)}, {s(S_CNT)}, 1
    s_cbranch_scc1 L1_go
    s_waitcnt vmcnt(0)
    v_readfirstlane_b32 {s(S_T1)}, v8
    s_nop 0
    s_cmp_lt_u32 {s(S_T1)}, 8
    s_cbranch_scc1 L1_poll
    L1_go:
    s_waitcnt vmcnt(0)
    """)
    stamp(poll)
    epi.extend(poll)
    epi.extend(tail2)
    epi("L1_fin:")
    if OPT["stamp"]:
        epi("s_waitcnt vmcnt(0)")
        stamp(epi, 25)
        stamp_store(epi, s(S_WAVE), "L1_end", 0, 64)
    epi("L1_end:")
    epi("s_endpgm")

    fb = Block()
    fb("L1_fallback:")
    fb(f"""
    s_waitcnt vmcnt(0) lgkmcnt(0)
    """)
    for i in range(4):
        fb(f"v_add_u32 {v(V_KA + i)}, {s(S_W4096)}, {v(V_KA + i)}")
    for i in range(8):
        fb(f"v_add_u32 {v(V_VA + i)}, {s(S_W4096)}, {v(V_VA + i)}")
    for i in range(128):
        fb(f"v_accvgpr_write_b32 {a(A_O + i)}, 0")
    for qt in range(4):
        fb(f"v_mov_b32 {v(V_L + qt)}, 0")
        fb(f"v_mov_b32 {v(V_M + qt)}, {f32(-3e38)}")
    fb(f"s_mov_b32 {s(S_KV)}, 0")
    fbl = Block()
    for q in range(4):
        fbl(f"s_add_u32 m0, {s(S_W4096)}, {16384 * q}")
        fbl(f"s_add_u32 {s(S_T0)}, {s(S_KV)}, {4096 * q}")
        for n in range(4):
            fbl(k_dma(n, s(S_T0)))
        fbl(f"s_add_u32 m0, {s(S_W4096)}, {LDS_V + 16384 * q}")
        fbl("s_nop 0")
        for n in range(4):
            fbl(v_dma(n, s(S_T0)))
    fbl("s_waitcnt vmcnt(0)")
    for u in range(2):
        for kt in range(2):
            for st in range(4):
                fbl(f"ds_read_b128 {a(A_K + 16 * kt + 4 * st, 4)}, {v(V_KA + st)} offset:{(2 * u + kt) * 16384}")
        for dt in range(8):
            for kt in range(2):
                fbl(f"ds_read_b64_tr_b16 {a(A_V + 4 * dt + 2 * kt, 2)}, {v(V_VA + dt)} offset:{(2 * u + kt) * 16384}")
            if dt % 2:
                fbl("s_waitcnt lgkmcnt(0)")
        fbl.extend(qk_pair(0, 0, True) + qk_pair(1, 0, True))
        fbl("s_nop 7")
        for qt in range(4):
            S = V_S + 8 * qt
            m, m2, al = V_T, V_T + 1, V_T + 2
            M = V_M + qt
            fbl(f"v_max3_f32 {v(m)}, {v(S)}, {v(S + 1)}, {v(M)}")
            for i in range(2, 8, 2):
                fbl(f"v_max3_f32 {v(m)}, {v(m)}, {v(S + i)}, {v(S + i + 1)}")
            for swap in ("v_permlane16_swap_b32", "v_permlane32_swap_b32"):
                fbl(f"v_mov_b32 {v(m2)}, {v(m)}")
                fbl("s_nop 1")
                fbl(f"{swap} {v(m)}, {v(m2)}")
                fbl(f"v_max_f32 {v(m)}, {v(m)}, {v(m2)}")
            fbl(f"v_sub_f32 {v(al)}, {v(M)}, {v(m)}")
            fbl(f"v_exp_f32 {v(al)}, {v(al)}")
            fbl(f"v_mov_b32 {v(M)}, {v(m)}")
            fbl(f"v_mul_f32 {v(V_L + qt)}, {v(V_L + qt)}, {v(al)}")
            for i in range(32):
                r = A_O + 32 * qt + i
                fbl(f"v_accvgpr_read_b32 {v(m2)}, {a(r)}")
                fbl(f"v_mul_f32 {v(m2)}, {v(m2)}, {v(al)}")
                fbl(f"v_accvgpr_write_b32 {a(r)}, {v(m2)}")
            pair, e0 = qt // 2, 8 * (qt % 2)
            for e in range(8):
                fbl(f"v_sub_f32 {v(S + e)}, {v(S + e)}, {v(m)}")
            for e in range(8):
                fbl(sm_exp(pair, e0 + e))
            fbl("s_nop 0")
            for e in range(8):
                fbl(sm_add(pair, e0 + e))
            for e in range(1, 8, 2):
                fbl(sm_cvt(pair, e0 + e))
            fbl("s_nop 1")
            for dt in range(8):
                fbl(pv(qt, dt, 0))
        fbl("s_nop 7")
    fbl(f"s_add_u32 {s(S_KV)}, {s(S_KV)}, 16384")
    fbl(f"s_cmp_lt_u32 {s(S_KV)}, 524288")
    fbl("s_cbranch_scc1 L1_fbloop")
    fbe = Block()
    lane_sum(fbe, [V_L + i for i in range(4)])
    fbe(f"s_sub_u32 {s(S_WOO)}, {s(S_WOO)}, {10 * 32 * 1280}")
    for c in range(10):
        fbe(cell_m0(c))
        fbe("s_nop 0")
        for n in range(4):
            fbe(wo_dma(n))
        fbe(WO_INC)
    fbe("s_branch L1_epi")

    tr = pre.instrs() + mid.instrs() + body.instrs() * 2 + post.instrs() + chk.instrs() + epi.instrs()
    check_trace(tr, "k1")
    check_trace(post.instrs() + chk.instrs() + fb.instrs() + fbl.instrs() * 2 + fbe.instrs() + epi.instrs(), "k1 fallback")

    out = Block()
    out.extend(pre)
    out.extend(mid)
    out(".p2align 6")
    out("L1_loop:")
    out.extend(body)
    out.extend(post)
    out.extend(chk)
    out.extend(epi)
    out.extend(fb)
    out("L1_fbloop:")
    out.extend(fbl)
    out.extend(fbe)
    return out


def oproj_tail():
    V_AA = 16
    V_OA = 28
    V_OUT = 33
    OP = " sc1" if OPT["osc1"] else ""
    NPRE = 16
    t1 = Block()
    vm = [("wo", i) for i in range(10) for _ in range(4)] + [("st", 0)] * 16

    def wait_vm(tag):
        last = max(i for i, x in enumerate(vm) if x == tag)
        return f"s_waitcnt vmcnt({min(63, len(vm) - 1 - last)})"

    t1(f"""
    v_lshl_add_u32 v8, v1, 2, v7
    v_bfe_u32 v9, v8, 1, 2
    v_lshlrev_b32 v8, 7, v8
    v_lshl_add_u32 v8, v4, 3, v8
    v_lshl_add_u32 v8, v9, 5, v8
    v_add_u32 {v(V_AA)}, {s(S_W4096)}, v8
    v_add_u32 {v(V_AA + 4)}, {LDS_V}, {v(V_AA)}
    v_add_u32 v8, {s(S_W8192)}, v8
    v_add_u32 {v(V_AA + 8)}, {LDS_WQ}, v8
    """)
    for wdw in range(3):
        for nt in range(1, 4):
            t1(f"v_xor_b32 {v(V_AA + 4 * wdw + nt)}, {32 * nt}, {v(V_AA + 4 * wdw)}")

    def quad(q, off=0, n=4):
        kind, base = q
        return (a if kind == "a" else v)(base + off, n)

    areg = {}
    for i in range(8):
        areg[i] = [("a", 128 + 16 * i + 4 * nt) for nt in range(4)]
        areg[8 + i] = [("v", 112 + 16 * i + 4 * nt) for nt in range(4)]
    free = [("a", 80 + 4 * i) for i in range(12)] + [("v", 48 + 4 * i) for i in range(16)]

    def a_reads(ks):
        const = CELLS[ks % 10][1]
        wdw = const // 65536
        return [f"ds_read_b64_tr_b16 {quad(areg[ks][nt], 2 * e, 2)}, {v(V_AA + 4 * wdw + nt)} offset:{const % 65536 + 2048 * e}"
                for nt in range(4) for e in range(2)]

    def wo_grp(ks):
        out = [cell_m0(ks % 10), "s_nop 0"]
        for n in range(4):
            out.append(wo_dma(n))
            vm.append(("wo", ks))
        out.append(WO_INC)
        return out

    def move(lo, hi):
        for i in range(lo, hi):
            t1(wait_vm(("wo", i)))
            t1.extend(a_reads(i))
            if i > lo:
                t1("s_waitcnt lgkmcnt(8)")
                t1.extend(wo_grp(i - 1 + 10))
        t1("s_waitcnt lgkmcnt(0)")
        t1.extend(wo_grp(hi - 1 + 10))

    move(0, 10)
    t1(wait_vm(("st", 0)))
    t1(f"""
    s_barrier
    s_cmp_lg_u32 {s(S_WAVE)}, 0
    s_cbranch_scc1 L1_nosig
    s_lshr_b32 {s(S_T0)}, {s(S_H)}, 3
    s_lshl_b32 {s(S_T1)}, {s(S_B)}, 2
    s_add_u32 {s(S_T0)}, {s(S_T0)}, {s(S_T1)}
    s_lshl_b32 {s(S_T0)}, {s(S_T0)}, 2
    v_mov_b32 v8, 1
    v_mov_b32 v9, 0
    s_mov_b64 exec, 1
    buffer_atomic_add v8, v9, {s(SRD_DBG, 4)}, {s(S_T0)} offen sc1
    s_mov_b64 exec, -1
    L1_nosig:
    """)
    stamp(t1)
    t1(f"""
    s_cmp_ge_u32 {s(S_IDX)}, 30
    s_cbranch_scc1 L1_fin
    """)
    move(10, NPRE)
    t1(f"""
    v_mov_b32 {v(V_OA)}, {v(V_OD)}
    v_add_u32 {v(V_OA + 1)}, 0x20000, {v(V_OD)}
    v_add_u32 {v(V_OA + 2)}, 0x40000, {v(V_OD)}
    v_add_u32 {v(V_OA + 3)}, 0x60000, {v(V_OD)}
    v_add_u32 {v(V_OA + 4)}, 0x80000, {v(V_OD)}
    v_mul_u32_u24 v8, 1280, v2
    v_lshl_add_u32 {v(V_OUT)}, v1, 3, v8
    v_mov_b32 v9, 0
    s_and_b32 {s(S_T0)}, s2, 7
    s_lshl_b32 {s(S_T0)}, {s(S_T0)}, 2
    s_add_u32 {s(S_T0)}, {s(S_T0)}, {s(S_WAVE)}
    s_lshl_b32 {s(S_T0)}, {s(S_T0)}, 2
    s_mov_b32 {s(S_CNT)}, 0x40000
    """)
    stamp(t1)

    t2 = Block()
    vm.clear()
    breg = {}
    nb = [0]

    def b_loads():
        ks = nb[0]
        nb[0] += 1
        breg[ks] = [free.pop(0) for _ in range(5)]
        out = []
        for mt in range(5):
            out.append(f"buffer_load_dwordx4 {quad(breg[ks][mt])}, {v(V_OA + mt)}, {s(SRD_OO, 4)}, {s(S_OK)} offen offset:{(ks % 4) * 1024}{OP}")
            vm.append(("o", ks))
        if ks % 4 == 3:
            out.append(f"s_add_u32 {s(S_OK)}, {s(S_OK)}, 4096")
        return out

    while len(free) >= 5:
        t2.extend(b_loads())
    na = NPRE
    nd = NPRE + 10
    for ks in range(32):
        t2(wait_vm(("o", ks)))
        mf = []
        for nt in range(4):
            for mt in range(5):
                d = a(4 * (5 * nt + mt), 4)
                c = "0" if ks == 0 else d
                mf.append(f"{MF} {d}, {quad(areg[ks][nt])}, {quad(breg[ks][mt])}, {c}")
        fill = []
        did_read = False
        if nd < 32 and nd - 10 < na:
            fill += [x for x in wo_grp(nd) if x != "s_nop 0"]
            nd += 1
        if na < 32 and na - ks <= 10 and len(free) >= 4:
            areg[na] = [free.pop(0) for _ in range(4)]
            if ("wo", na) in vm:
                fill.append(wait_vm(("wo", na)))
            fill += a_reads(na)
            na += 1
            did_read = True
        while nb[0] < 32 and len(free) >= 5 + (4 if na < 32 and na - ks <= 11 else 0) and nb[0] - ks < 11 and len(fill) < 16:
            fill += b_loads()
        gaps = [[] for _ in range(20)]
        gi = 0
        for x in fill:
            hard = x.startswith(("buffer", "ds_"))
            if hard and gaps[min(gi, 19)] and " m0," in gaps[min(gi, 19)][-1]:
                gi += 1
            gaps[min(gi, 19)].append(x)
            if hard:
                gi += 1
        t2.extend(interleave(mf, gaps))
        if did_read:
            t2("s_waitcnt lgkmcnt(0)")
        free.extend(areg[ks] + breg[ks])
    VB = 48
    t2(f"""
    s_barrier
    s_mul_i32 {s(S_T0)}, {s(S_WAVE)}, 20480
    v_add_u32 v8, {s(S_T0)}, {v(V_OD)}
    s_mul_i32 {s(S_T0)}, {s(S_WAVE)}, 5120
    v_add_u32 v10, {s(S_T0)}, {v(V_OD)}
    v_add_u32 v11, 40960, v10
    s_nop 3
    """)
    for tl in range(20):
        t2(f"ds_write_b128 v8, {a(4 * tl, 4)} offset:{tl * 1024}")
    t2("s_waitcnt lgkmcnt(0)")
    t2("s_barrier")
    for mt in range(5):
        for w in range(4):
            t2(f"ds_read_b128 {v(VB + 16 * mt + 4 * w, 4)}, v{10 + w // 2} offset:{(w % 2) * 20480 + mt * 1024}")
        if mt % 2 == 1:
            t2("s_waitcnt lgkmcnt(0)")
    t2(f"""
    s_lshl_b32 {s(S_T0)}, {s(S_CT)}, 7
    s_lshl_b32 {s(S_T1)}, {s(S_WAVE)}, 5
    s_add_u32 {s(S_T0)}, {s(S_T0)}, {s(S_T1)}
    s_waitcnt lgkmcnt(0)
    """)
    for mt in range(5):
        r = VB + 16 * mt
        for i in range(4):
            t2(f"v_add_f32 {v(r + i)}, {v(r + i)}, {v(r + 4 + i)}")
            t2(f"v_add_f32 {v(r + 8 + i)}, {v(r + 8 + i)}, {v(r + 12 + i)}")
        for i in range(4):
            t2(f"v_add_f32 {v(r + i)}, {v(r + i)}, {v(r + 8 + i)}")
        t2(f"v_cvt_pk_bf16_f32 {v(r + 4)}, {v(r)}, {v(r + 1)}")
        t2(f"v_cvt_pk_bf16_f32 {v(r + 5)}, {v(r + 2)}, {v(r + 3)}")
        t2(f"buffer_store_dwordx2 {v(r + 4, 2)}, {v(V_OUT)}, {s(SRD_OUT, 4)}, {s(S_T0)} offen")
        t2(f"s_add_u32 {s(S_T0)}, {s(S_T0)}, {16 * 1280}")
    return t1, t2


KNAME = "standalone__mha_block_cached__near_ridge_kernel"
HEADER = """; Fused MHA block: q = x@wq, softmax(q k^T / sqrt(128)) v, out = o@wo   (gfx950, generated by gen/gen.py)
; Kernarg: 0 x, 8 k_cache, 16 v_cache, 24 wq, 32 wo, 40 out, 48 debug, 56 ws
; @launch grid=(256,1,1) block=(256,1,1) lds=163840
.amdgcn_target "amdgcn-amd-amdhsa--gfx950"
.text
"""


def kd(name, vg, acc):
    return f""".p2align 6
.amdhsa_kernel {name}
  .amdhsa_next_free_vgpr {vg}
  .amdhsa_next_free_sgpr 96
  .amdhsa_accum_offset {acc}
  .amdhsa_group_segment_fixed_size 0
  .amdhsa_kernarg_size 64
  .amdhsa_user_sgpr_count 2
  .amdhsa_user_sgpr_kernarg_segment_ptr 1
  .amdhsa_system_sgpr_workgroup_id_x 1
.end_amdhsa_kernel
"""


def main():
    k1 = kernel1()
    txt = HEADER
    txt += f".globl {KNAME}\n.p2align 8\n.type {KNAME},@function\n" + k1.text()
    txt += '.section .rodata,"a"\n' + kd(KNAME, 512, 256)
    open(sys.argv[1], "w").write(txt)


main()
```

```python
import math
import struct
import sys
from asmlib import *

OPT = dict(stamp=0, nt=1, nocompute=0, nodma=0, nolds=0, osc1=1, wotouch=1, kvinit=2, kvrot=0, orot=1, pubgrp=6, qkord=0, pvord=0, cap=0, dtight=0, pol=0, diagpace=0, ones=1)
for arg in sys.argv[2:]:
    k, val = arg.split("=")
    assert k in OPT, k
    OPT[k] = int(val)


def f32(x):
    return "0x%08x" % struct.unpack("<I", struct.pack("<f", x))[0]


SCALE = math.log2(math.e) / math.sqrt(128.0)
MF = "v_mfma_f32_16x16x32_bf16"
KVPOL = (" nt" if OPT["nt"] else "")
if OPT["pol"]:
    KVPOL = {1: " sc1 nt", 2: " sc0 nt", 3: " sc0 sc1 nt", 4: " sc1", 5: " sc0 sc1"}[OPT["pol"]]
KNAME = "standalone__mha_block_cached__near_ridge_kernel"

S_WAVE = 3
S_B, S_H = 6, 7
SRD_X, SRD_WQ, SRD_K, SRD_V, SRD_O = 8, 12, 16, 20, 24
S_X0, S_X1, S_WQO = 28, 29, 30
S_XM0, S_WM0 = 31, 32
S_WOO, S_CB, S_CT = 33, 34, 35
S_OTAB = 36
S_IDX, S_XC = 46, 47
S_W2048 = 49
S_KV = 50
S_CNT = 51
S_T0, S_T1, S_T2 = 52, 53, 54
S_ROT = 55
S_SCALE = 56
S_STAMP = 60
SRD_WO, SRD_OO, SRD_OUT, SRD_DBG = 64, 68, 72, 80
S_WTAB = 92

V_KA = 16
V_VA = 20
V_KD = 28
V_VD = 32
V_XD = 34
V_WD = 38
V_WA = 40
V_XA = 44
V_Q = 48
V_S = 112
V_P = 144
V_NM = 160
V_LM = 176
V_L = 184
V_ONE = 188
V_M = 192
V_T = 196
V_QACC = 112
V_ST = 240
V_DUM = 242
V_OD = 243
V_WDD = 244

A_O = 0
A_K = 128
A_V = 192
A_QA = 128
A_QB = 192

LDS_X0 = 32768
LDS_WQ = 131072
LDS_V = 65536


def unit(t):
    return (t % 8) * 8192


nstamp = [0]


def stamp(b, lane=None):
    if not OPT["stamp"]:
        return
    if lane is None:
        lane = nstamp[0]
        nstamp[0] += 1
    b(f"s_memrealtime {s(S_STAMP, 2)}")
    b(f"s_memtime {s(S_STAMP + 2, 2)}")
    b("s_waitcnt lgkmcnt(0)")
    b(f"v_writelane_b32 {v(V_ST)}, {s(S_STAMP)}, {lane}")
    b(f"v_writelane_b32 {v(V_ST + 1)}, {s(S_STAMP + 2)}, {lane}")


def stamp_store(b, endlabel):
    b(f"""
    s_cmp_lg_u32 {s(S_WAVE)}, 0
    s_cbranch_scc1 {endlabel}
    s_add_u32 s76, s90, 0x4000000
    s_addc_u32 s77, s91, 0
    s_mov_b32 s78, 0x100000
    s_mov_b32 s79, 0x20000
    s_lshl_b32 s4, s2, 9
    v_lshlrev_b32 v1, 3, v0
    buffer_store_dwordx2 {v(V_ST, 2)}, v1, s[76:79], s4 offen
    """)


def k_dma(n, soff):
    return f"buffer_load_dwordx4 {v(V_KD + n)}, {s(SRD_K, 4)}, {soff} offen offset:{1024 * n}{KVPOL} lds"


def v_dma(n, soff):
    return f"buffer_load_dwordx4 {v(V_VD + n % 2)}, {s(SRD_V, 4)}, {soff} offen offset:{1024 * n}{KVPOL} lds"


def k_read(t, kt, st):
    return f"ds_read_b128 {a(A_K + 32 * (t % 2) + 16 * kt + 4 * st, 4)}, {v(V_KA + st)} offset:{unit(t) + 4096 * kt}"


def v_read(t, dt, kt):
    return f"ds_read_b64_tr_b16 {a(A_V + 32 * (t % 2) + 4 * dt + 2 * kt, 2)}, {v(V_VA + dt)} offset:{unit(t) + 4096 * kt}"


def qk(qt, kt, st, t, c0):
    d = v(V_S + 8 * qt + 4 * kt, 4)
    c = c0 if st == 0 else d
    return f"{MF} {d}, {a(A_K + 32 * (t % 2) + 16 * kt + 4 * st, 4)}, {v(V_Q + 16 * qt + 4 * st, 4)}, {c}"


def qk_pair(pair, t, zero=False):
    if OPT["qkord"] == 1:
        return [qk(qt, kt, st, t, "0" if zero else v(V_NM + 4 * qt, 4))
                for kt in range(2) for st in range(4) for qt in (2 * pair, 2 * pair + 1)]
    if OPT["qkord"] == 2:
        return [qk(qt, kt, st, t, "0" if zero else v(V_NM + 4 * qt, 4))
                for qt in (2 * pair, 2 * pair + 1) for st in range(4) for kt in range(2)]
    if OPT["qkord"] == 3:
        out = []
        q0, q1 = 2 * pair, 2 * pair + 1
        for st in range(4):
            for qt, kt in ((q0, 0), (q0, 1), (q1, 1), (q1, 0)):
                out.append(qk(qt, kt, st, t, "0" if zero else v(V_NM + 4 * qt, 4)))
        return out
    return [qk(qt, kt, st, t, "0" if zero else v(V_NM + 4 * qt, 4))
            for qt in (2 * pair, 2 * pair + 1) for kt in range(2) for st in range(4)]


def pv(qt, dt, t):
    d = a(A_O + 32 * qt + 4 * dt, 4)
    return f"{MF} {d}, {a(A_V + 32 * (t % 2) + 4 * dt, 4)}, {v(V_P + 4 * qt, 4)}, {d}"


def pv_pair(pair, t):
    out = [pv(qt, dt, t) for qt in (2 * pair, 2 * pair + 1) for dt in range(8)]
    if OPT["pvord"] == 1:
        out = [pv(qt, dt, t) for dt in range(8) for qt in (2 * pair, 2 * pair + 1)]
    d = v(V_LM + 4 * pair, 4)
    out.append(f"{MF} {d}, {v(V_ONE, 4)}, {v(V_P + 4 * (2 * pair + 1), 4)}, {d}")
    return out


def sm_exp(pair, e):
    r = v(V_S + 16 * pair + e)
    return f"v_exp_f32 {r}, {r}"


def sm_add(pair, e):
    l = v(V_L + 2 * pair + e // 8)
    return f"v_add_f32 {l}, {l}, {v(V_S + 16 * pair + e)}"


def sm_cvt(pair, e):
    return f"v_cvt_pk_bf16_f32 {v(V_P + 8 * pair + e // 2)}, {v(V_S + 16 * pair + e - 1)}, {v(V_S + 16 * pair + e)}"


NG = 66
E0 = [12 + 2 * e for e in range(16)]
E1 = [45 + 2 * e for e in range(11)] + [NG + 1 + 2 * e for e in range(5)]
V_GAPS = [0, 2, 4, 6, 8, 10, 11, 13, 15, 17, 19, 21, 23, 25, 27, 29]
K_GAPS = [39, 41, 44, 46, 50, 52, 56, 58]
D_GAPS = [37, 43, 48, 54]
AA_GAPS = [31, 33, 35, 60, 62, 64]
G_WAIT, G_BAR, G_M0A, G_M0B, G_KWAIT = 34, 35, 36, 47, 65
if OPT["dtight"]:
    D_GAPS = [37, 39, 41, 43]
    K_GAPS = [44, 46, 48, 50, 52, 54, 56, 58]
    G_M0B = 40


def plan_valu():
    cap = {g: 1 for g in V_GAPS + K_GAPS}
    cap.update({g: 2 for g in AA_GAPS})
    placed = {}
    ready = []
    per = 4
    events = {}
    for p in range(per + 1):
        for pair, E in ((0, E0), (1, E1)):
            for e, g in enumerate(E):
                ops = []
                if e % 2 == 1:
                    ops.append((0, "c", pair, e, p))
                if e < 8:
                    ops.append((1, "a", pair, e, p))
                events.setdefault(p * NG + g + 1, []).extend(ops)
    for G in range((per + 1) * NG):
        ready += events.get(G, [])
        ready.sort(key=lambda x: (x[0], x[4], x[2], x[3]))
        n = cap.get(G % NG, 0)
        take, ready = ready[:n], ready[n:]
        for _, kind, pair, e, p in take:
            placed.setdefault(G, []).append((pair, kind, e, p))
    res = {}
    for g in range(NG):
        res[g] = [(pair, kind, e, (per - 1) - p) for pair, kind, e, p in placed.get((per - 1) * NG + g, [])]
        chk = [(pair, kind, e, (per - 2) - p) for pair, kind, e, p in placed.get((per - 2) * NG + g, [])]
        assert res[g] == chk, "valu plan not periodic"
    assert sum(len(x) for x in res.values()) == 32
    return res


VPLAN = plan_valu()


def vop(pair, kind, e):
    return sm_cvt(pair, e) if kind == "c" else sm_add(pair, e)


CELLS = [(S_XC, 0), (S_CB, 0), (S_CB, 8192), (S_XC, 4096)] + [(S_CB, 8192 * u) for u in range(2, 8)]


def cell_m0(i):
    c = CELLS[i % 10]
    return f"s_add_u32 m0, {s(c[0])}, {c[1]}"


def wo_off(i):
    return f"s_add_u32 {s(S_WOO)}, {s(S_WTAB + i // 4)}, {(i % 4) * 32 * 1280}"


def wo_dma(n):
    return f"buffer_load_dwordx4 {v(V_WDD + n)}, {s(SRD_WO, 4)}, {s(S_WOO)} offen offset:{1024 * n} lds"


def subtile(t, last=False):
    mf = qk_pair(0, t) + pv_pair(1, t - 1) + qk_pair(1, t) + pv_pair(0, t)
    gaps = [[] for _ in range(NG)]
    vr = [v_read(t, dt, kt) for dt in range(8) for kt in range(2)]
    for r, g in zip(vr, V_GAPS):
        gaps[g].append(r)
    if not (last and t == 7):
        kr = [k_read(t + 1, kt, st) for kt in range(2) for st in range(4)]
        for r, g in zip(kr, K_GAPS):
            gaps[g].append(r)
        gaps[G_KWAIT].append("s_waitcnt lgkmcnt(0)")
    n = OPT['cap'] or 24
    if last:
        n = 24 + 4 + (4 if t >= 2 else 0) + (1 if OPT["wotouch"] else 0) if t < 7 else 63
    gaps[G_WAIT].append(f"s_waitcnt vmcnt({n}) lgkmcnt(0)")
    gaps[G_BAR].append("s_barrier")

    def wo_group(i, g_off, g_m0, gs):
        gaps[g_off].append(wo_off(i))
        gaps[g_m0].append(cell_m0(i))
        for n, g in enumerate(gs):
            gaps[g].append(wo_dma(n))

    if last:
        if t in (0, 2):
            wo_group({0: 0, 2: 3}[t], 1, 3, [5, 9, 14, 18])
        if t == 0 and OPT["wotouch"]:
            gaps[22].append(f"buffer_load_dword {v(V_DUM)}, v15, {s(SRD_WO, 4)}, {s(S_T2)} offen")
        wo_group({0: 1, 1: 2, 2: 4, 3: 5, 4: 6, 5: 7, 6: 8, 7: 9}[t], 32, G_M0A, D_GAPS)
    else:
        gaps[G_M0A].append(f"s_add_u32 m0, {s(S_W2048)}, {unit(t)}")
        gaps[G_M0B].append(f"s_add_u32 m0, {s(S_W2048)}, {LDS_V + unit(t)}")
        for n in range(2):
            gaps[D_GAPS[n]].append(k_dma(n, s(S_KV)))
            gaps[D_GAPS[2 + n]].append(v_dma(n, s(S_KV)))
        gaps[55].append(f"s_add_u32 {s(S_KV)}, {s(S_KV)}, 8192")
        gaps[57].append(f"s_and_b32 {s(S_KV)}, {s(S_KV)}, 0x7ffff")
        if t == 7:
            gaps[61].append(f"s_sub_u32 {s(S_CNT)}, {s(S_CNT)}, 1")
            gaps[63].append(f"s_cmp_lg_u32 {s(S_CNT)}, 0")
    for pair, E in ((0, E0), (1, E1)):
        for e, g in enumerate(E):
            gaps[g % NG].append(sm_exp(pair, e))
    for g in range(NG):
        for pair, kind, e, _ in VPLAN[g]:
            gaps[g].append(vop(pair, kind, e))
    for i in range(OPT["diagpace"]):
        gaps[(7 * i + 3) % NG].append("s_nop 1")
    if OPT["nocompute"]:
        out = []
        for g in gaps:
            for x in g:
                if x.startswith(("s_", "buffer")):
                    out.append(x)
                    if " m0," in x:
                        out.append("s_nop 0")
        return out
    drop = []
    if OPT["nodma"]:
        drop += ["buffer"]
    if OPT["nolds"]:
        drop += ["ds_"]
    if drop:
        gaps = [[x for x in g if not x.startswith(tuple(drop))] for g in gaps]
    return interleave(mf, gaps)


def flat(lst):
    out = []
    for x in lst:
        out.append(x)
        if " m0," in x:
            out.append("s_nop 0")
    return out


def qproj_phase():
    b = Block()
    issued = []

    def wq_dma(j):
        out = [f"s_add_u32 m0, {s(S_WM0)}, {(j % 4) * 8192}"]
        for n in range(2):
            out.append(f"buffer_load_dwordx4 {v(V_WD + n)}, {s(SRD_WQ, 4)}, {s(S_WQO)} offen offset:{1024 * n} lds")
            issued.append(("wq", j))
        out.append(f"s_add_u32 {s(S_WQO)}, {s(S_WQO)}, {32 * 8192}")
        return out

    def x_dma(st, g):
        out = [f"s_add_u32 m0, {s(S_XM0)}, {(st % 2) * 65536 + 4096 * g}"]
        for n in range(4):
            out.append(f"buffer_load_dwordx4 {v(V_XD + n)}, {s(SRD_X, 4)}, {s(S_X0 + g)} offen offset:{1024 * n} lds")
            issued.append(("x", st))
        out.append(f"s_add_u32 {s(S_X0 + g)}, {s(S_X0 + g)}, 128")
        return out

    def kv_unit(t):
        out = [f"s_add_u32 m0, {s(S_W2048)}, {unit(t)}"]
        out += [k_dma(n, s(S_KV)) for n in range(2)]
        out.append(f"s_add_u32 m0, {s(S_W2048)}, {LDS_V + unit(t)}")
        out += [v_dma(n, s(S_KV)) for n in range(2)]
        out.append(f"s_add_u32 {s(S_KV)}, {s(S_KV)}, 8192")
        out.append(f"s_and_b32 {s(S_KV)}, {s(S_KV)}, 0x7ffff")
        issued.extend([("kv", t)] * 4)
        return out

    def wait_for(*tags):
        last = max(i for i, x in enumerate(issued) if x in tags)
        return min(63, len(issued) - 1 - last)

    first = Block()
    first.extend(flat(wq_dma(0) + x_dma(0, 0) + x_dma(0, 1) + wq_dma(1)))
    second = Block()
    second.extend(flat(wq_dma(2) + x_dma(1, 0) + x_dma(1, 1)))
    kv0 = Block()
    for t in range(OPT["kvinit"]):
        kv0.extend(flat(kv_unit(t)))
    nkv = OPT["kvinit"]

    def a_reads(j):
        base = A_QA + 32 * (j % 2)
        return [f"ds_read_b64_tr_b16 {a(base + 4 * (2 * st + e) + 2 * jj, 2)}, {v(V_WA + st)} offset:{(j % 4) * 8192 + 1024 * jj + 8 * e}"
                for st in range(4) for e in range(2) for jj in range(2)]

    def b_reads(stg):
        base = A_QB + 32 * (stg % 2)
        return [f"ds_read_b128 {a(base + 16 * ks + 4 * qt, 4)}, {v(V_XA + 2 * (stg % 2) + ks)} offset:{2048 * qt}"
                for ks in range(2) for qt in range(4)]

    def mfmas(j):
        ab = A_QA + 32 * (j % 2)
        bb = A_QB + 32 * ((j // 2) % 2) + 16 * (j % 2)
        out = []
        for qt in range(4):
            for dtile in range(8):
                d = v(V_QACC + 4 * (8 * qt + dtile), 4)
                c = "0" if j == 0 else d
                out.append(f"{MF} {d}, {a(ab + 4 * dtile, 4)}, {a(bb + 4 * qt, 4)}, {c}")
        return out

    zero = [f"v_accvgpr_write_b32 {a(A_O + i)}, 0" for i in range(128)]
    for j in range(21):
        gaps = [[] for _ in range(32)]
        rd = []
        dm = []
        if j < 20:
            tags = [("wq", j)] + ([("x", j // 2)] if j % 2 == 0 else [])
            b(f"s_waitcnt vmcnt({wait_for(*tags)})")
            b("s_barrier")
            if j == 1:
                stamp(b)
            if OPT["stamp"] > 2:
                stamp(b, 32 + j)
            rd = (b_reads(j // 2) if j % 2 == 0 else []) + a_reads(j)
            if j % 2 == 1 and j // 2 + 2 < 10:
                dm += x_dma(j // 2 + 2, 0)
            if j % 2 == 0 and j >= 2 and j // 2 + 1 < 10:
                dm += x_dma(j // 2 + 1, 1)
            if j + 3 < 20:
                dm += wq_dma(j + 3)
        if j in (17, 18):
            while nkv < 4 and sum(x.startswith("buffer") for x in dm) < 6:
                dm += kv_unit(nkv)
                nkv += 1
        if j >= 19:
            for _ in range(2):
                dm += kv_unit(nkv)
                nkv += 1
        nd = sum(x.startswith("buffer") for x in dm)
        step = 5 if nd <= 6 else 4
        gi = 1
        busy = set()
        for d in dm:
            if d.startswith("buffer"):
                gaps[gi].append(d)
                busy.add(gi)
                gi += step
            else:
                gaps[min(gi - 1, 31)].append(d)
        gi = 0
        for r in rd:
            while gi in busy:
                gi += 1
            scal = len(gaps[gi])
            gaps[gi].append(r)
            if zero and j > 0 and scal == 0:
                gaps[gi].append(zero.pop(0))
            gi += 1
        if j == 0:
            for g in gaps:
                b.extend(flat(g))
        else:
            b.extend(interleave(mfmas(j - 1), gaps))
        if j < 20:
            b("s_waitcnt lgkmcnt(0)")
    assert not zero and nkv == 8
    b(f"s_waitcnt vmcnt({wait_for(('kv', 0))})")
    return first, second, kv0, b


def kernel():
    b = Block()
    b(KNAME + ":")
    b(f"""
    s_load_dwordx4 s[36:39], s[0:1], 0
    s_load_dwordx4 s[40:43], s[0:1], 16
    s_load_dwordx4 s[84:87], s[0:1], 32
    s_load_dwordx4 s[88:91], s[0:1], 48
    s_cmp_ge_u32 s2, 256
    s_cbranch_scc1 L1_end
    v_lshlrev_b32 v15, 7, v0
    v_lshrrev_b32 v1, 6, v0
    v_and_b32 v0, 63, v0
    v_readfirstlane_b32 {s(S_WAVE)}, v1
    s_and_b32 s4, s2, 7
    s_lshr_b32 {s(S_IDX)}, s2, 3
    s_and_b32 {s(S_B)}, s4, 1
    s_lshl_b32 {s(S_B)}, {s(S_B)}, 2
    s_and_b32 {s(S_H)}, {s(S_IDX)}, 3
    s_add_u32 {s(S_B)}, {s(S_B)}, {s(S_H)}
    s_lshr_b32 {s(S_H)}, s4, 1
    s_lshl_b32 {s(S_H)}, {s(S_H)}, 3
    s_lshr_b32 s5, {s(S_IDX)}, 2
    s_add_u32 {s(S_H)}, {s(S_H)}, s5
    s_lshl_b32 {s(S_W2048)}, {s(S_WAVE)}, 11
    """)
    b(f"""
    v_lshrrev_b32 v1, 4, v0
    v_and_b32 v2, 15, v0
    v_lshrrev_b32 v3, 3, v0
    v_and_b32 v5, 7, v0
    ; wq DMA voffsets: (4n + G)*8192 + ((l%16) ^ (G<<2))*16 - 1024n
    v_lshlrev_b32 v9, 2, v1
    v_xor_b32 v9, v2, v9
    v_lshlrev_b32 v9, 4, v9
    v_lshl_add_u32 {v(V_WD)}, v1, 13, v9
    v_add_u32 {v(V_WD + 1)}, {4 * 8192 - 1024}, {v(V_WD)}
    ; x DMA voffsets: (8n + l/8)*1280 + ((l%8) ^ (4(n&1) + G))*16 - 1024n
    v_xor_b32 v8, v5, v1
    v_lshlrev_b32 v8, 4, v8
    v_mul_u32_u24 v10, 1280, v3
    v_add_u32 {v(V_XD)}, v10, v8
    v_xor_b32 v8, 64, v8
    v_add_u32 v11, v10, v8
    v_add_u32 {v(V_XD + 1)}, {8 * 1280 - 1024}, v11
    v_add_u32 {v(V_XD + 2)}, {2 * (8 * 1280 - 1024)}, {v(V_XD)}
    v_add_u32 {v(V_XD + 3)}, {3 * (8 * 1280 - 1024)}, v11
    s_mul_i32 {s(S_X0)}, {s(S_WAVE)}, {64 * 1280}
    s_add_u32 {s(S_X1)}, {s(S_X0)}, {32 * 1280}
    s_lshl_b32 {s(S_WQO)}, {s(S_WAVE)}, 16
    s_lshl_b32 {s(S_XC)}, {s(S_WAVE)}, 13
    s_add_u32 {s(S_XM0)}, {s(S_XC)}, {LDS_X0}
    s_add_u32 {s(S_XC)}, {s(S_XC)}, {LDS_WQ}
    s_add_u32 {s(S_WM0)}, {s(S_W2048)}, {LDS_WQ}
    s_mul_i32 {s(S_T0)}, {s(S_B)}, 307200
    s_lshl_b32 {s(S_T1)}, {s(S_H)}, 8
    s_mov_b32 {s(SRD_X + 2)}, 307200
    s_mov_b32 {s(SRD_X + 3)}, 0x20000
    s_sub_u32 {s(SRD_WQ + 2)}, {640 * 8192}, {s(S_T1)}
    s_mov_b32 {s(SRD_WQ + 3)}, 0x20000
    s_waitcnt lgkmcnt(0)
    s_add_u32 {s(SRD_X)}, s36, {s(S_T0)}
    s_addc_u32 {s(SRD_X + 1)}, s37, 0
    s_add_u32 {s(SRD_WQ)}, s42, {s(S_T1)}
    s_addc_u32 {s(SRD_WQ + 1)}, s43, 0
    """)
    stamp(b)
    first, second, kv0, qp = qproj_phase()
    b.extend(first)
    b(f"""
    v_and_b32 v4, 3, v0
    v_bfe_u32 v7, v0, 2, 2
    v_lshl_add_u32 v8, v1, 3, v7
    v_lshlrev_b32 v8, 8, v8
    v_lshl_add_u32 v8, v7, 6, v8
    v_lshl_add_u32 v8, v4, 4, v8
    v_add_u32 {v(V_WA)}, {LDS_WQ}, v8
    v_xor_b32 {v(V_WA + 1)}, 64, {v(V_WA)}
    v_xor_b32 {v(V_WA + 2)}, 0x80, {v(V_WA)}
    v_xor_b32 {v(V_WA + 3)}, 0xc0, {v(V_WA)}
    ; x read: LDS_X0 + w*8192 + (l%16)*128 + ((G ^ ((l%16)>>1))*16) ^ (ks*64)
    v_lshrrev_b32 v8, 1, v2
    v_xor_b32 v8, v1, v8
    v_lshlrev_b32 v8, 4, v8
    v_lshl_add_u32 v8, v2, 7, v8
    v_add_u32 {v(V_XA)}, {s(S_XM0)}, v8
    v_xor_b32 {v(V_XA + 1)}, 64, {v(V_XA)}
    v_add_u32 {v(V_XA + 2)}, 0x10000, {v(V_XA)}
    v_add_u32 {v(V_XA + 3)}, 0x10000, {v(V_XA + 1)}
    """)
    b.extend(second)
    b(f"""
    s_lshl_b32 {s(S_T0)}, {s(S_B)}, 5
    s_add_u32 {s(S_T0)}, {s(S_T0)}, {s(S_H)}
    s_lshl_b32 {s(S_T0)}, {s(S_T0)}, 19
    s_add_u32 {s(SRD_K)}, s38, {s(S_T0)}
    s_addc_u32 {s(SRD_K + 1)}, s39, 0
    s_mov_b32 {s(SRD_K + 2)}, 524288
    s_mov_b32 {s(SRD_K + 3)}, 0x20000
    s_add_u32 {s(SRD_V)}, s40, {s(S_T0)}
    s_addc_u32 {s(SRD_V + 1)}, s41, 0
    s_mov_b32 {s(SRD_V + 2)}, 524288
    s_mov_b32 {s(SRD_V + 3)}, 0x20000
    s_mul_i32 {s(S_KV)}, s2, {OPT["kvrot"] * 8192}
    s_and_b32 {s(S_KV)}, {s(S_KV)}, 0x7ffff
    s_add_u32 {s(S_KV)}, {s(S_KV)}, {s(S_W2048)}
    ; K DMA voffsets: G*256 + ((l%16) ^ (8(w&1) + 4n + G))*16 ; V: G*256 + ((l%16) ^ ((4n + G)<<1))*16
    s_and_b32 {s(S_T0)}, {s(S_WAVE)}, 1
    s_lshl_b32 {s(S_T0)}, {s(S_T0)}, 7
    v_xor_b32 v8, v2, v1
    v_lshlrev_b32 v8, 4, v8
    v_lshl_add_u32 v9, v1, 8, v8
    v_xor_b32 {v(V_KD)}, {s(S_T0)}, v9
    v_xor_b32 {v(V_KD + 1)}, 64, {v(V_KD)}
    v_lshlrev_b32 v9, 1, v1
    v_xor_b32 v9, v2, v9
    v_lshlrev_b32 v9, 4, v9
    v_lshl_add_u32 {v(V_VD)}, v1, 8, v9
    v_xor_b32 {v(V_VD + 1)}, 0x80, {v(V_VD)}
    """)
    b.extend(kv0)
    b(f"""
    s_mul_i32 {s(S_T0)}, {s(S_B)}, {15 * 131072}
    s_add_u32 {s(SRD_O)}, s90, {s(S_T0)}
    s_addc_u32 {s(SRD_O + 1)}, s91, 0
    s_mov_b32 {s(SRD_O + 2)}, {15 * 131072}
    s_mov_b32 {s(SRD_O + 3)}, 0x20000
    ; K read: (l%16)*256 + ((G ^ (l%16))*16) ^ (s*64)
    v_lshl_add_u32 {v(V_KA)}, v2, 8, v8
    v_xor_b32 {v(V_KA + 1)}, 64, {v(V_KA)}
    v_xor_b32 {v(V_KA + 2)}, 0x80, {v(V_KA)}
    v_xor_b32 {v(V_KA + 3)}, 0xc0, {v(V_KA)}
    v_lshl_add_u32 v8, v1, 2, v7
    v_and_b32 v9, 7, v8
    v_lshlrev_b32 v8, 8, v8
    v_lshl_add_u32 v8, v9, 5, v8
    v_lshl_add_u32 v8, v4, 3, v8
    v_add_u32 {v(V_VA)}, {LDS_V}, v8
    """)
    for dt in range(1, 8):
        b(f"v_xor_b32 {v(V_VA + dt)}, {32 * dt}, {v(V_VA)}")
    b(f"""
    v_lshlrev_b32 {v(V_OD)}, 4, v0
    s_mov_b32 {s(S_SCALE)}, {f32(SCALE)}
    s_mov_b32 {s(S_SCALE + 1)}, {f32(SCALE)}
    ; ---- O-projection tile of this workgroup: batch s2%8, row tile idx/10, column tile idx%10
    s_mul_i32 {s(S_T1)}, {s(S_IDX)}, 26
    s_lshr_b32 {s(S_T1)}, {s(S_T1)}, 8
    s_mul_i32 {s(S_T0)}, {s(S_T1)}, 10
    s_sub_u32 {s(S_CT)}, {s(S_IDX)}, {s(S_T0)}
    s_and_b32 {s(S_T0)}, s2, 7
    s_mul_i32 {s(S_T0)}, {s(S_T0)}, 15
    s_min_u32 {s(S_T1)}, {s(S_T1)}, 2
    s_mul_i32 {s(S_T1)}, {s(S_T1)}, 5
    s_add_u32 {s(S_T0)}, {s(S_T0)}, {s(S_T1)}
    s_lshl_b32 {s(S_T1)}, {s(S_T0)}, 17
    s_add_u32 {s(SRD_OO)}, s90, {s(S_T1)}
    s_addc_u32 {s(SRD_OO + 1)}, s91, 0
    s_mov_b32 {s(SRD_OO + 2)}, {5 * 131072}
    s_mov_b32 {s(SRD_OO + 3)}, 0x20000
    s_mul_i32 {s(S_T1)}, {s(S_T0)}, {16 * 1280}
    s_add_u32 {s(SRD_OUT)}, s86, {s(S_T1)}
    s_addc_u32 {s(SRD_OUT + 1)}, s87, 0
    s_mov_b32 {s(SRD_OUT + 2)}, {80 * 1280}
    s_mov_b32 {s(SRD_OUT + 3)}, 0x20000
    s_mov_b32 {s(SRD_WO)}, s84
    s_mov_b32 {s(SRD_WO + 1)}, s85
    s_mov_b32 {s(SRD_WO + 2)}, {4096 * 1280}
    s_mov_b32 {s(SRD_WO + 3)}, 0x20000
    s_mov_b32 {s(SRD_DBG)}, s88
    s_mov_b32 {s(SRD_DBG + 1)}, s89
    s_mov_b32 {s(SRD_DBG + 2)}, 256
    s_mov_b32 {s(SRD_DBG + 3)}, 0x20000
    s_lshr_b32 {s(S_CB)}, {s(S_WAVE)}, 1
    s_lshl_b32 {s(S_CB)}, {s(S_CB)}, 16
    s_and_b32 {s(S_T0)}, {s(S_WAVE)}, 1
    s_lshl_b32 {s(S_T0)}, {s(S_T0)}, 12
    s_add_u32 {s(S_CB)}, {s(S_CB)}, {s(S_T0)}
    s_mul_i32 {s(S_WOO)}, {s(S_WAVE)}, {1024 * 1280}
    s_lshl_b32 {s(S_T0)}, {s(S_CT)}, 7
    s_add_u32 {s(S_WOO)}, {s(S_WOO)}, {s(S_T0)}
    s_lshl_b32 {s(S_T2)}, {s(S_WAVE)}, 15
    """)
    for j in range(8):
        if OPT["orot"]:
            b(f"s_add_u32 {s(S_T0)}, {s(S_CT)}, {j}")
            b(f"s_and_b32 {s(S_T0)}, {s(S_T0)}, 7")
        else:
            b(f"s_mov_b32 {s(S_T0)}, {j}")
        b(f"s_mul_i32 {s(S_T1)}, {s(S_T0)}, {128 * 1280}")
        b(f"s_add_u32 {s(S_WTAB + j)}, {s(S_WOO)}, {s(S_T1)}")
        b(f"s_lshl_b32 {s(S_T1)}, {s(S_T0)}, 12")
        b(f"s_add_u32 {s(S_OTAB + j)}, {s(S_T2)}, {s(S_T1)}")
    b(f"""
    s_mul_i32 {s(S_T2)}, s2, 20480
    ; wo DMA voffset n: (8n + l/8)*1280 + (((l%8) ^ (G<<1))*16) - 1024n
    v_lshlrev_b32 v8, 1, v1
    v_xor_b32 v8, v5, v8
    v_lshl_add_u32 {v(V_WDD)}, v8, 4, v10
    v_add_u32 {v(V_WDD + 1)}, {8 * 1280 - 1024}, {v(V_WDD)}
    v_add_u32 {v(V_WDD + 2)}, {2 * (8 * 1280 - 1024)}, {v(V_WDD)}
    v_add_u32 {v(V_WDD + 3)}, {3 * (8 * 1280 - 1024)}, {v(V_WDD)}
    """)
    b.extend(qp)
    pre = b

    mid = Block()
    mid("s_barrier")
    stamp(mid)
    for kt in range(2):
        for st in range(4):
            mid(k_read(0, kt, st))
    for qt in range(4):
        for st in range(4):
            acc = V_QACC + 4 * (8 * qt + 2 * st)
            for i in range(4):
                mid(f"v_pk_mul_f32 {v(acc + 2 * i, 2)}, {v(acc + 2 * i, 2)}, {s(S_SCALE, 2)}")
            for i in range(4):
                mid(f"v_cvt_pk_bf16_f32 {v(V_Q + 16 * qt + 4 * st + i)}, {v(acc + 2 * i)}, {v(acc + 2 * i + 1)}")
    mid("s_waitcnt lgkmcnt(0)")
    mid("s_nop 0")
    init = [f"v_accvgpr_write_b32 {a(A_V + 32 + i)}, 0" for i in range(32)]
    init += [f"v_mov_b32 {v(V_P + 8 + i)}, 0" for i in range(8)]
    init += [f"v_mov_b32 {v(V_LM + i)}, 0" for i in range(8)]
    init += [f"v_mov_b32 {v(V_L + i)}, 0" for i in range(4)]
    init += [f"v_mov_b32 {v(V_ONE + i)}, 0x3f803f80" for i in range(4)]
    mfp = [qk(qt, 0, st, 0, "0") for qt in range(4) for st in range(4)]
    gaps = [init[2 * i:2 * i + 2] for i in range(16)]
    mid.extend(interleave(mfp, gaps))
    mid.extend(init[32:])
    for qt in range(4):
        S = V_S + 8 * qt
        m = V_T + 2 * qt
        mid(f"v_max3_f32 {v(m)}, {v(S)}, {v(S + 1)}, {v(S + 2)}")
        mid(f"v_max_f32 {v(m)}, {v(m)}, {v(S + 3)}")
        mid(f"v_mov_b32 {v(m + 1)}, {v(m)}")
    for swap in ("v_permlane16_swap_b32", "v_permlane32_swap_b32"):
        mid("s_nop 1")
        for qt in range(4):
            m = V_T + 2 * qt
            mid(f"{swap} {v(m)}, {v(m + 1)}")
        for qt in range(4):
            m = V_T + 2 * qt
            mid(f"v_max_f32 {v(m)}, {v(m)}, {v(m + 1)}")
            if swap.startswith("v_permlane16"):
                mid(f"v_mov_b32 {v(m + 1)}, {v(m)}")
    for qt in range(4):
        for i in range(4):
            mid(f"v_sub_f32 {v(V_NM + 4 * qt + i)}, 0, {v(V_T + 2 * qt)}")
    for e in range(16):
        mid(f"v_mov_b32 {v(V_S + 16 + e)}, {'0' if E1[e] < NG else f32(-1e30)}")
    mid(f"s_mov_b32 {s(S_CNT)}, 7")
    stamp(mid)

    body = Block()
    for t in range(8):
        body.extend(subtile(t))
    if OPT["stamp"] > 1:
        body(f"s_sub_u32 {s(S_T0)}, 22, {s(S_CNT)}")
        body(f"s_mov_b32 m0, {s(S_T0)}")
        stamp(body, "m0")
        body(f"s_cmp_lg_u32 {s(S_CNT)}, 0")
    body("s_cbranch_scc1 L1_loop")

    post = Block()
    for t in range(8):
        post.extend(subtile(t, last=True))
    if OPT["stamp"] > 1:
        stamp(post, 23)
    for e in range(16):
        if E1[e] >= NG:
            post(sm_exp(1, e))
    post("s_nop 0")
    for g in range(NG):
        for pair, kind, e, wrapped in VPLAN[g]:
            if wrapped:
                post(vop(pair, kind, e))
    post("s_nop 1")
    post.extend(pv_pair(1, 7))
    stamp(post)

    def lane_sum(blk, regs):
        for swap in ("v_permlane16_swap_b32", "v_permlane32_swap_b32"):
            for i, r in enumerate(regs):
                blk(f"v_mov_b32 {v(V_T + i)}, {v(r)}")
            blk("s_nop 1")
            for i, r in enumerate(regs):
                blk(f"{swap} {v(r)}, {v(V_T + i)}")
            for i, r in enumerate(regs):
                blk(f"v_add_f32 {v(r)}, {v(r)}, {v(V_T + i)}")

    lane_sum(post, [V_L, V_L + 2])
    post(f"v_mov_b32 {v(V_L + 1)}, {v(V_LM)}")
    post(f"v_mov_b32 {v(V_L + 3)}, {v(V_LM + 4)}")
    chk = Block()
    chk(f"""
    v_add_f32 {v(V_T)}, {v(V_L)}, {v(V_L + 1)}
    v_add_f32 {v(V_T + 1)}, {v(V_L + 2)}, {v(V_L + 3)}
    v_add_f32 {v(V_T)}, {v(V_T)}, {v(V_T + 1)}
    s_mov_b32 {s(S_T0)}, {f32(2.0 ** 40)}
    v_cmp_nlt_f32 vcc, {v(V_T)}, {s(S_T0)}
    s_nop 1
    s_cbranch_vccnz L1_fallback
    """)
    epi = Block()
    epi("L1_epi:")
    tail1, tail2 = oproj_tail()
    epi.extend(tail1)
    epi("L1_poll:")
    epi(f"""
    buffer_load_dword v8, v9, {s(SRD_DBG, 4)}, {s(S_T0)} offen sc1
    s_sub_u32 {s(S_CNT)}, {s(S_CNT)}, 1
    s_cbranch_scc1 L1_go
    s_waitcnt vmcnt(0)
    v_readfirstlane_b32 {s(S_T1)}, v8
    s_nop 0
    s_cmp_lt_u32 {s(S_T1)}, 8
    s_cbranch_scc1 L1_poll
    L1_go:
    s_waitcnt vmcnt(0)
    """)
    stamp(epi)
    epi.extend(tail2)
    epi("L1_fin:")
    if OPT["stamp"]:
        epi("s_waitcnt vmcnt(0)")
        stamp(epi, 25)
        stamp_store(epi, "L1_end")
    epi("L1_end:")
    epi("s_endpgm")

    fb = Block()
    fb("L1_fallback:")
    fb(f"""
    s_waitcnt vmcnt(0) lgkmcnt(0)
    s_sub_u32 {s(S_T0)}, {s(S_CB)}, {LDS_V - 32768}
    v_xor_b32 v8, v2, v1
    v_lshlrev_b32 v8, 4, v8
    v_lshl_add_u32 {v(V_KD)}, v1, 8, v8
    v_xor_b32 {v(V_KD + 1)}, 64, {v(V_KD)}
    v_xor_b32 {v(V_KD + 2)}, 0x80, {v(V_KD)}
    v_xor_b32 {v(V_KD + 3)}, 0xc0, {v(V_KD)}
    """)
    for i in range(4):
        fb(f"v_add_u32 {v(V_KA + i)}, {s(S_CB)}, {v(V_KA + i)}")
    for i in range(8):
        fb(f"v_add_u32 {v(V_VA + i)}, {s(S_T0)}, {v(V_VA + i)}")
    for i in range(128):
        fb(f"v_accvgpr_write_b32 {a(A_O + i)}, 0")
    for qt in range(4):
        fb(f"v_mov_b32 {v(V_L + qt)}, 0")
        fb(f"v_mov_b32 {v(V_M + qt)}, {f32(-3e38)}")
    fb(f"s_mov_b32 {s(S_KV)}, 0")
    fbl = Block()
    for q in range(4):
        fbl(f"s_add_u32 m0, {s(S_CB)}, {8192 * q}")
        fbl(f"s_add_u32 {s(S_T0)}, {s(S_KV)}, {4096 * q}")
        for n in range(4):
            fbl(k_dma(n, s(S_T0)))
        fbl(f"s_add_u32 m0, {s(S_CB)}, {32768 + 8192 * q}")
        fbl("s_nop 0")
        for n in range(4):
            fbl(v_dma(n, s(S_T0)))
    fbl("s_waitcnt vmcnt(0)")
    for u in range(2):
        for kt in range(2):
            for st in range(4):
                fbl(f"ds_read_b128 {a(A_K + 16 * kt + 4 * st, 4)}, {v(V_KA + st)} offset:{(2 * u + kt) * 8192}")
        for dt in range(8):
            for kt in range(2):
                fbl(f"ds_read_b64_tr_b16 {a(A_V + 4 * dt + 2 * kt, 2)}, {v(V_VA + dt)} offset:{(2 * u + kt) * 8192}")
            if dt % 2:
                fbl("s_waitcnt lgkmcnt(0)")
        fbl.extend(qk_pair(0, 0, True) + qk_pair(1, 0, True))
        fbl("s_nop 7")
        for qt in range(4):
            S = V_S + 8 * qt
            m, m2, al = V_T, V_T + 1, V_T + 2
            M = V_M + qt
            fbl(f"v_max3_f32 {v(m)}, {v(S)}, {v(S + 1)}, {v(M)}")
            for i in range(2, 8, 2):
                fbl(f"v_max3_f32 {v(m)}, {v(m)}, {v(S + i)}, {v(S + i + 1)}")
            for swap in ("v_permlane16_swap_b32", "v_permlane32_swap_b32"):
                fbl(f"v_mov_b32 {v(m2)}, {v(m)}")
                fbl("s_nop 1")
                fbl(f"{swap} {v(m)}, {v(m2)}")
                fbl(f"v_max_f32 {v(m)}, {v(m)}, {v(m2)}")
            fbl(f"v_sub_f32 {v(al)}, {v(M)}, {v(m)}")
            fbl(f"v_exp_f32 {v(al)}, {v(al)}")
            fbl(f"v_mov_b32 {v(M)}, {v(m)}")
            fbl(f"v_mul_f32 {v(V_L + qt)}, {v(V_L + qt)}, {v(al)}")
            for i in range(32):
                r = A_O + 32 * qt + i
                fbl(f"v_accvgpr_read_b32 {v(m2)}, {a(r)}")
                fbl(f"v_mul_f32 {v(m2)}, {v(m2)}, {v(al)}")
                fbl(f"v_accvgpr_write_b32 {a(r)}, {v(m2)}")
            pair, e0 = qt // 2, 8 * (qt % 2)
            for e in range(8):
                fbl(f"v_sub_f32 {v(S + e)}, {v(S + e)}, {v(m)}")
            for e in range(8):
                fbl(sm_exp(pair, e0 + e))
            fbl("s_nop 0")
            for e in range(8):
                fbl(sm_add(pair, e0 + e))
            for e in range(1, 8, 2):
                fbl(sm_cvt(pair, e0 + e))
            fbl("s_nop 1")
            for dt in range(8):
                fbl(pv(qt, dt, 0))
        fbl("s_nop 7")
    fbl(f"s_add_u32 {s(S_KV)}, {s(S_KV)}, 16384")
    fbl(f"s_cmp_lt_u32 {s(S_KV)}, 524288")
    fbl("s_cbranch_scc1 L1_fbloop")
    fbe = Block()
    lane_sum(fbe, [V_L + i for i in range(4)])
    for c in range(10):
        fbe(cell_m0(c))
        fbe(wo_off(c))
        for n in range(4):
            fbe(wo_dma(n))
    fbe("s_branch L1_epi")

    tr = pre.instrs() + mid.instrs() + body.instrs() * 2 + post.instrs() + chk.instrs() + epi.instrs()
    check_trace(tr, "main")
    check_trace(post.instrs() + chk.instrs() + fb.instrs() + fbl.instrs() * 2 + fbe.instrs() + epi.instrs(), "fallback")

    out = Block()
    out.extend(pre)
    out.extend(mid)
    out(".p2align 6")
    out("L1_loop:")
    out.extend(body)
    out.extend(post)
    out.extend(chk)
    out.extend(epi)
    out.extend(fb)
    out("L1_fbloop:")
    out.extend(fbl)
    out.extend(fbe)
    return out


def oproj_tail():
    V_AA = 16
    V_OA = 24
    V_OUT = 29
    V_R = 32
    V_TMP = 48
    OP = " sc1" if OPT["osc1"] else ""
    NPRE = 16
    t1 = Block()
    vm = [("wo", i) for i in range(10) for _ in range(4)]

    def wait_vm(tag):
        last = max(i for i, x in enumerate(vm) if x == tag)
        return f"s_waitcnt vmcnt({min(63, len(vm) - 1 - last)})"

    for qt in range(4):
        t1(f"v_rcp_f32 {v(V_R + 2 * qt)}, {v(V_L + qt)}")
    t1(f"""
    v_lshl_add_u32 v8, v1, 2, v7
    v_bfe_u32 v9, v8, 1, 2
    v_lshlrev_b32 v8, 7, v8
    v_lshl_add_u32 v8, v4, 3, v8
    v_lshl_add_u32 v8, v9, 5, v8
    v_add_u32 {v(V_AA)}, {s(S_CB)}, v8
    v_add_u32 {v(V_AA + 4)}, {s(S_XC)}, v8
    s_lshl_b32 {s(S_T0)}, {s(S_WAVE)}, 19
    s_lshl_b32 {s(S_T1)}, {s(S_H)}, 12
    s_add_u32 {s(S_T0)}, {s(S_T0)}, {s(S_T1)}
    """)
    for qt in range(4):
        t1(f"v_mov_b32 {v(V_R + 2 * qt + 1)}, {v(V_R + 2 * qt)}")
    for wdw in range(2):
        for nt in range(1, 4):
            t1(f"v_xor_b32 {v(V_AA + 4 * wdw + nt)}, {32 * nt}, {v(V_AA + 4 * wdw)}")

    def quad(q, off=0, n=4):
        kind, base = q
        return (a if kind == "a" else v)(base + off, n)

    areg = {}
    for i in range(8):
        areg[i] = [("a", 128 + 16 * i + 4 * nt) for nt in range(4)]
        areg[8 + i] = [("v", 112 + 16 * i + 4 * nt) for nt in range(4)]
    free = [("a", 80 + 4 * i) for i in range(12)] + [("v", 48 + 4 * i) for i in range(16)]

    def a_reads(i):
        base, const = CELLS[i % 10]
        wdw = 1 if base == S_XC else 0
        return [f"ds_read_b64_tr_b16 {quad(areg[i][nt], 2 * e, 2)}, {v(V_AA + 4 * wdw + nt)} offset:{const + 2048 * e}"
                for nt in range(4) for e in range(2)]

    def wo_grp(i):
        out = [cell_m0(i), wo_off(i)]
        for n in range(4):
            out.append(wo_dma(n))
            vm.append(("wo", i))
        return out

    pend = []
    for i in range(10):
        pend.append(("w", i))
        pend += a_reads(i)
    idx = 0
    for qt in range(4):
        for st in range(4):
            tb = V_TMP + 12 * (idx % 4)
            idx += 1
            for i in range(8):
                t1(f"v_accvgpr_read_b32 {v(tb + i)}, {a(A_O + 32 * qt + 8 * st + i)}")
            for i in range(4):
                t1(f"v_pk_mul_f32 {v(tb + 2 * i, 2)}, {v(tb + 2 * i, 2)}, {v(V_R + 2 * qt, 2)}")
            for i in range(4):
                t1(f"v_cvt_pk_bf16_f32 {v(tb + 8 + i)}, {v(tb + 2 * i)}, {v(tb + 2 * i + 1)}")
            t1(f"buffer_store_dwordx4 {v(tb + 8, 4)}, {v(V_OD)}, {s(SRD_O, 4)}, {s(S_T0)} offen offset:{st * 1024} sc1")
            vm.append(("st", 0))
            n = 0
            while pend and n < 5:
                x = pend.pop(0)
                if isinstance(x, tuple):
                    t1(wait_vm(("wo", x[1])))
                else:
                    t1(x)
                    n += 1
        t1(f"s_add_u32 {s(S_T0)}, {s(S_T0)}, 131072")
    assert not pend
    stamp(t1)
    t1("s_waitcnt lgkmcnt(0)")
    PG = OPT["pubgrp"]
    for i in range(10, 10 + PG):
        t1.extend(wo_grp(i))
    t1(wait_vm(("st", 0)))
    t1(f"""
    s_barrier
    s_cmp_lg_u32 {s(S_WAVE)}, 0
    s_cbranch_scc1 L1_nosig
    s_lshr_b32 {s(S_T0)}, {s(S_H)}, 3
    s_lshl_b32 {s(S_T1)}, {s(S_B)}, 2
    s_add_u32 {s(S_T0)}, {s(S_T0)}, {s(S_T1)}
    s_lshl_b32 {s(S_T0)}, {s(S_T0)}, 2
    v_mov_b32 v8, 1
    v_mov_b32 v9, 0
    s_mov_b64 exec, 1
    buffer_atomic_add v8, v9, {s(SRD_DBG, 4)}, {s(S_T0)} offen sc1
    s_mov_b64 exec, -1
    L1_nosig:
    """)
    stamp(t1)
    t1(f"""
    s_cmp_ge_u32 {s(S_IDX)}, 30
    s_cbranch_scc1 L1_fin
    """)
    for i in range(10 + PG, 20):
        t1.extend(wo_grp(i))
    for i in range(10, NPRE):
        t1(wait_vm(("wo", i)))
        t1.extend(a_reads(i))
        if i > 10:
            t1("s_waitcnt lgkmcnt(8)")
            t1.extend(wo_grp(i - 1 + 10))
    t1("s_waitcnt lgkmcnt(0)")
    t1.extend(wo_grp(NPRE - 1 + 10))
    t1(f"""
    v_mov_b32 {v(V_OA)}, {v(V_OD)}
    v_add_u32 {v(V_OA + 1)}, 0x20000, {v(V_OD)}
    v_add_u32 {v(V_OA + 2)}, 0x40000, {v(V_OD)}
    v_add_u32 {v(V_OA + 3)}, 0x60000, {v(V_OD)}
    v_add_u32 {v(V_OA + 4)}, 0x80000, {v(V_OD)}
    v_mul_u32_u24 v8, 1280, v2
    v_lshl_add_u32 {v(V_OUT)}, v1, 3, v8
    v_mov_b32 v9, 0
    s_and_b32 {s(S_T0)}, s2, 7
    s_lshl_b32 {s(S_T0)}, {s(S_T0)}, 2
    s_add_u32 {s(S_T0)}, {s(S_T0)}, {s(S_WAVE)}
    s_lshl_b32 {s(S_T0)}, {s(S_T0)}, 2
    s_mov_b32 {s(S_CNT)}, 0x40000
    """)
    stamp(t1)

    t2 = Block()
    vm.clear()
    breg = {}
    nb = [0]

    def b_loads():
        ks = nb[0]
        nb[0] += 1
        breg[ks] = [free.pop(0) for _ in range(5)]
        out = []
        for mt in range(5):
            out.append(f"buffer_load_dwordx4 {quad(breg[ks][mt])}, {v(V_OA + mt)}, {s(SRD_OO, 4)}, {s(S_OTAB + ks // 4)} offen offset:{(ks % 4) * 1024}{OP}")
            vm.append(("o", ks))
        return out

    while len(free) >= 5:
        t2.extend(b_loads())
    na = NPRE
    nd = NPRE + 10
    for ks in range(32):
        t2(wait_vm(("o", ks)))
        if OPT["stamp"] > 2 and ks % 4 == 0:
            stamp(t2, 52 + ks // 4)
        mf = []
        for nt in range(4):
            for mt in range(5):
                d = a(4 * (5 * nt + mt), 4)
                c = "0" if ks == 0 else d
                mf.append(f"{MF} {d}, {quad(areg[ks][nt])}, {quad(breg[ks][mt])}, {c}")
        vmem = []
        dsr = []
        done = max(i for i, x in enumerate(vm) if x == ("o", ks)) + 1
        can_dma = nd < 32 and nd - 10 < na
        if na < 32 and na - ks <= 10 and len(free) >= 4:
            areg[na] = [free.pop(0) for _ in range(4)]
            if ("wo", na) in vm:
                t2(wait_vm(("wo", na)))
            dsr = a_reads(na)
            na += 1
        while nb[0] < 32 and len(free) >= 5 and len(vm) - done <= 54 and len(vmem) < 10:
            vmem += b_loads()
        if can_dma:
            vmem += wo_grp(nd)
            nd += 1
        gaps = [[] for _ in range(20)]
        nv = sum(x.startswith("buffer") for x in vmem)
        step = max(1, 20 // max(nv, 1))
        gi = 0
        busy = set()
        for x in vmem:
            gaps[min(gi, 19)].append(x)
            if x.startswith("buffer"):
                busy.add(gi)
                gi += min(step, 4)
        gi = 0
        for x in dsr:
            while gi in busy and gi < 19:
                gi += 1
            gaps[min(gi, 19)].append(x)
            gi += 1
        t2.extend(interleave(mf, gaps))
        if dsr:
            t2("s_waitcnt lgkmcnt(0)")
        free.extend(areg[ks] + breg[ks])
    stamp(t2, 24)
    VB = 48
    t2(f"""
    s_barrier
    s_mul_i32 {s(S_T0)}, {s(S_WAVE)}, 20480
    v_add_u32 v8, {s(S_T0)}, {v(V_OD)}
    s_mul_i32 {s(S_T0)}, {s(S_WAVE)}, 5120
    v_add_u32 v10, {s(S_T0)}, {v(V_OD)}
    v_add_u32 v11, 40960, v10
    s_nop 3
    """)
    for tl in range(20):
        t2(f"ds_write_b128 v8, {a(4 * tl, 4)} offset:{tl * 1024}")
    t2("s_waitcnt lgkmcnt(0)")
    t2("s_barrier")
    for mt in range(5):
        for w in range(4):
            t2(f"ds_read_b128 {v(VB + 16 * mt + 4 * w, 4)}, v{10 + w // 2} offset:{(w % 2) * 20480 + mt * 1024}")
        if mt % 2 == 1:
            t2("s_waitcnt lgkmcnt(0)")
    t2(f"""
    s_lshl_b32 {s(S_T0)}, {s(S_CT)}, 7
    s_lshl_b32 {s(S_T1)}, {s(S_WAVE)}, 5
    s_add_u32 {s(S_T0)}, {s(S_T0)}, {s(S_T1)}
    s_waitcnt lgkmcnt(0)
    """)
    for mt in range(5):
        r = VB + 16 * mt
        for i in range(4):
            t2(f"v_add_f32 {v(r + i)}, {v(r + i)}, {v(r + 4 + i)}")
            t2(f"v_add_f32 {v(r + 8 + i)}, {v(r + 8 + i)}, {v(r + 12 + i)}")
        for i in range(4):
            t2(f"v_add_f32 {v(r + i)}, {v(r + i)}, {v(r + 8 + i)}")
        t2(f"v_cvt_pk_bf16_f32 {v(r + 4)}, {v(r)}, {v(r + 1)}")
        t2(f"v_cvt_pk_bf16_f32 {v(r + 5)}, {v(r + 2)}, {v(r + 3)}")
        t2(f"buffer_store_dwordx2 {v(r + 4, 2)}, {v(V_OUT)}, {s(SRD_OUT, 4)}, {s(S_T0)} offen")
        t2(f"s_add_u32 {s(S_T0)}, {s(S_T0)}, {16 * 1280}")
    return t1, t2


HEADER = """; Fused MHA block: q = x@wq, softmax(q k^T / sqrt(128)) v, out = o@wo   (gfx950, generated by gen/gen.py)
; Kernarg: 0 x, 8 k_cache, 16 v_cache, 24 wq, 32 wo, 40 out, 48 debug, 56 ws
; @launch grid=(256,1,1) block=(256,1,1) lds=163840
.amdgcn_target "amdgcn-amd-amdhsa--gfx950"
.text
"""


def kd(name, vg, acc):
    return f""".p2align 6
.amdhsa_kernel {name}
  .amdhsa_next_free_vgpr {vg}
  .amdhsa_next_free_sgpr 102
  .amdhsa_accum_offset {acc}
  .amdhsa_group_segment_fixed_size 0
  .amdhsa_kernarg_size 64
  .amdhsa_user_sgpr_count 2
  .amdhsa_user_sgpr_kernarg_segment_ptr 1
  .amdhsa_system_sgpr_workgroup_id_x 1
.end_amdhsa_kernel
"""


def main():
    k1 = kernel()
    txt = HEADER
    txt += f".globl {KNAME}\n.p2align 8\n.type {KNAME},@function\n" + k1.text()
    txt += '.section .rodata,"a"\n' + kd(KNAME, 512, 256)
    open(sys.argv[1], "w").write(txt)


main()
```

```python
import math
import struct
import sys
from asmlib import *

OPT = dict(stamp=0, nt=1, nocompute=0, nodma=0, nolds=0, osc1=1, wotouch=1, kvinit=2, kvrot=0, orot=1, pubgrp=6, qkord=0, pvord=0, cap=0, dtight=0, pol=0, diagpace=0, ones=1, noexp=0, nova=0, nomf=0, dbgout=0, adk=0, padzero=1)
for arg in sys.argv[2:]:
    k, val = arg.split("=")
    assert k in OPT, k
    OPT[k] = int(val)


def f32(x):
    return "0x%08x" % struct.unpack("<I", struct.pack("<f", x))[0]


SCALE = math.log2(math.e) / math.sqrt(128.0)
MF = "v_mfma_f32_16x16x32_bf16"
KVPOL = (" nt" if OPT["nt"] else "")
if OPT["pol"]:
    KVPOL = {1: " sc1 nt", 2: " sc0 nt", 3: " sc0 sc1 nt", 4: " sc1", 5: " sc0 sc1"}[OPT["pol"]]
KNAME = "standalone__mha_block_cached__near_ridge_kernel"

S_WAVE = 3
S_B, S_H = 6, 7
SRD_X, SRD_WQ, SRD_K, SRD_V, SRD_O = 8, 12, 16, 20, 24
S_X0, S_X1, S_WQO = 28, 29, 30
S_XM0, S_WM0 = 31, 32
S_WOO, S_CB, S_CT = 33, 34, 35
S_OTAB = 36
S_IDX, S_XC = 46, 47
S_W2048 = 49
S_KV = 50
S_CNT = 51
S_T0, S_T1, S_T2 = 52, 53, 54
S_ROT = 55
S_SCALE = 56
S_STAMP = 60
SRD_WO, SRD_OO, SRD_OUT, SRD_DBG = 64, 68, 72, 80
S_WTAB = 92

V_KA = 16
V_VA = 20
V_KD = 28
V_VD = 32
V_XD = 34
V_WD = 38
V_WA = 40
V_XA = 44
V_Q = 48
V_S = 112
V_P = 144
V_NM = 160
V_LM = 176
V_L = 184
V_ONE = 188
V_M = 192
V_T = 196
V_QACC = 112
V_ST = 240
V_DUM = 242
V_OD = 243
V_WDD = 244

A_O = 0
A_K = 128
A_V = 192
A_QA = 128
A_QB = 192

LDS_X0 = 32768
LDS_WQ = 131072
LDS_V = 65536


def unit(t):
    return (t % 8) * 8192


nstamp = [0]


def stamp(b, lane=None):
    if not OPT["stamp"]:
        return
    if lane is None:
        lane = nstamp[0]
        nstamp[0] += 1
    b(f"s_memrealtime {s(S_STAMP, 2)}")
    b(f"s_memtime {s(S_STAMP + 2, 2)}")
    b("s_waitcnt lgkmcnt(0)")
    b(f"v_writelane_b32 {v(V_ST)}, {s(S_STAMP)}, {lane}")
    b(f"v_writelane_b32 {v(V_ST + 1)}, {s(S_STAMP + 2)}, {lane}")


def stamp_store(b, endlabel):
    b(f"""
    s_cmp_lg_u32 {s(S_WAVE)}, 0
    s_cbranch_scc1 {endlabel}
    s_add_u32 s76, s90, 0x4000000
    s_addc_u32 s77, s91, 0
    s_mov_b32 s78, 0x100000
    s_mov_b32 s79, 0x20000
    s_lshl_b32 s4, s2, 9
    v_lshlrev_b32 v1, 3, v0
    buffer_store_dwordx2 {v(V_ST, 2)}, v1, s[76:79], s4 offen
    """)
    if OPT["dbgout"]:
        b(f"""
        s_cmp_lg_u32 s2, {OPT["dbgout"] - 1}
        s_cbranch_scc1 {endlabel}
        v_readlane_b32 s4, {v(V_ST)}, 24
        v_readlane_b32 s5, {v(V_ST)}, 25
        s_nop 3
        v_writelane_b32 {v(V_ST)}, s4, 9
        v_writelane_b32 {v(V_ST)}, s5, 10
        v_readlane_b32 s4, {v(V_ST)}, 0
        v_lshlrev_b32 v1, 2, v0
        s_nop 1
        v_subrev_u32 v2, s4, {v(V_ST)}
        s_mov_b64 exec, 0x7ff
        buffer_store_dword v2, v1, {s(SRD_DBG, 4)}, 0 offen
        """)


def k_dma(n, soff):
    return f"buffer_load_dwordx4 {v(V_KD + n)}, {s(SRD_K, 4)}, {soff} offen offset:{1024 * n}{KVPOL} lds"


def v_dma(n, soff):
    return f"buffer_load_dwordx4 {v(V_VD + n % 2)}, {s(SRD_V, 4)}, {soff} offen offset:{1024 * n}{KVPOL} lds"


def k_read(t, kt, st):
    return f"ds_read_b128 {a(A_K + 32 * (t % 2) + 16 * kt + 4 * st, 4)}, {v(V_KA + st)} offset:{unit(t) + 4096 * kt}"


def v_read(t, dt, kt):
    return f"ds_read_b64_tr_b16 {a(A_V + 32 * (t % 2) + 4 * dt + 2 * kt, 2)}, {v(V_VA + dt)} offset:{unit(t) + 4096 * kt}"


def qk(qt, kt, st, t, c0):
    d = v(V_S + 8 * qt + 4 * kt, 4)
    c = c0 if st == 0 else d
    return f"{MF} {d}, {a(A_K + 32 * (t % 2) + 16 * kt + 4 * st, 4)}, {v(V_Q + 16 * qt + 4 * st, 4)}, {c}"


def qk_pair(pair, t, zero=False):
    if OPT["qkord"] == 1:
        return [qk(qt, kt, st, t, "0" if zero else v(V_NM + 4 * qt, 4))
                for kt in range(2) for st in range(4) for qt in (2 * pair, 2 * pair + 1)]
    if OPT["qkord"] == 2:
        return [qk(qt, kt, st, t, "0" if zero else v(V_NM + 4 * qt, 4))
                for qt in (2 * pair, 2 * pair + 1) for st in range(4) for kt in range(2)]
    if OPT["qkord"] == 3:
        out = []
        q0, q1 = 2 * pair, 2 * pair + 1
        for st in range(4):
            for qt, kt in ((q0, 0), (q0, 1), (q1, 1), (q1, 0)):
                out.append(qk(qt, kt, st, t, "0" if zero else v(V_NM + 4 * qt, 4)))
        return out
    return [qk(qt, kt, st, t, "0" if zero else v(V_NM + 4 * qt, 4))
            for qt in (2 * pair, 2 * pair + 1) for kt in range(2) for st in range(4)]


def pv(qt, dt, t):
    d = a(A_O + 32 * qt + 4 * dt, 4)
    return f"{MF} {d}, {a(A_V + 32 * (t % 2) + 4 * dt, 4)}, {v(V_P + 4 * qt, 4)}, {d}"


def pv_pair(pair, t):
    out = [pv(qt, dt, t) for qt in (2 * pair, 2 * pair + 1) for dt in range(8)]
    if OPT["pvord"] == 1:
        out = [pv(qt, dt, t) for dt in range(8) for qt in (2 * pair, 2 * pair + 1)]
    d = v(V_LM + 4 * pair, 4)
    out.append(f"{MF} {d}, {v(V_ONE, 4)}, {v(V_P + 4 * (2 * pair + 1), 4)}, {d}")
    return out


def sm_exp(pair, e):
    r = v(V_S + 16 * pair + e)
    return f"v_exp_f32 {r}, {r}"


def sm_add(pair, e):
    l = v(V_L + 2 * pair + e // 8)
    return f"v_add_f32 {l}, {l}, {v(V_S + 16 * pair + e)}"


def sm_cvt(pair, e):
    return f"v_cvt_pk_bf16_f32 {v(V_P + 8 * pair + e // 2)}, {v(V_S + 16 * pair + e - 1)}, {v(V_S + 16 * pair + e)}"


NG = 66
E0 = [12 + 2 * e for e in range(16)]
E1 = [45 + 2 * e for e in range(11)] + [NG + 1 + 2 * e for e in range(5)]
V_GAPS = [0, 2, 4, 6, 8, 10, 11, 13, 15, 17, 19, 21, 23, 25, 27, 29]
K_GAPS = [39, 41, 44, 46, 50, 52, 56, 58]
D_GAPS = [37, 43, 48, 54]
AA_GAPS = [31, 33, 35, 60, 62, 64]
G_WAIT, G_BAR, G_M0A, G_M0B, G_KWAIT = 34, 35, 36, 47, 65
if OPT["dtight"]:
    D_GAPS = [37, 39, 41, 43]
    K_GAPS = [44, 46, 48, 50, 52, 54, 56, 58]
    G_M0B = 40


def plan_valu():
    cap = {g: 1 for g in V_GAPS + K_GAPS}
    cap.update({g: 2 for g in AA_GAPS})
    placed = {}
    ready = []
    per = 4
    events = {}
    for p in range(per + 1):
        for pair, E in ((0, E0), (1, E1)):
            for e, g in enumerate(E):
                ops = []
                if e % 2 == 1:
                    ops.append((0, "c", pair, e, p))
                if e < 8:
                    ops.append((1, "a", pair, e, p))
                events.setdefault(p * NG + g + 1, []).extend(ops)
    for G in range((per + 1) * NG):
        ready += events.get(G, [])
        ready.sort(key=lambda x: (x[0], x[4], x[2], x[3]))
        n = cap.get(G % NG, 0)
        take, ready = ready[:n], ready[n:]
        for _, kind, pair, e, p in take:
            placed.setdefault(G, []).append((pair, kind, e, p))
    res = {}
    for g in range(NG):
        res[g] = [(pair, kind, e, (per - 1) - p) for pair, kind, e, p in placed.get((per - 1) * NG + g, [])]
        chk = [(pair, kind, e, (per - 2) - p) for pair, kind, e, p in placed.get((per - 2) * NG + g, [])]
        assert res[g] == chk, "valu plan not periodic"
    assert sum(len(x) for x in res.values()) == 32
    return res


VPLAN = plan_valu()


def vop(pair, kind, e):
    return sm_cvt(pair, e) if kind == "c" else sm_add(pair, e)


CELLS = [(S_XC, 0), (S_CB, 0), (S_CB, 8192), (S_XC, 4096)] + [(S_CB, 8192 * u) for u in range(2, 8)]


def cell_m0(i):
    c = CELLS[i % 10]
    return f"s_add_u32 m0, {s(c[0])}, {c[1]}"


def wo_off(i):
    return f"s_add_u32 {s(S_WOO)}, {s(S_WTAB + i // 4)}, {(i % 4) * 32 * 1280}"


def wo_dma(n):
    return f"buffer_load_dwordx4 {v(V_WDD + n)}, {s(SRD_WO, 4)}, {s(S_WOO)} offen offset:{1024 * n} lds"


def subtile(t, last=False):
    mf = qk_pair(0, t) + pv_pair(1, t - 1) + qk_pair(1, t) + pv_pair(0, t)
    gaps = [[] for _ in range(NG)]
    vr = [v_read(t, dt, kt) for dt in range(8) for kt in range(2)]
    for r, g in zip(vr, V_GAPS):
        gaps[g].append(r)
    if not (last and t == 7):
        kr = [k_read(t + 1, kt, st) for kt in range(2) for st in range(4)]
        for r, g in zip(kr, K_GAPS):
            gaps[g].append(r)
        gaps[G_KWAIT].append("s_waitcnt lgkmcnt(0)")
    n = OPT['cap'] or 24
    if last:
        n = 24 + 4 + (4 if t >= 2 else 0) + (1 if OPT["wotouch"] else 0) if t < 7 else 63
    gaps[G_WAIT].append(f"s_waitcnt vmcnt({n}) lgkmcnt(0)")
    gaps[G_BAR].append("s_barrier")

    def wo_group(i, g_off, g_m0, gs):
        gaps[g_off].append(wo_off(i))
        gaps[g_m0].append(cell_m0(i))
        for n, g in enumerate(gs):
            gaps[g].append(wo_dma(n))

    if last:
        if t in (0, 2):
            wo_group({0: 0, 2: 3}[t], 1, 3, [5, 9, 14, 18])
        if t == 0 and OPT["wotouch"]:
            gaps[22].append(f"buffer_load_dword {v(V_DUM)}, v15, {s(SRD_WO, 4)}, {s(S_T2)} offen")
        wo_group({0: 1, 1: 2, 2: 4, 3: 5, 4: 6, 5: 7, 6: 8, 7: 9}[t], 32, G_M0A, D_GAPS)
    else:
        gaps[G_M0A].append(f"s_add_u32 m0, {s(S_W2048)}, {unit(t)}")
        gaps[G_M0B].append(f"s_add_u32 m0, {s(S_W2048)}, {LDS_V + unit(t)}")
        for n in range(2):
            gaps[D_GAPS[n]].append(k_dma(n, s(S_KV)))
            gaps[D_GAPS[2 + n]].append(v_dma(n, s(S_KV)))
        gaps[55].append(f"s_add_u32 {s(S_KV)}, {s(S_KV)}, 8192")
        gaps[57].append(f"s_and_b32 {s(S_KV)}, {s(S_KV)}, 0x7ffff")
        if t == 7:
            gaps[61].append(f"s_sub_u32 {s(S_CNT)}, {s(S_CNT)}, 1")
            gaps[63].append(f"s_cmp_lg_u32 {s(S_CNT)}, 0")
    for pair, E in ((0, E0), (1, E1)):
        for e, g in enumerate(E):
            gaps[g % NG].append(sm_exp(pair, e))
    for g in range(NG):
        for pair, kind, e, _ in VPLAN[g]:
            gaps[g].append(vop(pair, kind, e))
    cand = [g for g in range(NG) if len(gaps[g]) == 2 and gaps[g][0].startswith("ds_") and gaps[g][1].startswith("v_")]
    for i in range(min(OPT["adk"], len(cand))):
        g = cand[(i * len(cand)) // min(OPT["adk"], len(cand))]
        gaps[g].reverse()
    for i in range(OPT["diagpace"]):
        gaps[(7 * i + 3) % NG].append("s_nop 1")
    if OPT["nocompute"]:
        out = []
        for g in gaps:
            for x in g:
                if x.startswith(("s_", "buffer")):
                    out.append(x)
                    if " m0," in x:
                        out.append("s_nop 0")
        return out
    drop = []
    if OPT["nodma"]:
        drop += ["buffer"]
    if OPT["nolds"]:
        drop += ["ds_"]
    if OPT["noexp"]:
        drop += ["v_exp"]
    if OPT["nova"]:
        drop += ["v_add", "v_cvt"]
    if drop:
        gaps = [[x for x in g if not x.startswith(tuple(drop))] for g in gaps]
    if OPT["nomf"] == 1:
        mf = [("s_nop 3" if m.split()[1].startswith("a[") else m) for m in mf]
    if OPT["nomf"] == 2:
        mf = [("s_nop 3" if m.split()[1].startswith("v[") else m) for m in mf]
    return interleave(mf, gaps)


def flat(lst):
    out = []
    for x in lst:
        out.append(x)
        if " m0," in x:
            out.append("s_nop 0")
    return out


def qproj_phase():
    b = Block()
    issued = []

    def wq_dma(j):
        out = [f"s_add_u32 m0, {s(S_WM0)}, {(j % 4) * 8192}"]
        for n in range(2):
            out.append(f"buffer_load_dwordx4 {v(V_WD + n)}, {s(SRD_WQ, 4)}, {s(S_WQO)} offen offset:{1024 * n} lds")
            issued.append(("wq", j))
        out.append(f"s_add_u32 {s(S_WQO)}, {s(S_WQO)}, {32 * 8192}")
        return out

    def x_dma(st, g):
        out = [f"s_add_u32 m0, {s(S_XM0)}, {(st % 2) * 65536 + 4096 * g}"]
        for n in range(4):
            out.append(f"buffer_load_dwordx4 {v(V_XD + n)}, {s(SRD_X, 4)}, {s(S_X0 + g)} offen offset:{1024 * n} lds")
            issued.append(("x", st))
        out.append(f"s_add_u32 {s(S_X0 + g)}, {s(S_X0 + g)}, 128")
        return out

    def kv_unit(t):
        out = [f"s_add_u32 m0, {s(S_W2048)}, {unit(t)}"]
        out += [k_dma(n, s(S_KV)) for n in range(2)]
        out.append(f"s_add_u32 m0, {s(S_W2048)}, {LDS_V + unit(t)}")
        out += [v_dma(n, s(S_KV)) for n in range(2)]
        out.append(f"s_add_u32 {s(S_KV)}, {s(S_KV)}, 8192")
        out.append(f"s_and_b32 {s(S_KV)}, {s(S_KV)}, 0x7ffff")
        issued.extend([("kv", t)] * 4)
        return out

    def wait_for(*tags):
        last = max(i for i, x in enumerate(issued) if x in tags)
        return min(63, len(issued) - 1 - last)

    first = Block()
    first.extend(flat(wq_dma(0) + x_dma(0, 0) + x_dma(0, 1) + wq_dma(1)))
    second = Block()
    second.extend(flat(wq_dma(2) + x_dma(1, 0) + x_dma(1, 1)))
    kv0 = Block()
    for t in range(OPT["kvinit"]):
        kv0.extend(flat(kv_unit(t)))
    nkv = OPT["kvinit"]

    def a_reads(j):
        base = A_QA + 32 * (j % 2)
        return [f"ds_read_b64_tr_b16 {a(base + 4 * (2 * st + e) + 2 * jj, 2)}, {v(V_WA + st)} offset:{(j % 4) * 8192 + 1024 * jj + 8 * e}"
                for st in range(4) for e in range(2) for jj in range(2)]

    def b_reads(stg):
        base = A_QB + 32 * (stg % 2)
        return [f"ds_read_b128 {a(base + 16 * ks + 4 * qt, 4)}, {v(V_XA + 2 * (stg % 2) + ks)} offset:{2048 * qt}"
                for ks in range(2) for qt in range(4)]

    def mfmas(j):
        ab = A_QA + 32 * (j % 2)
        bb = A_QB + 32 * ((j // 2) % 2) + 16 * (j % 2)
        out = []
        for qt in range(4):
            for dtile in range(8):
                d = v(V_QACC + 4 * (8 * qt + dtile), 4)
                c = "0" if j == 0 else d
                out.append(f"{MF} {d}, {a(ab + 4 * dtile, 4)}, {a(bb + 4 * qt, 4)}, {c}")
        return out

    zero = [f"v_accvgpr_write_b32 {a(A_O + i)}, 0" for i in range(128)]
    for j in range(21):
        gaps = [[] for _ in range(32)]
        rd = []
        dm = []
        if j < 20:
            tags = [("wq", j)] + ([("x", j // 2)] if j % 2 == 0 else [])
            b(f"s_waitcnt vmcnt({wait_for(*tags)})")
            b("s_barrier")
            if j == 1:
                stamp(b)
            if OPT["stamp"] > 2:
                stamp(b, 32 + j)
            rd = (b_reads(j // 2) if j % 2 == 0 else []) + a_reads(j)
            if j % 2 == 1 and j // 2 + 2 < 10:
                dm += x_dma(j // 2 + 2, 0)
            if j % 2 == 0 and j >= 2 and j // 2 + 1 < 10:
                dm += x_dma(j // 2 + 1, 1)
            if j + 3 < 20:
                dm += wq_dma(j + 3)
        if j in (17, 18):
            while nkv < 4 and sum(x.startswith("buffer") for x in dm) < 6:
                dm += kv_unit(nkv)
                nkv += 1
        if j >= 19:
            for _ in range(2):
                dm += kv_unit(nkv)
                nkv += 1
        nd = sum(x.startswith("buffer") for x in dm)
        step = 5 if nd <= 6 else 4
        gi = 1
        busy = set()
        for d in dm:
            if d.startswith("buffer"):
                gaps[gi].append(d)
                busy.add(gi)
                gi += step
            else:
                gaps[min(gi - 1, 31)].append(d)
        gi = 0
        for r in rd:
            while gi in busy:
                gi += 1
            scal = len(gaps[gi])
            gaps[gi].append(r)
            if zero and j > 0 and scal == 0:
                gaps[gi].append(zero.pop(0))
            gi += 1
        if j == 0:
            for g in gaps:
                b.extend(flat(g))
        else:
            b.extend(interleave(mfmas(j - 1), gaps))
        if j < 20:
            b("s_waitcnt lgkmcnt(0)")
    assert not zero and nkv == 8
    b(f"s_waitcnt vmcnt({wait_for(('kv', 0))})")
    return first, second, kv0, b


def kernel():
    b = Block()
    b(KNAME + ":")
    b(f"""
    s_load_dwordx4 s[36:39], s[0:1], 0
    s_load_dwordx4 s[40:43], s[0:1], 16
    s_load_dwordx4 s[84:87], s[0:1], 32
    s_load_dwordx4 s[88:91], s[0:1], 48
    s_cmp_ge_u32 s2, 256
    s_cbranch_scc1 L1_end
    v_lshlrev_b32 v15, 7, v0
    v_lshrrev_b32 v1, 6, v0
    v_and_b32 v0, 63, v0
    v_readfirstlane_b32 {s(S_WAVE)}, v1
    s_and_b32 s4, s2, 7
    s_lshr_b32 {s(S_IDX)}, s2, 3
    s_and_b32 {s(S_B)}, s4, 1
    s_lshl_b32 {s(S_B)}, {s(S_B)}, 2
    s_and_b32 {s(S_H)}, {s(S_IDX)}, 3
    s_add_u32 {s(S_B)}, {s(S_B)}, {s(S_H)}
    s_lshr_b32 {s(S_H)}, s4, 1
    s_lshl_b32 {s(S_H)}, {s(S_H)}, 3
    s_lshr_b32 s5, {s(S_IDX)}, 2
    s_add_u32 {s(S_H)}, {s(S_H)}, s5
    s_lshl_b32 {s(S_W2048)}, {s(S_WAVE)}, 11
    """)
    b(f"""
    v_lshrrev_b32 v1, 4, v0
    v_and_b32 v2, 15, v0
    v_lshrrev_b32 v3, 3, v0
    v_and_b32 v5, 7, v0
    ; wq DMA voffsets: (4n + G)*8192 + ((l%16) ^ (G<<2))*16 - 1024n
    v_lshlrev_b32 v9, 2, v1
    v_xor_b32 v9, v2, v9
    v_lshlrev_b32 v9, 4, v9
    v_lshl_add_u32 {v(V_WD)}, v1, 13, v9
    v_add_u32 {v(V_WD + 1)}, {4 * 8192 - 1024}, {v(V_WD)}
    ; x DMA voffsets: (8n + l/8)*1280 + ((l%8) ^ (4(n&1) + G))*16 - 1024n
    v_xor_b32 v8, v5, v1
    v_lshlrev_b32 v8, 4, v8
    v_mul_u32_u24 v10, 1280, v3
    v_add_u32 {v(V_XD)}, v10, v8
    v_xor_b32 v8, 64, v8
    v_add_u32 v11, v10, v8
    v_add_u32 {v(V_XD + 1)}, {8 * 1280 - 1024}, v11
    v_add_u32 {v(V_XD + 2)}, {2 * (8 * 1280 - 1024)}, {v(V_XD)}
    v_add_u32 {v(V_XD + 3)}, {3 * (8 * 1280 - 1024)}, v11
    s_mul_i32 {s(S_X0)}, {s(S_WAVE)}, {64 * 1280}
    s_add_u32 {s(S_X1)}, {s(S_X0)}, {32 * 1280}
    s_lshl_b32 {s(S_WQO)}, {s(S_WAVE)}, 16
    s_lshl_b32 {s(S_XC)}, {s(S_WAVE)}, 13
    s_add_u32 {s(S_XM0)}, {s(S_XC)}, {LDS_X0}
    s_add_u32 {s(S_XC)}, {s(S_XC)}, {LDS_WQ}
    s_add_u32 {s(S_WM0)}, {s(S_W2048)}, {LDS_WQ}
    s_mul_i32 {s(S_T0)}, {s(S_B)}, 307200
    s_lshl_b32 {s(S_T1)}, {s(S_H)}, 8
    s_mov_b32 {s(SRD_X + 2)}, 307200
    s_mov_b32 {s(SRD_X + 3)}, 0x20000
    s_sub_u32 {s(SRD_WQ + 2)}, {640 * 8192}, {s(S_T1)}
    s_mov_b32 {s(SRD_WQ + 3)}, 0x20000
    s_waitcnt lgkmcnt(0)
    s_add_u32 {s(SRD_X)}, s36, {s(S_T0)}
    s_addc_u32 {s(SRD_X + 1)}, s37, 0
    s_add_u32 {s(SRD_WQ)}, s42, {s(S_T1)}
    s_addc_u32 {s(SRD_WQ + 1)}, s43, 0
    """)
    stamp(b)
    first, second, kv0, qp = qproj_phase()
    b.extend(first)
    b(f"""
    v_and_b32 v4, 3, v0
    v_bfe_u32 v7, v0, 2, 2
    v_lshl_add_u32 v8, v1, 3, v7
    v_lshlrev_b32 v8, 8, v8
    v_lshl_add_u32 v8, v7, 6, v8
    v_lshl_add_u32 v8, v4, 4, v8
    v_add_u32 {v(V_WA)}, {LDS_WQ}, v8
    v_xor_b32 {v(V_WA + 1)}, 64, {v(V_WA)}
    v_xor_b32 {v(V_WA + 2)}, 0x80, {v(V_WA)}
    v_xor_b32 {v(V_WA + 3)}, 0xc0, {v(V_WA)}
    ; x read: LDS_X0 + w*8192 + (l%16)*128 + ((G ^ ((l%16)>>1))*16) ^ (ks*64)
    v_lshrrev_b32 v8, 1, v2
    v_xor_b32 v8, v1, v8
    v_lshlrev_b32 v8, 4, v8
    v_lshl_add_u32 v8, v2, 7, v8
    v_add_u32 {v(V_XA)}, {s(S_XM0)}, v8
    v_xor_b32 {v(V_XA + 1)}, 64, {v(V_XA)}
    v_add_u32 {v(V_XA + 2)}, 0x10000, {v(V_XA)}
    v_add_u32 {v(V_XA + 3)}, 0x10000, {v(V_XA + 1)}
    """)
    b.extend(second)
    b(f"""
    s_lshl_b32 {s(S_T0)}, {s(S_B)}, 5
    s_add_u32 {s(S_T0)}, {s(S_T0)}, {s(S_H)}
    s_lshl_b32 {s(S_T0)}, {s(S_T0)}, 19
    s_add_u32 {s(SRD_K)}, s38, {s(S_T0)}
    s_addc_u32 {s(SRD_K + 1)}, s39, 0
    s_mov_b32 {s(SRD_K + 2)}, 524288
    s_mov_b32 {s(SRD_K + 3)}, 0x20000
    s_add_u32 {s(SRD_V)}, s40, {s(S_T0)}
    s_addc_u32 {s(SRD_V + 1)}, s41, 0
    s_mov_b32 {s(SRD_V + 2)}, 524288
    s_mov_b32 {s(SRD_V + 3)}, 0x20000
    s_mul_i32 {s(S_KV)}, s2, {OPT["kvrot"] * 8192}
    s_and_b32 {s(S_KV)}, {s(S_KV)}, 0x7ffff
    s_add_u32 {s(S_KV)}, {s(S_KV)}, {s(S_W2048)}
    ; K DMA voffsets: G*256 + ((l%16) ^ (8(w&1) + 4n + G))*16 ; V: G*256 + ((l%16) ^ ((4n + G)<<1))*16
    s_and_b32 {s(S_T0)}, {s(S_WAVE)}, 1
    s_lshl_b32 {s(S_T0)}, {s(S_T0)}, 7
    v_xor_b32 v8, v2, v1
    v_lshlrev_b32 v8, 4, v8
    v_lshl_add_u32 v9, v1, 8, v8
    v_xor_b32 {v(V_KD)}, {s(S_T0)}, v9
    v_xor_b32 {v(V_KD + 1)}, 64, {v(V_KD)}
    v_lshlrev_b32 v9, 1, v1
    v_xor_b32 v9, v2, v9
    v_lshlrev_b32 v9, 4, v9
    v_lshl_add_u32 {v(V_VD)}, v1, 8, v9
    v_xor_b32 {v(V_VD + 1)}, 0x80, {v(V_VD)}
    """)
    b.extend(kv0)
    b(f"""
    s_mul_i32 {s(S_T0)}, {s(S_B)}, {15 * 131072}
    s_add_u32 {s(SRD_O)}, s90, {s(S_T0)}
    s_addc_u32 {s(SRD_O + 1)}, s91, 0
    s_mov_b32 {s(SRD_O + 2)}, {15 * 131072}
    s_mov_b32 {s(SRD_O + 3)}, 0x20000
    ; K read: (l%16)*256 + ((G ^ (l%16))*16) ^ (s*64)
    v_lshl_add_u32 {v(V_KA)}, v2, 8, v8
    v_xor_b32 {v(V_KA + 1)}, 64, {v(V_KA)}
    v_xor_b32 {v(V_KA + 2)}, 0x80, {v(V_KA)}
    v_xor_b32 {v(V_KA + 3)}, 0xc0, {v(V_KA)}
    v_lshl_add_u32 v8, v1, 2, v7
    v_and_b32 v9, 7, v8
    v_lshlrev_b32 v8, 8, v8
    v_lshl_add_u32 v8, v9, 5, v8
    v_lshl_add_u32 v8, v4, 3, v8
    v_add_u32 {v(V_VA)}, {LDS_V}, v8
    """)
    for dt in range(1, 8):
        b(f"v_xor_b32 {v(V_VA + dt)}, {32 * dt}, {v(V_VA)}")
    b(f"""
    v_lshlrev_b32 {v(V_OD)}, 4, v0
    s_mov_b32 {s(S_SCALE)}, {f32(SCALE)}
    s_mov_b32 {s(S_SCALE + 1)}, {f32(SCALE)}
    ; ---- O-projection tile of this workgroup: batch s2%8, row tile idx/10, column tile idx%10
    s_mul_i32 {s(S_T1)}, {s(S_IDX)}, 26
    s_lshr_b32 {s(S_T1)}, {s(S_T1)}, 8
    s_mul_i32 {s(S_T0)}, {s(S_T1)}, 10
    s_sub_u32 {s(S_CT)}, {s(S_IDX)}, {s(S_T0)}
    s_and_b32 {s(S_T0)}, s2, 7
    s_mul_i32 {s(S_T0)}, {s(S_T0)}, 15
    s_min_u32 {s(S_T1)}, {s(S_T1)}, 2
    s_mul_i32 {s(S_T1)}, {s(S_T1)}, 5
    s_add_u32 {s(S_T0)}, {s(S_T0)}, {s(S_T1)}
    s_lshl_b32 {s(S_T1)}, {s(S_T0)}, 17
    s_add_u32 {s(SRD_OO)}, s90, {s(S_T1)}
    s_addc_u32 {s(SRD_OO + 1)}, s91, 0
    s_mov_b32 {s(SRD_OO + 2)}, {5 * 131072}
    s_mov_b32 {s(SRD_OO + 3)}, 0x20000
    s_mul_i32 {s(S_T1)}, {s(S_T0)}, {16 * 1280}
    s_add_u32 {s(SRD_OUT)}, s86, {s(S_T1)}
    s_addc_u32 {s(SRD_OUT + 1)}, s87, 0
    s_mov_b32 {s(SRD_OUT + 2)}, {80 * 1280}
    s_mov_b32 {s(SRD_OUT + 3)}, 0x20000
    s_mov_b32 {s(SRD_WO)}, s84
    s_mov_b32 {s(SRD_WO + 1)}, s85
    s_mov_b32 {s(SRD_WO + 2)}, {4096 * 1280}
    s_mov_b32 {s(SRD_WO + 3)}, 0x20000
    s_mov_b32 {s(SRD_DBG)}, s88
    s_mov_b32 {s(SRD_DBG + 1)}, s89
    s_mov_b32 {s(SRD_DBG + 2)}, 256
    s_mov_b32 {s(SRD_DBG + 3)}, 0x20000
    s_lshr_b32 {s(S_CB)}, {s(S_WAVE)}, 1
    s_lshl_b32 {s(S_CB)}, {s(S_CB)}, 16
    s_and_b32 {s(S_T0)}, {s(S_WAVE)}, 1
    s_lshl_b32 {s(S_T0)}, {s(S_T0)}, 12
    s_add_u32 {s(S_CB)}, {s(S_CB)}, {s(S_T0)}
    s_mul_i32 {s(S_WOO)}, {s(S_WAVE)}, {1024 * 1280}
    s_lshl_b32 {s(S_T0)}, {s(S_CT)}, 7
    s_add_u32 {s(S_WOO)}, {s(S_WOO)}, {s(S_T0)}
    s_lshl_b32 {s(S_T2)}, {s(S_WAVE)}, 15
    """)
    for j in range(8):
        if OPT["orot"]:
            b(f"s_add_u32 {s(S_T0)}, {s(S_CT)}, {j}")
            b(f"s_and_b32 {s(S_T0)}, {s(S_T0)}, 7")
        else:
            b(f"s_mov_b32 {s(S_T0)}, {j}")
        b(f"s_mul_i32 {s(S_T1)}, {s(S_T0)}, {128 * 1280}")
        b(f"s_add_u32 {s(S_WTAB + j)}, {s(S_WOO)}, {s(S_T1)}")
        b(f"s_lshl_b32 {s(S_T1)}, {s(S_T0)}, 12")
        b(f"s_add_u32 {s(S_OTAB + j)}, {s(S_T2)}, {s(S_T1)}")
    b(f"""
    s_mul_i32 {s(S_T2)}, s2, 20480
    ; wo DMA voffset n: (8n + l/8)*1280 + (((l%8) ^ (G<<1))*16) - 1024n
    v_lshlrev_b32 v8, 1, v1
    v_xor_b32 v8, v5, v8
    v_lshl_add_u32 {v(V_WDD)}, v8, 4, v10
    v_add_u32 {v(V_WDD + 1)}, {8 * 1280 - 1024}, {v(V_WDD)}
    v_add_u32 {v(V_WDD + 2)}, {2 * (8 * 1280 - 1024)}, {v(V_WDD)}
    v_add_u32 {v(V_WDD + 3)}, {3 * (8 * 1280 - 1024)}, {v(V_WDD)}
    """)
    b.extend(qp)
    pre = b

    mid = Block()
    mid("s_barrier")
    stamp(mid)
    for kt in range(2):
        for st in range(4):
            mid(k_read(0, kt, st))
    for qt in range(4):
        for st in range(4):
            acc = V_QACC + 4 * (8 * qt + 2 * st)
            for i in range(4):
                mid(f"v_pk_mul_f32 {v(acc + 2 * i, 2)}, {v(acc + 2 * i, 2)}, {s(S_SCALE, 2)}")
            for i in range(4):
                mid(f"v_cvt_pk_bf16_f32 {v(V_Q + 16 * qt + 4 * st + i)}, {v(acc + 2 * i)}, {v(acc + 2 * i + 1)}")
    mid("s_waitcnt lgkmcnt(0)")
    mid("s_nop 0")
    init = [f"v_accvgpr_write_b32 {a(A_V + 32 + i)}, 0" for i in range(32)]
    init += [f"v_mov_b32 {v(V_P + 8 + i)}, 0" for i in range(8)]
    init += [f"v_mov_b32 {v(V_LM + i)}, 0" for i in range(8)]
    init += [f"v_mov_b32 {v(V_L + i)}, 0" for i in range(4)]
    init += [f"v_mov_b32 {v(V_ONE + i)}, 0x3f803f80" for i in range(4)]
    mfp = [qk(qt, 0, st, 0, "0") for qt in range(4) for st in range(4)]
    gaps = [init[2 * i:2 * i + 2] for i in range(16)]
    mid.extend(interleave(mfp, gaps))
    mid.extend(init[32:])
    for qt in range(4):
        S = V_S + 8 * qt
        m = V_T + 2 * qt
        mid(f"v_max3_f32 {v(m)}, {v(S)}, {v(S + 1)}, {v(S + 2)}")
        mid(f"v_max_f32 {v(m)}, {v(m)}, {v(S + 3)}")
        mid(f"v_mov_b32 {v(m + 1)}, {v(m)}")
    for swap in ("v_permlane16_swap_b32", "v_permlane32_swap_b32"):
        mid("s_nop 1")
        for qt in range(4):
            m = V_T + 2 * qt
            mid(f"{swap} {v(m)}, {v(m + 1)}")
        for qt in range(4):
            m = V_T + 2 * qt
            mid(f"v_max_f32 {v(m)}, {v(m)}, {v(m + 1)}")
            if swap.startswith("v_permlane16"):
                mid(f"v_mov_b32 {v(m + 1)}, {v(m)}")
    for qt in range(4):
        for i in range(4):
            mid(f"v_sub_f32 {v(V_NM + 4 * qt + i)}, 0, {v(V_T + 2 * qt)}")
    if OPT["padzero"]:
        mid(f"s_cmp_lg_u32 {s(S_WAVE)}, 3")
        mid("s_cbranch_scc1 L1_nopad")
        for i in range(4):
            mid(f"v_mov_b32 {v(V_NM + 12 + i)}, {f32(-1e4)}")
        mid("L1_nopad:")
    for e in range(16):
        mid(f"v_mov_b32 {v(V_S + 16 + e)}, {'0' if E1[e] < NG else f32(-1e30)}")
    if OPT["nolds"] or OPT["nova"]:
        mid("s_waitcnt vmcnt(0)")
        mid("s_barrier")
        for tt in range(2):
            for kt in range(2):
                for st in range(4):
                    mid(k_read(tt, kt, st))
                mid("s_waitcnt lgkmcnt(0)")
            for dt in range(8):
                for kt in range(2):
                    mid(v_read(tt, dt, kt))
                mid("s_waitcnt lgkmcnt(0)")
        for i in range(16):
            mid(f"v_and_b32 {v(V_P + i)}, 0x7fff7fff, {v(V_Q + i)}")
    mid(f"s_mov_b32 {s(S_CNT)}, 7")
    stamp(mid)

    body = Block()
    for t in range(8):
        body.extend(subtile(t))
    if OPT["stamp"] > 1:
        body(f"s_sub_u32 {s(S_T0)}, 22, {s(S_CNT)}")
        body(f"s_mov_b32 m0, {s(S_T0)}")
        stamp(body, "m0")
        body(f"s_cmp_lg_u32 {s(S_CNT)}, 0")
    body("s_cbranch_scc1 L1_loop")

    post = Block()
    for t in range(8):
        post.extend(subtile(t, last=True))
    if OPT["stamp"] > 1:
        stamp(post, 23)
    for e in range(16):
        if E1[e] >= NG:
            post(sm_exp(1, e))
    post("s_nop 0")
    for g in range(NG):
        for pair, kind, e, wrapped in VPLAN[g]:
            if wrapped:
                post(vop(pair, kind, e))
    post("s_nop 1")
    post.extend(pv_pair(1, 7))
    stamp(post)

    def lane_sum(blk, regs):
        for swap in ("v_permlane16_swap_b32", "v_permlane32_swap_b32"):
            for i, r in enumerate(regs):
                blk(f"v_mov_b32 {v(V_T + i)}, {v(r)}")
            blk("s_nop 1")
            for i, r in enumerate(regs):
                blk(f"{swap} {v(r)}, {v(V_T + i)}")
            for i, r in enumerate(regs):
                blk(f"v_add_f32 {v(r)}, {v(r)}, {v(V_T + i)}")

    lane_sum(post, [V_L, V_L + 2])
    post(f"v_mov_b32 {v(V_L + 1)}, {v(V_LM)}")
    post(f"v_mov_b32 {v(V_L + 3)}, {v(V_LM + 4)}")
    chk = Block()
    chk(f"""
    v_add_f32 {v(V_T)}, {v(V_L)}, {v(V_L + 1)}
    v_add_f32 {v(V_T + 1)}, {v(V_L + 2)}, {v(V_L + 3)}
    v_add_f32 {v(V_T)}, {v(V_T)}, {v(V_T + 1)}
    s_mov_b32 {s(S_T0)}, {f32(2.0 ** 40)}
    v_cmp_nlt_f32 vcc, {v(V_T)}, {s(S_T0)}
    s_nop 1
    s_cbranch_vccnz L1_fallback
    """)
    epi = Block()
    epi("L1_epi:")
    tail1, tail2 = oproj_tail()
    epi.extend(tail1)
    epi("L1_poll:")
    epi(f"""
    buffer_load_dword v8, v9, {s(SRD_DBG, 4)}, {s(S_T0)} offen offset:128 sc1
    s_sub_u32 {s(S_CNT)}, {s(S_CNT)}, 1
    s_cbranch_scc1 L1_go
    s_waitcnt vmcnt(0)
    v_readfirstlane_b32 {s(S_T1)}, v8
    s_nop 0
    s_cmp_lt_u32 {s(S_T1)}, 8
    s_cbranch_scc1 L1_poll
    L1_go:
    s_waitcnt vmcnt(0)
    """)
    stamp(epi)
    epi.extend(tail2)
    epi("L1_fin:")
    if OPT["stamp"]:
        epi("s_waitcnt vmcnt(0)")
        stamp(epi, 25)
        stamp_store(epi, "L1_end")
    epi("L1_end:")
    epi("s_endpgm")

    fb = Block()
    fb("L1_fallback:")
    fb(f"""
    s_waitcnt vmcnt(0) lgkmcnt(0)
    s_sub_u32 {s(S_T0)}, {s(S_CB)}, {LDS_V - 32768}
    v_xor_b32 v8, v2, v1
    v_lshlrev_b32 v8, 4, v8
    v_lshl_add_u32 {v(V_KD)}, v1, 8, v8
    v_xor_b32 {v(V_KD + 1)}, 64, {v(V_KD)}
    v_xor_b32 {v(V_KD + 2)}, 0x80, {v(V_KD)}
    v_xor_b32 {v(V_KD + 3)}, 0xc0, {v(V_KD)}
    """)
    for i in range(4):
        fb(f"v_add_u32 {v(V_KA + i)}, {s(S_CB)}, {v(V_KA + i)}")
    for i in range(8):
        fb(f"v_add_u32 {v(V_VA + i)}, {s(S_T0)}, {v(V_VA + i)}")
    for i in range(128):
        fb(f"v_accvgpr_write_b32 {a(A_O + i)}, 0")
    for qt in range(4):
        fb(f"v_mov_b32 {v(V_L + qt)}, 0")
        fb(f"v_mov_b32 {v(V_M + qt)}, {f32(-3e38)}")
    fb(f"s_mov_b32 {s(S_KV)}, 0")
    fbl = Block()
    for q in range(4):
        fbl(f"s_add_u32 m0, {s(S_CB)}, {8192 * q}")
        fbl(f"s_add_u32 {s(S_T0)}, {s(S_KV)}, {4096 * q}")
        for n in range(4):
            fbl(k_dma(n, s(S_T0)))
        fbl(f"s_add_u32 m0, {s(S_CB)}, {32768 + 8192 * q}")
        fbl("s_nop 0")
        for n in range(4):
            fbl(v_dma(n, s(S_T0)))
    fbl("s_waitcnt vmcnt(0)")
    for u in range(2):
        for kt in range(2):
            for st in range(4):
                fbl(f"ds_read_b128 {a(A_K + 16 * kt + 4 * st, 4)}, {v(V_KA + st)} offset:{(2 * u + kt) * 8192}")
        for dt in range(8):
            for kt in range(2):
                fbl(f"ds_read_b64_tr_b16 {a(A_V + 4 * dt + 2 * kt, 2)}, {v(V_VA + dt)} offset:{(2 * u + kt) * 8192}")
            if dt % 2:
                fbl("s_waitcnt lgkmcnt(0)")
        fbl.extend(qk_pair(0, 0, True) + qk_pair(1, 0, True))
        fbl("s_nop 7")
        for qt in range(4):
            S = V_S + 8 * qt
            m, m2, al = V_T, V_T + 1, V_T + 2
            M = V_M + qt
            fbl(f"v_max3_f32 {v(m)}, {v(S)}, {v(S + 1)}, {v(M)}")
            for i in range(2, 8, 2):
                fbl(f"v_max3_f32 {v(m)}, {v(m)}, {v(S + i)}, {v(S + i + 1)}")
            for swap in ("v_permlane16_swap_b32", "v_permlane32_swap_b32"):
                fbl(f"v_mov_b32 {v(m2)}, {v(m)}")
                fbl("s_nop 1")
                fbl(f"{swap} {v(m)}, {v(m2)}")
                fbl(f"v_max_f32 {v(m)}, {v(m)}, {v(m2)}")
            fbl(f"v_sub_f32 {v(al)}, {v(M)}, {v(m)}")
            fbl(f"v_exp_f32 {v(al)}, {v(al)}")
            fbl(f"v_mov_b32 {v(M)}, {v(m)}")
            fbl(f"v_mul_f32 {v(V_L + qt)}, {v(V_L + qt)}, {v(al)}")
            for i in range(32):
                r = A_O + 32 * qt + i
                fbl(f"v_accvgpr_read_b32 {v(m2)}, {a(r)}")
                fbl(f"v_mul_f32 {v(m2)}, {v(m2)}, {v(al)}")
                fbl(f"v_accvgpr_write_b32 {a(r)}, {v(m2)}")
            pair, e0 = qt // 2, 8 * (qt % 2)
            for e in range(8):
                fbl(f"v_sub_f32 {v(S + e)}, {v(S + e)}, {v(m)}")
            for e in range(8):
                fbl(sm_exp(pair, e0 + e))
            fbl("s_nop 0")
            for e in range(8):
                fbl(sm_add(pair, e0 + e))
            for e in range(1, 8, 2):
                fbl(sm_cvt(pair, e0 + e))
            fbl("s_nop 1")
            for dt in range(8):
                fbl(pv(qt, dt, 0))
        fbl("s_nop 7")
    fbl(f"s_add_u32 {s(S_KV)}, {s(S_KV)}, 16384")
    fbl(f"s_cmp_lt_u32 {s(S_KV)}, 524288")
    fbl("s_cbranch_scc1 L1_fbloop")
    fbe = Block()
    lane_sum(fbe, [V_L + i for i in range(4)])
    for c in range(10):
        fbe(cell_m0(c))
        fbe(wo_off(c))
        for n in range(4):
            fbe(wo_dma(n))
    fbe("s_branch L1_epi")

    tr = pre.instrs() + mid.instrs() + body.instrs() * 2 + post.instrs() + chk.instrs() + epi.instrs()
    check_trace(tr, "main")
    check_trace(post.instrs() + chk.instrs() + fb.instrs() + fbl.instrs() * 2 + fbe.instrs() + epi.instrs(), "fallback")

    out = Block()
    out.extend(pre)
    out.extend(mid)
    out(".p2align 6")
    out("L1_loop:")
    out.extend(body)
    out.extend(post)
    out.extend(chk)
    out.extend(epi)
    out.extend(fb)
    out("L1_fbloop:")
    out.extend(fbl)
    out.extend(fbe)
    return out


def oproj_tail():
    V_AA = 16
    V_OA = 24
    V_OUT = 29
    V_R = 32
    V_TMP = 48
    OP = " sc1" if OPT["osc1"] else ""
    NPRE = 16
    t1 = Block()
    vm = [("wo", i) for i in range(10) for _ in range(4)]

    def wait_vm(tag):
        last = max(i for i, x in enumerate(vm) if x == tag)
        return f"s_waitcnt vmcnt({min(63, len(vm) - 1 - last)})"

    for qt in range(4):
        t1(f"v_rcp_f32 {v(V_R + 2 * qt)}, {v(V_L + qt)}")
    t1(f"""
    v_lshl_add_u32 v8, v1, 2, v7
    v_bfe_u32 v9, v8, 1, 2
    v_lshlrev_b32 v8, 7, v8
    v_lshl_add_u32 v8, v4, 3, v8
    v_lshl_add_u32 v8, v9, 5, v8
    v_add_u32 {v(V_AA)}, {s(S_CB)}, v8
    v_add_u32 {v(V_AA + 4)}, {s(S_XC)}, v8
    s_lshl_b32 {s(S_T0)}, {s(S_WAVE)}, 19
    s_lshl_b32 {s(S_T1)}, {s(S_H)}, 12
    s_add_u32 {s(S_T0)}, {s(S_T0)}, {s(S_T1)}
    """)
    for qt in range(4):
        t1(f"v_mov_b32 {v(V_R + 2 * qt + 1)}, {v(V_R + 2 * qt)}")
    for wdw in range(2):
        for nt in range(1, 4):
            t1(f"v_xor_b32 {v(V_AA + 4 * wdw + nt)}, {32 * nt}, {v(V_AA + 4 * wdw)}")

    def quad(q, off=0, n=4):
        kind, base = q
        return (a if kind == "a" else v)(base + off, n)

    areg = {}
    for i in range(8):
        areg[i] = [("a", 128 + 16 * i + 4 * nt) for nt in range(4)]
        areg[8 + i] = [("v", 112 + 16 * i + 4 * nt) for nt in range(4)]
    free = [("a", 80 + 4 * i) for i in range(12)] + [("v", 48 + 4 * i) for i in range(16)]

    def a_reads(i):
        base, const = CELLS[i % 10]
        wdw = 1 if base == S_XC else 0
        return [f"ds_read_b64_tr_b16 {quad(areg[i][nt], 2 * e, 2)}, {v(V_AA + 4 * wdw + nt)} offset:{const + 2048 * e}"
                for nt in range(4) for e in range(2)]

    def wo_grp(i):
        out = [cell_m0(i), wo_off(i)]
        for n in range(4):
            out.append(wo_dma(n))
            vm.append(("wo", i))
        return out

    pend = []
    for i in range(10):
        pend.append(("w", i))
        pend += a_reads(i)
    idx = 0
    for qt in range(4):
        for st in range(4):
            tb = V_TMP + 12 * (idx % 4)
            idx += 1
            for i in range(8):
                t1(f"v_accvgpr_read_b32 {v(tb + i)}, {a(A_O + 32 * qt + 8 * st + i)}")
            for i in range(4):
                t1(f"v_pk_mul_f32 {v(tb + 2 * i, 2)}, {v(tb + 2 * i, 2)}, {v(V_R + 2 * qt, 2)}")
            for i in range(4):
                t1(f"v_cvt_pk_bf16_f32 {v(tb + 8 + i)}, {v(tb + 2 * i)}, {v(tb + 2 * i + 1)}")
            t1(f"buffer_store_dwordx4 {v(tb + 8, 4)}, {v(V_OD)}, {s(SRD_O, 4)}, {s(S_T0)} offen offset:{st * 1024} sc1")
            vm.append(("st", 0))
            n = 0
            while pend and n < 5:
                x = pend.pop(0)
                if isinstance(x, tuple):
                    t1(wait_vm(("wo", x[1])))
                else:
                    t1(x)
                    n += 1
        t1(f"s_add_u32 {s(S_T0)}, {s(S_T0)}, 131072")
    assert not pend
    stamp(t1)
    t1("s_waitcnt lgkmcnt(0)")
    PG = OPT["pubgrp"]
    for i in range(10, 10 + PG):
        t1.extend(wo_grp(i))
    t1(wait_vm(("st", 0)))
    t1(f"""
    s_barrier
    s_cmp_lg_u32 {s(S_WAVE)}, 0
    s_cbranch_scc1 L1_nosig
    s_lshr_b32 {s(S_T0)}, {s(S_H)}, 3
    s_lshl_b32 {s(S_T1)}, {s(S_B)}, 2
    s_add_u32 {s(S_T0)}, {s(S_T0)}, {s(S_T1)}
    s_lshl_b32 {s(S_T0)}, {s(S_T0)}, 2
    v_mov_b32 v8, 1
    v_mov_b32 v9, 0
    s_mov_b64 exec, 1
    buffer_atomic_add v8, v9, {s(SRD_DBG, 4)}, {s(S_T0)} offen offset:128 sc1
    s_mov_b64 exec, -1
    L1_nosig:
    """)
    stamp(t1)
    t1(f"""
    s_cmp_ge_u32 {s(S_IDX)}, 30
    s_cbranch_scc1 L1_fin
    """)
    for i in range(10 + PG, 20):
        t1.extend(wo_grp(i))
    for i in range(10, NPRE):
        t1(wait_vm(("wo", i)))
        t1.extend(a_reads(i))
        if i > 10:
            t1("s_waitcnt lgkmcnt(8)")
            t1.extend(wo_grp(i - 1 + 10))
    t1("s_waitcnt lgkmcnt(0)")
    t1.extend(wo_grp(NPRE - 1 + 10))
    t1(f"""
    v_mov_b32 {v(V_OA)}, {v(V_OD)}
    v_add_u32 {v(V_OA + 1)}, 0x20000, {v(V_OD)}
    v_add_u32 {v(V_OA + 2)}, 0x40000, {v(V_OD)}
    v_add_u32 {v(V_OA + 3)}, 0x60000, {v(V_OD)}
    v_add_u32 {v(V_OA + 4)}, 0x80000, {v(V_OD)}
    v_mul_u32_u24 v8, 1280, v2
    v_lshl_add_u32 {v(V_OUT)}, v1, 3, v8
    v_mov_b32 v9, 0
    s_and_b32 {s(S_T0)}, s2, 7
    s_lshl_b32 {s(S_T0)}, {s(S_T0)}, 2
    s_add_u32 {s(S_T0)}, {s(S_T0)}, {s(S_WAVE)}
    s_lshl_b32 {s(S_T0)}, {s(S_T0)}, 2
    s_mov_b32 {s(S_CNT)}, 0x40000
    """)
    stamp(t1)

    t2 = Block()
    vm.clear()
    breg = {}
    nb = [0]

    def b_loads():
        ks = nb[0]
        nb[0] += 1
        breg[ks] = [free.pop(0) for _ in range(5)]
        out = []
        for mt in range(5):
            out.append(f"buffer_load_dwordx4 {quad(breg[ks][mt])}, {v(V_OA + mt)}, {s(SRD_OO, 4)}, {s(S_OTAB + ks // 4)} offen offset:{(ks % 4) * 1024}{OP}")
            vm.append(("o", ks))
        return out

    while len(free) >= 5:
        t2.extend(b_loads())
    na = NPRE
    nd = NPRE + 10
    for ks in range(32):
        t2(wait_vm(("o", ks)))
        if OPT["stamp"] > 2 and ks % 4 == 0:
            stamp(t2, 52 + ks // 4)
        mf = []
        for nt in range(4):
            for mt in range(5):
                d = a(4 * (5 * nt + mt), 4)
                c = "0" if ks == 0 else d
                mf.append(f"{MF} {d}, {quad(areg[ks][nt])}, {quad(breg[ks][mt])}, {c}")
        vmem = []
        dsr = []
        done = max(i for i, x in enumerate(vm) if x == ("o", ks)) + 1
        can_dma = nd < 32 and nd - 10 < na
        if na < 32 and na - ks <= 10 and len(free) >= 4:
            areg[na] = [free.pop(0) for _ in range(4)]
            if ("wo", na) in vm:
                t2(wait_vm(("wo", na)))
            dsr = a_reads(na)
            na += 1
        while nb[0] < 32 and len(free) >= 5 and len(vm) - done <= 54 and len(vmem) < 10:
            vmem += b_loads()
        if can_dma:
            vmem += wo_grp(nd)
            nd += 1
        gaps = [[] for _ in range(20)]
        nv = sum(x.startswith("buffer") for x in vmem)
        step = max(1, 20 // max(nv, 1))
        gi = 0
        busy = set()
        for x in vmem:
            gaps[min(gi, 19)].append(x)
            if x.startswith("buffer"):
                busy.add(gi)
                gi += min(step, 4)
        gi = 0
        for x in dsr:
            while gi in busy and gi < 19:
                gi += 1
            gaps[min(gi, 19)].append(x)
            gi += 1
        t2.extend(interleave(mf, gaps))
        if dsr:
            t2("s_waitcnt lgkmcnt(0)")
        free.extend(areg[ks] + breg[ks])
    stamp(t2, 24)
    VB = 48
    t2(f"""
    s_barrier
    s_mul_i32 {s(S_T0)}, {s(S_WAVE)}, 20480
    v_add_u32 v8, {s(S_T0)}, {v(V_OD)}
    s_mul_i32 {s(S_T0)}, {s(S_WAVE)}, 5120
    v_add_u32 v10, {s(S_T0)}, {v(V_OD)}
    v_add_u32 v11, 40960, v10
    s_nop 3
    """)
    for tl in range(20):
        t2(f"ds_write_b128 v8, {a(4 * tl, 4)} offset:{tl * 1024}")
    t2("s_waitcnt lgkmcnt(0)")
    t2("s_barrier")
    for mt in range(5):
        for w in range(4):
            t2(f"ds_read_b128 {v(VB + 16 * mt + 4 * w, 4)}, v{10 + w // 2} offset:{(w % 2) * 20480 + mt * 1024}")
        if mt % 2 == 1:
            t2("s_waitcnt lgkmcnt(0)")
    t2(f"""
    s_lshl_b32 {s(S_T0)}, {s(S_CT)}, 7
    s_lshl_b32 {s(S_T1)}, {s(S_WAVE)}, 5
    s_add_u32 {s(S_T0)}, {s(S_T0)}, {s(S_T1)}
    s_waitcnt lgkmcnt(0)
    """)
    for mt in range(5):
        r = VB + 16 * mt
        for i in range(4):
            t2(f"v_add_f32 {v(r + i)}, {v(r + i)}, {v(r + 4 + i)}")
            t2(f"v_add_f32 {v(r + 8 + i)}, {v(r + 8 + i)}, {v(r + 12 + i)}")
        for i in range(4):
            t2(f"v_add_f32 {v(r + i)}, {v(r + i)}, {v(r + 8 + i)}")
        t2(f"v_cvt_pk_bf16_f32 {v(r + 4)}, {v(r)}, {v(r + 1)}")
        t2(f"v_cvt_pk_bf16_f32 {v(r + 5)}, {v(r + 2)}, {v(r + 3)}")
        t2(f"buffer_store_dwordx2 {v(r + 4, 2)}, {v(V_OUT)}, {s(SRD_OUT, 4)}, {s(S_T0)} offen")
        t2(f"s_add_u32 {s(S_T0)}, {s(S_T0)}, {16 * 1280}")
    return t1, t2


HEADER = """; Fused MHA block: q = x@wq, softmax(q k^T / sqrt(128)) v, out = o@wo   (gfx950, generated by gen/gen.py)
; Kernarg: 0 x, 8 k_cache, 16 v_cache, 24 wq, 32 wo, 40 out, 48 debug, 56 ws
; @launch grid=(256,1,1) block=(256,1,1) lds=163840
.amdgcn_target "amdgcn-amd-amdhsa--gfx950"
.text
"""


def kd(name, vg, acc):
    return f""".p2align 6
.amdhsa_kernel {name}
  .amdhsa_next_free_vgpr {vg}
  .amdhsa_next_free_sgpr 102
  .amdhsa_accum_offset {acc}
  .amdhsa_group_segment_fixed_size 0
  .amdhsa_kernarg_size 64
  .amdhsa_user_sgpr_count 2
  .amdhsa_user_sgpr_kernarg_segment_ptr 1
  .amdhsa_system_sgpr_workgroup_id_x 1
.end_amdhsa_kernel
"""


def main():
    k1 = kernel()
    txt = HEADER
    txt += f".globl {KNAME}\n.p2align 8\n.type {KNAME},@function\n" + k1.text()
    txt += '.section .rodata,"a"\n' + kd(KNAME, 512, 256)
    open(sys.argv[1], "w").write(txt)


main()
```

```python
import re


def v(i, n=1):
    return f"v{i}" if n == 1 else f"v[{i}:{i + n - 1}]"


def a(i, n=1):
    return f"a{i}" if n == 1 else f"a[{i}:{i + n - 1}]"


def s(i, n=1):
    return f"s{i}" if n == 1 else f"s[{i}:{i + n - 1}]"


_REG = re.compile(r"^(-|abs\()?([vas])(?:(\d+)|\[(\d+):(\d+)\])\)?$")
TRANS = ("v_exp_f32", "v_log_f32", "v_rcp_f32", "v_rsq_f32", "v_sqrt_f32")


def regs_of(op):
    op = op.strip()
    if op in ("vcc", "exec", "m0", "scc"):
        return {op}
    if op in ("vcc_lo", "vcc_hi"):
        return {"vcc"}
    m = _REG.match(op)
    if not m:
        return set()
    k = m.group(2)
    if m.group(3) is not None:
        return {f"{k}{m.group(3)}"}
    return {f"{k}{i}" for i in range(int(m.group(4)), int(m.group(5)) + 1)}


class Ins:
    __slots__ = ("text", "mn", "kind", "rd", "wr", "srcc", "passes", "states", "ab")

    def __init__(self, text):
        self.text = text
        t = text.split(";")[0].strip()
        t = t.split(" op_sel")[0]
        parts = t.split(None, 1)
        self.mn = mn = parts[0]
        rest = parts[1] if len(parts) > 1 else ""
        ops = [o.strip() for o in rest.split(",")] if rest else []
        if ops:
            toks = ops[-1].split()
            mods = toks[1:]
            ops[-1] = toks[0] if toks else ""
        else:
            mods = []
        self.rd, self.wr, self.srcc, self.ab = set(), set(), set(), set()
        self.passes = 0
        self.states = 1
        R = [regs_of(o) for o in ops]
        if mn.startswith("v_mfma"):
            self.kind = "mfma"
            self.passes = 8 if "32x32x16" in mn else (4 if "16x16x32" in mn else 2)
            self.wr = R[0]
            self.ab = R[1] | R[2]
            self.srcc = R[3]
            self.rd = self.ab | self.srcc
        elif mn.startswith("ds_read"):
            self.kind = "ds"
            self.wr = R[0]
            self.rd = R[1]
        elif mn.startswith("ds_bpermute"):
            self.kind = "ds"
            self.wr = R[0]
            self.rd = R[1] | R[2]
        elif mn.startswith("ds_write"):
            self.kind = "ds"
            self.rd = set().union(*R)
        elif mn.startswith("buffer_load") or mn.startswith("global_load"):
            self.kind = "vmem"
            if "lds" in mods:
                self.rd = set().union(*R) | {"m0"}
                self.kind = "dma"
            else:
                self.wr = R[0]
                self.rd = set().union(*R[1:])
        elif mn.startswith("buffer_store") or mn.startswith("global_store"):
            self.kind = "store"
            self.rd = set().union(*R)
            self.ab = R[0] if mn.startswith("buffer") else R[1]
        elif mn.startswith("buffer_atomic") or mn.startswith("global_atomic"):
            self.kind = "vmem"
            self.rd = set().union(*R)
            if "sc0" in mods:
                self.wr = R[0]
        elif mn in ("buffer_wbl2", "buffer_inv"):
            self.kind = "vmem"
        elif mn.startswith("v_cmp"):
            self.kind = "valu"
            self.wr = R[0]
            self.rd = set().union(*R[1:])
        elif mn.startswith("v_permlane"):
            self.kind = "valu"
            self.wr = R[0] | R[1]
            self.rd = R[0] | R[1]
        elif mn.startswith("v_"):
            self.kind = "trans" if mn.replace("_e32", "").replace("_e64", "") in TRANS else "valu"
            self.wr = R[0]
            self.rd = set().union(*R[1:]) if len(R) > 1 else set()
            if mn.startswith("v_fmac") or mn.startswith("v_dot2c"):
                self.rd |= R[0]
            if mn.startswith("v_add_co") or mn.startswith("v_addc_co"):
                self.wr |= R[1]
                self.rd = set().union(*R[2:])
        elif mn == "s_nop":
            self.kind = "nop"
            self.states = int(ops[0], 0) + 1
        elif mn == "s_waitcnt":
            self.kind = "wait"
        elif mn.startswith("s_load") or mn in ("s_memtime", "s_memrealtime"):
            self.kind = "smem"
            self.wr = R[0]
            self.rd = set().union(*R[1:]) if len(R) > 1 else set()
        elif mn.startswith("s_cmp") or mn.startswith("s_cbranch") or mn in (
                "s_branch", "s_barrier", "s_endpgm", "s_setprio", "s_sleep", "s_bitcmp1_b32", "s_bitcmp0_b32"):
            self.kind = "salu"
            self.rd = set().union(*R) if R else set()
            if mn.startswith("s_cbranch_vcc"):
                self.rd |= {"vcc"}
        elif mn.startswith("s_"):
            self.kind = "salu"
            self.wr = R[0]
            self.rd = set().union(*R[1:]) if len(R) > 1 else set()
            if "saveexec" in mn:
                self.wr |= {"exec"}
        else:
            raise ValueError("unknown instruction: " + text)


class Block:
    def __init__(self):
        self.lines = []

    def __call__(self, text):
        for ln in text.strip("\n").split("\n"):
            ln = ln.strip()
            if ln:
                self.lines.append(ln)
        return self

    def extend(self, other):
        self.lines.extend(other.lines if isinstance(other, Block) else other)
        return self

    def text(self):
        out = []
        for ln in self.lines:
            if ln.endswith(":") or ln.startswith(";") or ln.startswith("."):
                out.append(ln)
            else:
                out.append("    " + ln)
        return "\n".join(out) + "\n"

    def instrs(self):
        return [ln for ln in self.lines if not (ln.endswith(":") or ln.startswith(";") or ln.startswith(".") or ln.endswith("; rare"))]


_MF_VALU = {2: 5, 4: 8, 8: 12}
_MF_COVL = {2: 4, 4: 6, 8: 10}
_MF_WAR = {2: 1, 4: 3, 8: 7}


def check_trace(lines, name="trace", verbose=True):
    ins = [Ins(t) for t in lines]
    probs = []
    lg = []
    vm = []
    smem_out = False
    for i, c in enumerate(ins):
        if c.kind == "wait":
            m = re.search(r"lgkmcnt\((\d+)\)", c.text)
            if m:
                n = int(m.group(1))
                if smem_out and n != 0:
                    probs.append((i, c.text, "counted lgkmcnt with SMEM outstanding"))
                while len(lg) > n:
                    lg.pop(0)
                if n == 0:
                    smem_out = False
            m = re.search(r"vmcnt\((\d+)\)", c.text)
            if m:
                n = int(m.group(1))
                while len(vm) > n:
                    vm.pop(0)
        touched = c.rd | c.wr
        for q, nm in ((lg, "lgkm"), (vm, "vm")):
            for regs, j in q:
                hit = regs & touched
                if hit:
                    probs.append((i, c.text, f"touches {sorted(hit)[:4]} still being loaded by [{j}] {ins[j].text} ({nm})"))
        if c.kind in ("ds", "smem"):
            lg.append((set(c.wr), i))
            if c.kind == "smem":
                smem_out = True
        if c.kind in ("vmem", "dma", "store"):
            vm.append((set(c.wr), i))
            if len(vm) > 63:
                probs.append((i, c.text, "note: more than 63 vmem ops outstanding in model"))
                vm.pop(0)
        dist = 0
        for j in range(i - 1, max(-1, i - 24), -1):
            p = ins[j]
            need = 0
            why = ""
            isvalu = c.kind in ("valu", "trans")
            pvalu = p.kind in ("valu", "trans")
            if p.kind == "mfma":
                if c.kind == "mfma":
                    if p.wr & c.ab:
                        need, why = _MF_VALU[p.passes], "mfma D -> mfma A/B"
                    elif p.wr & c.srcc:
                        if p.wr == c.srcc and p.passes == c.passes:
                            need, why = (2 if p.passes == 2 else 0), "mfma chain"
                        else:
                            need, why = _MF_COVL[p.passes], "mfma D -> overlapping C"
                    elif p.wr & c.wr:
                        need, why = _MF_COVL[p.passes], "mfma D -> mfma D (WAW)"
                elif c.kind in ("valu", "trans", "ds", "vmem", "dma", "store"):
                    if p.wr & (c.rd | c.wr):
                        need, why = _MF_VALU[p.passes], "mfma D -> valu/mem"
                    elif (p.srcc & c.wr):
                        need, why = _MF_WAR[p.passes], "mfma C read -> write (WAR)"
            if pvalu:
                vw = {r for r in p.wr if r[0] in "va" and r != "vcc"}
                sw = {r for r in p.wr if r[0] == "s" or r == "vcc"}
                if c.kind == "mfma" and vw & c.rd:
                    need, why = max(need, 2), "valu -> mfma"
                if c.mn.startswith("v_permlane") and vw & c.rd:
                    need, why = max(need, 2), "valu -> permlane"
                if c.mn.startswith(("v_readfirstlane", "v_readlane")) and vw & c.rd:
                    need, why = max(need, 1), "valu -> readlane"
                if p.kind == "trans" and c.kind == "valu" and vw & c.rd:
                    need, why = max(need, 1), "trans -> valu"
                if p.kind == "trans" and c.kind in ("ds", "store", "vmem") and vw & c.rd:
                    need, why = max(need, 1), "trans -> mem"
                if sw & c.rd:
                    if c.kind in ("vmem", "dma", "store"):
                        need, why = max(need, 5), "valu sgpr -> vmem"
                    elif isvalu:
                        need, why = max(need, 2), "valu sgpr -> valu"
                    elif c.kind == "salu":
                        need, why = max(need, 1), "valu sgpr -> salu (pad)"
                if "exec" in p.wr and c.kind == "mfma":
                    need, why = max(need, 4), "exec -> mfma"
                if "dpp" in c.text and vw & c.rd:
                    need, why = max(need, 2), "valu -> dpp"
            if p.kind == "salu" and "m0" in p.wr and c.kind == "dma":
                need, why = max(need, 1), "m0 -> dma"
            if p.kind == "store" and ("x4" in p.mn or "x3" in p.mn) and p.ab & c.wr:
                need, why = max(need, 2), "store data WAR"
            if p.kind == "ds" and p.mn.startswith("ds_write") and False:
                pass
            if need > dist:
                probs.append((i, c.text, f"{why}: need {need} states after [{j}] {p.text}, have {dist}"))
            dist += p.states
    if verbose:
        for i, t, w in probs[:8]:
            print(f"[{name}] #{i} {t}\n      -> {w}")
        print(f"[{name}] {len(lines)} instrs checked, {len(probs)} problems")
    return probs


def interleave(mfmas, gaps):
    out = []
    for m, g in zip(mfmas, gaps):
        out.append(m)
        out.extend(g)
    return out
```

```python
import math
import struct
import sys
from asmlib import *

OPT = dict(stamp=0, nocompute=0, nodma=0, wotouch=1, orot=1, diagpace=0, adk=0, padzero=1, dbgout=0, qkord=0, npre=13, pollat=9, rot3=0, b2map=1, l2touch=0, l2h0=3, bdepth=5, stdma=1, ctouch=1, diagv=0)
for arg in sys.argv[2:]:
    k, val = arg.split("=")
    assert k in OPT, k
    OPT[k] = int(val)


def f32(x):
    return "0x%08x" % struct.unpack("<I", struct.pack("<f", x))[0]


SCALE = math.log2(math.e) / math.sqrt(128.0)
MF = "v_mfma_f32_16x16x32_bf16"
KNAME = "standalone__mha_block_cached__near_ridge_kernel"

S_WAVE = 3
S_B, S_H = 100, 101
SRD_CODE = 4
SRD_X, SRD_WQ, SRD_K, SRD_V, SRD_O = 8, 12, 16, 20, 24
S_X0, S_X1, S_WQO = 28, 29, 30
S_WM0 = 32
S_WOO, S_CB, S_CT = 33, 34, 35
S_OTAB = 36
S_XB = 44
S_IDX, S_XC = 46, 47
S_W2048 = 49
S_KV = 50
S_CNT = 51
S_T0, S_T1, S_T2 = 52, 53, 54
S_ROT, S_B2, S_POLL, S_INIT = 55, 48, 58, 59
S_SCALE = 56
S_STAMP = 60
SRD_WO, SRD_OO, SRD_OUT, SRD_DBG, SRD_FL = 64, 68, 72, 80, 76
S_WTAB = 92
XB = [44, 45, 31]

V_KA = 16
V_VA = 20
V_KD = 28
V_VD = 32
V_XD = 34
V_WD = 38
V_WA = 40
V_ONE = 44
V_Q = 48
V_S = 112
V_P = 144
V_NM = 176
V_LM = 192
V_M = 208
V_T = 212
V_QACC = 112
V_ST = 240
V_DUM = 242
V_OD = 243
V_WDD = 244
V_XA = 248
V_OS = 254
V_Z = 255
V_IN = 14

A_O = 0
A_K = 128
A_V = 160
A_K0 = 192
A_QA = 0
A_QB = 64

LDS_WQ = 131072
LDS_V = 65536


def unit(t):
    return (t % 8) * 8192


nstamp = [0]


def stamp(b, lane=None):
    if not OPT["stamp"]:
        return
    if lane is None:
        lane = nstamp[0]
        nstamp[0] += 1
    b(f"s_memrealtime {s(S_STAMP, 2)}")
    b(f"s_memtime {s(S_STAMP + 2, 2)}")
    b("s_waitcnt lgkmcnt(0)")
    b(f"v_writelane_b32 {v(V_ST)}, {s(S_STAMP)}, {lane}")
    b(f"v_writelane_b32 {v(V_ST + 1)}, {s(S_STAMP + 2)}, {lane}")


def stamp_store(b, endlabel):
    b(f"""
    s_cmp_lg_u32 {s(S_WAVE)}, 0
    s_cbranch_scc1 {endlabel}
    s_add_u32 s8, s90, 0x4000000
    s_addc_u32 s9, s91, 0
    s_mov_b32 s10, 0x100000
    s_mov_b32 s11, 0x20000
    s_lshl_b32 s12, s2, 9
    v_lshlrev_b32 v1, 3, v0
    buffer_store_dwordx2 {v(V_ST, 2)}, v1, s[8:11], s12 offen
    """)


class VM:
    def __init__(self):
        self.ops = []

    def add(self, tag, n=1):
        self.ops += [tag] * n

    def cnt(self, *tags):
        last = max(i for i, x in enumerate(self.ops) if x in tags)
        return min(63, len(self.ops) - 1 - last)


def k_dma(n, soff):
    return f"buffer_load_dwordx4 {v(V_KD + n)}, {s(SRD_K, 4)}, {soff} offen offset:{1024 * n} nt lds"


def v_dma(n, soff):
    if OPT["diagv"]:
        return f"buffer_load_dwordx4 {v(V_VD + n % 2)}, {s(SRD_V, 4)}, {s(S_W2048)} offen offset:{1024 * n} sc1 lds"
    return f"buffer_load_dwordx4 {v(V_VD + n % 2)}, {s(SRD_V, 4)}, {soff} offen offset:{1024 * n} nt lds"


CTOUCH = f"buffer_load_dword v6, v12, {s(SRD_CODE, 4)}, 0 offen"
KV_INC = f"s_add_u32 {s(S_KV)}, {s(S_KV)}, 8192"


def kv_group(g):
    return [f"s_add_u32 m0, {s(S_W2048)}, {LDS_V + unit(g)}", v_dma(0, s(S_KV)), v_dma(1, s(S_KV)), KV_INC,
            f"s_add_u32 m0, {s(S_W2048)}, {unit(g + 1)}", k_dma(0, s(S_KV)), k_dma(1, s(S_KV))]


def k_read(t, kt, st, base=A_K):
    return f"ds_read_b128 {a(base + 16 * kt + 4 * st, 4)}, {v(V_KA + st)} offset:{unit(t) + 4096 * kt}"


def v_read(t, dt, kt, base=A_V):
    return f"ds_read_b64_tr_b16 {a(base + 4 * dt + 2 * kt, 2)}, {v(V_VA + dt)} offset:{unit(t) + 4096 * kt}"


def qk(qt, kt, st, c0, base=A_K):
    d = v(V_S + 8 * qt + 4 * kt, 4)
    c = c0 if st == 0 else d
    return f"{MF} {d}, {a(base + 16 * kt + 4 * st, 4)}, {v(V_Q + 16 * qt + 4 * st, 4)}, {c}"


def qk_all(zero=False, base=A_K):
    return [qk(qt, kt, st, "0" if zero else v(V_NM + 4 * qt, 4), base)
            for qt in range(4) for kt in range(2) for st in range(4)]


def pv(qt, dt, par, zero=False, base=A_V):
    d = a(A_O + 32 * qt + 4 * dt, 4)
    return f"{MF} {d}, {v(V_P + 16 * par + 4 * qt, 4)}, {a(base + 4 * dt, 4)}, {'0' if zero else d}"


def ones_mf(qt, par, zero=False):
    d = v(V_LM + 4 * qt, 4)
    return f"{MF} {d}, {v(V_P + 16 * par + 4 * qt, 4)}, {v(V_ONE, 4)}, {'0' if zero else d}"


def sm_exp(e):
    r = v(V_S + e)
    return f"v_exp_f32 {r}, {r}"


def sm_cvt(e, par):
    return f"v_cvt_pk_bf16_f32 {v(V_P + 16 * par + e // 2)}, {v(V_S + e - 1)}, {v(V_S + e)}"


NG = 68
EG = [10 + 2 * e for e in range(32)]
V_GAPS = list(range(1, 32, 2))
D_GAPS = [39, 45, 51, 57]
K_GAPS = [41, 43, 47, 49, 53, 55, 59, 61]
G_VWAIT, G_WAIT, G_BAR, G_M0A, G_INC, G_M0B, G_KWAIT = 30, 36, 37, 38, 46, 50, 67
G_CNT, G_CMP = 62, 64
CG = {}
for e in range(1, 32, 2):
    g = EG[e] + 1
    while g % NG in D_GAPS:
        g += 2
    CG[e] = g
XD_GAPS = [6, 12, 18, 24]


def wo_off(i):
    return f"s_add_u32 {s(S_WOO)}, {s(S_WTAB + i // 4)}, {(i % 4) * 4 * 1280}"


def wo_dma(n):
    return f"buffer_load_dwordx4 {v(V_WDD + n)}, {s(SRD_WO, 4)}, {s(S_WOO)} offen offset:{1024 * n} lds"


CELL_X = [(S_XC, 0), (S_XC, 4096)]
CELL_U = [(S_CB, 8192 * u) for u in range(8)]
NREG0 = 4
CELL0 = [CELL_X[0], CELL_X[1], CELL_X[0], CELL_U[0], CELL_X[1], CELL_U[1], CELL_U[2], CELL_U[3], CELL_U[4],
         CELL_X[0], CELL_U[5], CELL_U[0], CELL_U[6]]
V_AA = 34


def wo_reads(quads, cell):
    wdw = 1 if cell[0] == S_XC else 0
    return [f"ds_read_b64_tr_b16 {quad(quads[nt], 2 * e, 2)}, {v(V_AA + 4 * wdw + nt)} offset:{cell[1] + 2048 * e}"
            for nt in range(4) for e in range(2)]


def quad(q, off=0, n=4):
    kind, base = q
    return (a if kind == "a" else v)(base + off, n)


AREG0 = {i: [("a", 192 + 16 * i + 4 * nt) for nt in range(4)] for i in range(NREG0)}


def cell_m0(c):
    return f"s_add_u32 m0, {s(c[0])}, {c[1]}"


def subtile(t, vm=None, mode="loop"):
    par = t % 2
    zero = mode == "first" and t == 1
    mf = qk_all() + [pv(qt, dt, 1 - par, zero) for dt in range(8) for qt in range(4)] + [ones_mf(qt, 1 - par, zero) for qt in range(4)]
    gaps = [[] for _ in range(NG)]
    for r, g in zip([v_read(t - 1, dt, kt) for dt in range(8) for kt in range(2)], V_GAPS):
        gaps[g].append(r)
    gaps[G_VWAIT].append("s_waitcnt lgkmcnt(2)")
    final = mode == "last" and t == 7
    if final:
        fg = [41, 43, 47, 49, 53, 55, 59, 61, 63, 65, 40, 44, 48, 52, 56, 60]
        for r, g in zip([v_read(t, dt, kt, A_K) for dt in range(8) for kt in range(2)], sorted(fg)):
            gaps[g].append(r)
    else:
        for r, g in zip([k_read(t + 1, kt, st) for kt in range(2) for st in range(4)], K_GAPS):
            gaps[g].append(r)
        gaps[G_KWAIT].append("s_waitcnt lgkmcnt(0)")

    def put_group(ops, g_pre, dg):
        i = 0
        npre = 0
        for x in ops:
            if x.startswith("buffer"):
                gaps[dg[i]].append(x)
                i += 1
                npre = 0
            else:
                gaps[dg[i] - g_pre[npre]].append(x)
                npre += 1

    def wo_group(i):
        vm.add(("wo", i), 4)
        return [wo_off(i), cell_m0(CELL0[i])] + [wo_dma(n) for n in range(4)]

    if mode == "first" and t == 2:
        put_group(kv_group(8), [4, 2], XD_GAPS)
        vm.add(("kv", 8), 4)
    if mode == "first" and t in (4, 6):
        put_group(wo_group({4: 0, 6: 1}[t]), [4, 2], XD_GAPS)
    if mode == "last" and t in (1, 2, 6, 7):
        put_group(wo_group({1: 2, 2: 4, 6: 9, 7: 11}[t]), [4, 2], XD_GAPS)
    if (mode, t) == (("last", 0) if OPT["wotouch"] == 1 else ("first", 5)) and OPT["wotouch"] in (1, 2):
        gaps[28].append(f"buffer_load_dword {v(V_DUM)}, v15, {s(SRD_WO, 4)}, {s(S_T2)} offen")
        vm.add("touch")
    if mode == "last" and OPT["l2touch"] and OPT["l2h0"] + t < 8:
        gaps[33].append(f"buffer_load_dword {v(V_T + t)}, v13, {s(SRD_WO, 4)}, {s(S_WTAB + OPT['l2h0'] + t)} offen")
        vm.add("touch")
    if mode == "last" and t == 0:
        gaps[8].append(f"buffer_load_dword {v(V_IN)}, {v(V_Z)}, {s(SRD_DBG, 4)}, 0 offen offset:128 sc1")
        vm.add("init")
    rd0 = {("last", 0): 0, ("last", 5): 2, ("last", 6): 3}.get((mode, t))
    if rd0 is not None:
        steps = [0, 1] if rd0 == 0 else [rd0]
        fg = [40, 42, 44, 48, 52, 54, 63, 65] + [56, 58, 60, 62, 63, 64, 65, 66]
        rr = [x for i in steps for x in wo_reads(AREG0[i], CELL0[i])]
        for r, g in zip(rr, sorted(fg[:len(rr)])):
            gaps[g].append(r)
    n = 24 if mode == "loop" else vm.cnt(("kv", t + (56 if mode == "last" else 0)), ("wo", rd0))
    gaps[G_WAIT].append(f"s_waitcnt vmcnt({n}) lgkmcnt(0)")
    gaps[G_BAR].append("s_barrier")
    if mode == "last":
        if t == 0:
            put_group(kv_group(63)[:3], [1], D_GAPS)
            vm.add(("kv", 63), 2)
        else:
            put_group(wo_group({1: 3, 2: 5, 3: 6, 4: 7, 5: 8, 6: 10, 7: 12}[t]), [5, 1], D_GAPS)
    else:
        g = 7 if (mode == "first" and t == 1) else t + 7
        ops = kv_group(g)
        gaps[G_M0A].append(ops[0])
        gaps[D_GAPS[0]].append(ops[1])
        gaps[D_GAPS[1]].append(ops[2])
        gaps[G_INC].append(ops[3])
        gaps[G_M0B].append(ops[4])
        gaps[D_GAPS[2]].append(ops[5])
        gaps[D_GAPS[3]].append(ops[6])
        if vm is not None:
            vm.add(("kv", g), 4)
        if mode == "loop" and t == 3 and OPT["ctouch"] == 1:
            gaps[65].append(CTOUCH)
        if mode == "loop" and t == 7:
            gaps[G_CNT].append(f"s_sub_u32 {s(S_CNT)}, {s(S_CNT)}, 1")
            gaps[G_CMP].append(f"s_cmp_lg_u32 {s(S_CNT)}, 0")
    for e in range(32):
        gaps[EG[e] % NG].append(sm_exp(e))
    for e, g in CG.items():
        gaps[g % NG].append(sm_cvt(e, par if g < NG else 1 - par))
    cand = [g for g in range(NG) if len(gaps[g]) == 2 and gaps[g][0].startswith("ds_") and gaps[g][1].startswith("v_cvt")]
    k = min(OPT["adk"], len(cand))
    for i in range(k):
        gaps[cand[(i * len(cand)) // k]].reverse()
    for i in range(OPT["diagpace"]):
        gaps[(2 * i) % NG].append("s_nop 1")
    if OPT["nocompute"]:
        return flat([x for g in gaps for x in g if x.startswith(("s_", "buffer"))])
    if OPT["nodma"]:
        gaps = [[x for x in g if not x.startswith("buffer")] for g in gaps]
    return interleave(mf, gaps)


def flat(lst):
    out = []
    for x in lst:
        out.append(x)
        if " m0," in x:
            out.append("s_nop 0")
    return out


def conv_q(qt, packed):
    out = []
    for st in range(4):
        acc = V_QACC + 4 * (8 * qt + 2 * st)
        if packed:
            out += [f"v_pk_mul_f32 {v(acc + 2 * i, 2)}, {v(acc + 2 * i, 2)}, {s(S_SCALE, 2)}" for i in range(4)]
        else:
            out += [f"v_mul_f32 {v(acc + i)}, {s(S_SCALE)}, {v(acc + i)}" for i in range(8)]
        out += [f"v_cvt_pk_bf16_f32 {v(V_Q + 16 * qt + 4 * st + i)}, {v(acc + 2 * i)}, {v(acc + 2 * i + 1)}" for i in range(4)]
    return out


def spread(gaps, dm, start, step):
    gi = start
    busy = set()
    for d in dm:
        if d.startswith("buffer"):
            gaps[gi].append(d)
            busy.add(gi)
            gi += step
        else:
            gaps[min(gi - 1, len(gaps) - 1)].append(d)
    return busy


def qproj_phase(vm):
    b = Block()

    def wq_dma(j):
        vm.add(("wq", j), 2)
        return ([f"s_add_u32 m0, {s(S_WM0)}, {(j % 4) * 8192}"]
                + [f"buffer_load_dwordx4 {v(V_WD + n)}, {s(SRD_WQ, 4)}, {s(S_WQO)} offen offset:{1024 * n} lds" for n in range(2)]
                + [f"s_add_u32 {s(S_WQO)}, {s(S_WQO)}, {32 * 8192}"])

    def x_dma(st, g):
        vm.add(("x", st), 4)
        return ([f"s_add_u32 m0, {s(XB[st % 3])}, {4096 * g}"]
                + [f"buffer_load_dwordx4 {v(V_XD + n)}, {s(SRD_X, 4)}, {s(S_X0 + g)} offen offset:{1024 * n} lds" for n in range(4)]
                + [f"s_add_u32 {s(S_X0 + g)}, {s(S_X0 + g)}, 128"])

    def kvg(g):
        vm.add(("kv", g), 4)
        return kv_group(g)

    first = Block()
    if OPT["ctouch"]:
        vm.add("touch")
    first.extend(flat(wq_dma(0) + x_dma(0, 0) + x_dma(0, 1) + wq_dma(1)))
    second = Block()
    second.extend(flat(wq_dma(2) + x_dma(1, 0) + x_dma(1, 1)))
    kv0 = Block()
    kv0.extend(flat([f"s_mov_b32 m0, {s(S_W2048)}", k_dma(0, s(S_KV)), k_dma(1, s(S_KV))]))
    vm.add(("kv", -1), 2)
    kv0.extend(flat(kvg(0)))

    def a_reads(j):
        base = A_QA + 32 * (j % 2)
        return [f"ds_read_b64_tr_b16 {a(base + 4 * (2 * st + e) + 2 * jj, 2)}, {v(V_WA + st)} offset:{(j % 4) * 8192 + 1024 * jj + 8 * e}"
                for st in range(4) for e in range(2) for jj in range(2)]

    def b_reads(stg):
        base = A_QB + 32 * (stg % 2)
        return [f"ds_read_b128 {a(base + 16 * ks + 4 * qt, 4)}, {v(V_XA + 2 * (stg % 3) + ks)} offset:{2048 * qt}"
                for ks in range(2) for qt in range(4)]

    def mfmas(j):
        ab = A_QA + 32 * (j % 2)
        bb = A_QB + 32 * ((j // 2) % 2) + 16 * (j % 2)
        out = []
        for qt in range(4):
            for dtile in range(8):
                d = v(V_QACC + 4 * (8 * qt + dtile), 4)
                c = "0" if j == 0 else d
                out.append(f"{MF} {d}, {a(ab + 4 * dtile, 4)}, {a(bb + 4 * qt, 4)}, {c}")
        return out

    for j in range(20):
        gaps = [[] for _ in range(32)]
        tags = [("wq", j)] + ([("x", j // 2)] if j % 2 == 0 else [])
        if j == 19:
            tags.append(("kv", 0))
        b(f"s_waitcnt vmcnt({vm.cnt(*tags)})")
        b("s_barrier")
        if j == 1:
            stamp(b)
        if OPT["stamp"] > 2:
            stamp(b, 32 + j)
        rd = a_reads(j)
        if j % 2 == 0:
            br = b_reads(j // 2)
            rd = br[:4] + rd + br[4:]
        dm = []
        if j + 3 < 20:
            dm += wq_dma(j + 3)
        if j == 0:
            dm += x_dma(2, 0) + x_dma(2, 1)
        if j % 2 == 1 and j // 2 + 3 < 10:
            dm += x_dma(j // 2 + 3, 0)
        if j % 2 == 0 and j >= 2 and j // 2 + 2 < 10:
            dm += x_dma(j // 2 + 2, 1)
        if j == 17 and OPT["wotouch"] == 3:
            dm.append(f"buffer_load_dword {v(V_DUM)}, v15, {s(SRD_WO, 4)}, {s(S_T2)} offen")
            vm.add("touch")
        if j >= 16:
            dm += kvg(j - 15)
        if j == 0:
            b.extend(rd)
            b.extend(flat(dm))
        else:
            busy = spread(gaps, dm, 2, 5)
            gi = 0
            for r in rd:
                while gi in busy:
                    gi += 1
                gaps[gi].append(r)
                gi += 1
            b.extend(interleave(mfmas(j - 1), gaps))
        b("s_waitcnt lgkmcnt(0)")
    gaps = [[] for _ in range(32)]
    kr = [k_read(0, kt, st, A_K0) for kt in range(2) for st in range(4)] + [k_read(1, kt, st) for kt in range(2) for st in range(4)]
    busy = spread(gaps, kvg(5), 2, 3)
    gi = 0
    for r in kr[:9]:
        while gi in busy:
            gi += 1
        gaps[gi].append(r)
        gi += 1
    cv = conv_q(0, False)
    kr = kr[9:]
    for g in range(13, 32):
        if kr:
            gaps[g] += [kr.pop(0), cv.pop(0)]
        else:
            gaps[g] += [cv.pop(0), cv.pop(0)]
    b.extend(interleave(mfmas(19), gaps))
    b.extend(cv)
    return first, second, kv0, b


def kernel():
    vm = VM()
    b = Block()
    b(KNAME + ":")
    b(f"""
    s_load_dwordx4 s[36:39], s[0:1], 0
    s_load_dwordx4 s[40:43], s[0:1], 16
    s_load_dwordx4 s[84:87], s[0:1], 32
    s_load_dwordx4 s[88:91], s[0:1], 48
    s_cmp_ge_u32 s2, 256
    s_cbranch_scc1 L1_end
    v_lshlrev_b32 v15, 7, v0
    v_lshrrev_b32 v1, 6, v0
    v_and_b32 v0, 63, v0
    v_readfirstlane_b32 {s(S_WAVE)}, v1
    s_and_b32 {s(S_T0)}, s2, 7
    s_lshr_b32 {s(S_IDX)}, s2, 3
    s_and_b32 {s(S_B)}, {s(S_T0)}, 1
    s_lshl_b32 {s(S_B)}, {s(S_B)}, 2
    s_and_b32 {s(S_H)}, {s(S_IDX)}, 3
    s_add_u32 {s(S_B)}, {s(S_B)}, {s(S_H)}
    s_lshr_b32 {s(S_H)}, {s(S_T0)}, 1
    s_lshl_b32 {s(S_H)}, {s(S_H)}, 3
    s_lshr_b32 {s(S_T0)}, {s(S_IDX)}, 2
    s_add_u32 {s(S_H)}, {s(S_H)}, {s(S_T0)}
    s_lshl_b32 {s(S_W2048)}, {s(S_WAVE)}, 11
    """)
    if OPT["ctouch"]:
        b(f"""
        ; instruction prefetch: every workgroup pulls one 8 KB chunk of this kernel's code into its L2 (16 lines per wave)
        s_getpc_b64 {s(SRD_CODE, 2)}
        L1_pc:
        s_sub_u32 {s(SRD_CODE)}, {s(SRD_CODE)}, L1_pc-{KNAME}
        s_subb_u32 {s(SRD_CODE + 1)}, {s(SRD_CODE + 1)}, 0
        s_mov_b32 {s(SRD_CODE + 2)}, L1_end-{KNAME}
        s_mov_b32 {s(SRD_CODE + 3)}, 0x20000
        s_and_b32 {s(S_T0)}, {s(S_IDX)}, 7
        s_lshl_b32 {s(S_T0)}, {s(S_T0)}, 13
        s_add_u32 {s(S_T0)}, {s(S_T0)}, {s(S_W2048)}
        v_and_b32 v12, 15, v0
        v_lshlrev_b32 v12, 7, v12
        v_add_u32 v12, {s(S_T0)}, v12
        {CTOUCH}
        """)
    b(f"""
    v_lshrrev_b32 v1, 4, v0
    v_and_b32 v2, 15, v0
    v_lshrrev_b32 v3, 3, v0
    v_and_b32 v5, 7, v0
    ; wq DMA voffsets: (4n + G)*8192 + ((l%16) ^ (G<<2))*16 - 1024n
    v_lshlrev_b32 v9, 2, v1
    v_xor_b32 v9, v2, v9
    v_lshlrev_b32 v9, 4, v9
    v_lshl_add_u32 {v(V_WD)}, v1, 13, v9
    v_add_u32 {v(V_WD + 1)}, {4 * 8192 - 1024}, {v(V_WD)}
    ; x DMA voffsets: (8n + l/8)*1280 + ((l%8) ^ (4(n&1) + G))*16 - 1024n
    v_xor_b32 v8, v5, v1
    v_lshlrev_b32 v8, 4, v8
    v_mul_u32_u24 v10, 1280, v3
    v_add_u32 {v(V_XD)}, v10, v8
    v_xor_b32 v8, 64, v8
    v_add_u32 v11, v10, v8
    v_add_u32 {v(V_XD + 1)}, {8 * 1280 - 1024}, v11
    v_add_u32 {v(V_XD + 2)}, {2 * (8 * 1280 - 1024)}, {v(V_XD)}
    v_add_u32 {v(V_XD + 3)}, {3 * (8 * 1280 - 1024)}, v11
    s_mul_i32 {s(S_X0)}, {s(S_WAVE)}, {64 * 1280}
    s_add_u32 {s(S_X1)}, {s(S_X0)}, {32 * 1280}
    s_lshl_b32 {s(S_WQO)}, {s(S_WAVE)}, 16
    s_lshl_b32 {s(S_XC)}, {s(S_WAVE)}, 13
    s_add_u32 {s(XB[0])}, {s(S_XC)}, {LDS_V + 32768}
    s_add_u32 {s(XB[2])}, {s(S_XC)}, 32768
    s_add_u32 {s(S_XC)}, {s(S_XC)}, {LDS_WQ}
    s_add_u32 {s(S_WM0)}, {s(S_W2048)}, {LDS_WQ}
    s_mul_i32 {s(S_T0)}, {s(S_B)}, 307200
    s_lshl_b32 {s(S_T1)}, {s(S_H)}, 8
    s_mov_b32 {s(SRD_X + 2)}, 307200
    s_mov_b32 {s(SRD_X + 3)}, 0x20000
    s_sub_u32 {s(SRD_WQ + 2)}, {640 * 8192}, {s(S_T1)}
    s_mov_b32 {s(SRD_WQ + 3)}, 0x20000
    s_waitcnt lgkmcnt(0)
    s_add_u32 {s(SRD_X)}, s36, {s(S_T0)}
    s_addc_u32 {s(SRD_X + 1)}, s37, 0
    s_add_u32 {s(SRD_WQ)}, s42, {s(S_T1)}
    s_addc_u32 {s(SRD_WQ + 1)}, s43, 0
    """)
    stamp(b)
    first, second, kv0, qp = qproj_phase(vm)
    b.extend(first)
    b(f"""
    ; hand-off counters live in ws + 32 MB (256 B apart); wave 0 of workgroups 0..31 clears one each
    s_add_u32 {s(SRD_FL)}, s90, 0x2000000
    s_addc_u32 {s(SRD_FL + 1)}, s91, 0
    s_mov_b32 {s(SRD_FL + 2)}, 8192
    s_mov_b32 {s(SRD_FL + 3)}, 0x20000
    s_mov_b32 {s(SRD_DBG)}, s88
    s_mov_b32 {s(SRD_DBG + 1)}, s89
    s_mov_b32 {s(SRD_DBG + 2)}, 256
    s_mov_b32 {s(SRD_DBG + 3)}, 0x20000
    v_mov_b32 {v(V_Z)}, 0
    s_lshl_b32 {s(S_T0)}, {s(S_WAVE)}, 5
    s_add_u32 {s(S_INIT)}, {s(S_T0)}, s2
    s_cmp_ge_u32 {s(S_INIT)}, 32
    s_cbranch_scc1 L1_noclr
    s_lshl_b32 {s(S_T0)}, s2, 8
    s_mov_b64 exec, 1
    buffer_store_dword {v(V_Z)}, {v(V_Z)}, {s(SRD_FL, 4)}, {s(S_T0)} offen sc1
    s_mov_b64 exec, -1
    L1_noclr:
    """)
    b(f"""
    ; cell base: (w>>1)*65536 + (w&1)*4096 ; x buffer 1: (w>>1)*65536 + 16384 + (w&1)*8192
    s_lshr_b32 {s(S_CB)}, {s(S_WAVE)}, 1
    s_lshl_b32 {s(S_CB)}, {s(S_CB)}, 16
    s_and_b32 {s(S_T0)}, {s(S_WAVE)}, 1
    s_lshl_b32 {s(S_T0)}, {s(S_T0)}, 12
    s_add_u32 {s(S_CB)}, {s(S_CB)}, {s(S_T0)}
    s_add_u32 {s(XB[1])}, {s(S_CB)}, {s(S_T0)}
    s_add_u32 {s(XB[1])}, {s(XB[1])}, 16384
    v_and_b32 v4, 3, v0
    v_bfe_u32 v7, v0, 2, 2
    v_lshl_add_u32 v8, v1, 3, v7
    v_lshlrev_b32 v8, 8, v8
    v_lshl_add_u32 v8, v7, 6, v8
    v_lshl_add_u32 v8, v4, 4, v8
    v_add_u32 {v(V_WA)}, {LDS_WQ}, v8
    v_xor_b32 {v(V_WA + 1)}, 64, {v(V_WA)}
    v_xor_b32 {v(V_WA + 2)}, 0x80, {v(V_WA)}
    v_xor_b32 {v(V_WA + 3)}, 0xc0, {v(V_WA)}
    ; x read: buffer + (l%16)*128 + ((G ^ ((l%16)>>1))*16) ^ (ks*64)
    v_lshrrev_b32 v8, 1, v2
    v_xor_b32 v8, v1, v8
    v_lshlrev_b32 v8, 4, v8
    v_lshl_add_u32 v8, v2, 7, v8
    v_xor_b32 v9, 64, v8
    """)
    for i in range(3):
        b(f"v_add_u32 {v(V_XA + 2 * i)}, {s(XB[i])}, v8")
        b(f"v_add_u32 {v(V_XA + 2 * i + 1)}, {s(XB[i])}, v9")
    b.extend(second)
    b(f"""
    s_lshl_b32 {s(S_T0)}, {s(S_B)}, 5
    s_add_u32 {s(S_T0)}, {s(S_T0)}, {s(S_H)}
    s_lshl_b32 {s(S_T0)}, {s(S_T0)}, 19
    s_add_u32 {s(SRD_K)}, s38, {s(S_T0)}
    s_addc_u32 {s(SRD_K + 1)}, s39, 0
    s_mov_b32 {s(SRD_K + 2)}, 524288
    s_mov_b32 {s(SRD_K + 3)}, 0x20000
    s_add_u32 {s(SRD_V)}, s40, {s(S_T0)}
    s_addc_u32 {s(SRD_V + 1)}, s41, 0
    s_mov_b32 {s(SRD_V + 2)}, 524288
    s_mov_b32 {s(SRD_V + 3)}, 0x20000
    s_mov_b32 {s(S_KV)}, {s(S_W2048)}
    ; K DMA voffsets: G*256 + ((l%16) ^ (8(w&1) + 4n + G))*16 ; V: G*256 + ((l%16) ^ ((4n + G)<<1))*16
    s_and_b32 {s(S_T0)}, {s(S_WAVE)}, 1
    s_lshl_b32 {s(S_T0)}, {s(S_T0)}, 7
    v_xor_b32 v8, v2, v1
    v_lshlrev_b32 v8, 4, v8
    v_lshl_add_u32 v9, v1, 8, v8
    v_xor_b32 {v(V_KD)}, {s(S_T0)}, v9
    v_xor_b32 {v(V_KD + 1)}, 64, {v(V_KD)}
    v_lshlrev_b32 v9, 1, v1
    v_xor_b32 v9, v2, v9
    v_lshlrev_b32 v9, 4, v9
    v_lshl_add_u32 {v(V_VD)}, v1, 8, v9
    v_xor_b32 {v(V_VD + 1)}, 0x80, {v(V_VD)}
    """)
    b.extend(kv0)
    b(f"""
    s_mul_i32 {s(S_T0)}, {s(S_B)}, {15 * 131072}
    s_add_u32 {s(SRD_O)}, s90, {s(S_T0)}
    s_addc_u32 {s(SRD_O + 1)}, s91, 0
    s_mov_b32 {s(SRD_O + 2)}, {15 * 131072}
    s_mov_b32 {s(SRD_O + 3)}, 0x20000
    ; K read: (l%16)*256 + ((G ^ (l%16))*16) ^ (s*64)
    v_lshl_add_u32 {v(V_KA)}, v2, 8, v8
    v_xor_b32 {v(V_KA + 1)}, 64, {v(V_KA)}
    v_xor_b32 {v(V_KA + 2)}, 0x80, {v(V_KA)}
    v_xor_b32 {v(V_KA + 3)}, 0xc0, {v(V_KA)}
    v_lshl_add_u32 v8, v1, 2, v7
    v_and_b32 v9, 7, v8
    v_lshlrev_b32 v8, 8, v8
    v_lshl_add_u32 v8, v9, 5, v8
    v_lshl_add_u32 v8, v4, 3, v8
    v_add_u32 {v(V_VA)}, {LDS_V}, v8
    """)
    for dt in range(1, 8):
        b(f"v_xor_b32 {v(V_VA + dt)}, {32 * dt}, {v(V_VA)}")
    for i in range(4):
        b(f"v_mov_b32 {v(V_ONE + i)}, 0x3f803f80")
    b(f"""
    v_lshlrev_b32 {v(V_OD)}, 4, v0
    ; O store voffset: (4*(l%16) + G)*16
    v_lshl_add_u32 v8, v2, 2, v1
    v_lshlrev_b32 {v(V_OS)}, 4, v8
    s_mov_b32 {s(S_SCALE)}, {f32(SCALE)}
    s_mov_b32 {s(S_SCALE + 1)}, {f32(SCALE)}
    ; ---- O-projection tile of this workgroup: batch s2%8, row tile idx/10, column tile idx%10
    s_mul_i32 {s(S_T1)}, {s(S_IDX)}, 26
    s_lshr_b32 {s(S_T1)}, {s(S_T1)}, 8
    s_mul_i32 {s(S_T0)}, {s(S_T1)}, 10
    s_sub_u32 {s(S_CT)}, {s(S_IDX)}, {s(S_T0)}
    ; consumer batch = 4*(1 - (j&1)) + (j>>1), j = s2%8 ; head rotation = ct + 3*rt
    s_mul_i32 {s(S_ROT)}, {s(S_T1)}, {3 * OPT['rot3']}
    s_add_u32 {s(S_ROT)}, {s(S_ROT)}, {s(S_CT)}
    s_andn2_b32 {s(S_B2)}, 1, s2
    s_lshl_b32 {s(S_B2)}, {s(S_B2)}, 2
    s_bfe_u32 {s(S_T0)}, s2, 0x20001
    s_add_u32 {s(S_B2)}, {s(S_B2)}, {s(S_T0)}
    {"" if OPT["b2map"] else f"s_and_b32 {s(S_B2)}, s2, 7"}
    s_mul_i32 {s(S_T0)}, {s(S_B2)}, 15
    s_min_u32 {s(S_T1)}, {s(S_T1)}, 2
    v_mul_u32_u24 v13, 3, v0
    v_add_u32 v13, {s(S_T1)}, v13
    v_min_u32 v13, 127, v13
    v_mul_u32_u24 v13, 1280, v13
    s_mul_i32 {s(S_T1)}, {s(S_T1)}, 5
    s_add_u32 {s(S_T0)}, {s(S_T0)}, {s(S_T1)}
    s_lshl_b32 {s(S_T1)}, {s(S_T0)}, 17
    s_add_u32 {s(SRD_OO)}, s90, {s(S_T1)}
    s_addc_u32 {s(SRD_OO + 1)}, s91, 0
    s_mov_b32 {s(SRD_OO + 2)}, {5 * 131072}
    s_mov_b32 {s(SRD_OO + 3)}, 0x20000
    s_mul_i32 {s(S_T1)}, {s(S_T0)}, {16 * 1280}
    s_add_u32 {s(SRD_OUT)}, s86, {s(S_T1)}
    s_addc_u32 {s(SRD_OUT + 1)}, s87, 0
    s_mov_b32 {s(SRD_OUT + 2)}, {80 * 1280}
    s_mov_b32 {s(SRD_OUT + 3)}, 0x20000
    s_mov_b32 {s(SRD_WO)}, s84
    s_mov_b32 {s(SRD_WO + 1)}, s85
    s_mov_b32 {s(SRD_WO + 2)}, {4096 * 1280}
    s_mov_b32 {s(SRD_WO + 3)}, 0x20000
    s_mul_i32 {s(S_WOO)}, {s(S_WAVE)}, {1024 * 1280}
    s_lshl_b32 {s(S_T0)}, {s(S_CT)}, 7
    s_add_u32 {s(S_WOO)}, {s(S_WOO)}, {s(S_T0)}
    s_lshl_b32 {s(S_T2)}, {s(S_WAVE)}, 15
    """)
    for j in range(8):
        if OPT["orot"]:
            b(f"s_add_u32 {s(S_T0)}, {s(S_ROT)}, {j}")
            b(f"s_and_b32 {s(S_T0)}, {s(S_T0)}, 7")
        else:
            b(f"s_mov_b32 {s(S_T0)}, {j}")
        b(f"s_mul_i32 {s(S_T1)}, {s(S_T0)}, {128 * 1280}")
        b(f"s_add_u32 {s(S_WTAB + j)}, {s(S_WOO)}, {s(S_T1)}")
        b(f"s_lshl_b32 {s(S_T1)}, {s(S_T0)}, 12")
        b(f"s_add_u32 {s(S_OTAB + j)}, {s(S_T2)}, {s(S_T1)}")
    b(f"""
    s_mul_i32 {s(S_T2)}, s2, 20480
    s_lshl_b32 {s(S_POLL)}, {s(S_B2)}, 2
    s_add_u32 {s(S_POLL)}, {s(S_POLL)}, {s(S_WAVE)}
    s_lshl_b32 {s(S_POLL)}, {s(S_POLL)}, 8
    ; wo DMA voffset n: (64(n/2) + 2(n%2) + 16*((l/8)%4) + l/32)*1280 + (((l%8) ^ (G<<1))*16) - 1024n
    v_and_b32 v8, 3, v3
    v_lshlrev_b32 v8, 4, v8
    v_lshrrev_b32 v9, 5, v0
    v_add_u32 v8, v8, v9
    v_mul_u32_u24 v8, 1280, v8
    v_lshlrev_b32 v9, 1, v1
    v_xor_b32 v9, v5, v9
    v_lshl_add_u32 {v(V_WDD)}, v9, 4, v8
    v_add_u32 {v(V_WDD + 1)}, {2 * 1280 - 1024}, {v(V_WDD)}
    v_add_u32 {v(V_WDD + 2)}, {64 * 1280 - 2048}, {v(V_WDD)}
    v_add_u32 {v(V_WDD + 3)}, {66 * 1280 - 3072}, {v(V_WDD)}
    """)
    b.extend(qp)
    stamp(b)
    pre = b

    mid = Block()
    mid(f"""
    s_cmp_ge_u32 {s(S_INIT)}, 32
    s_cbranch_scc1 L1_norep
    v_mov_b32 v8, 1
    s_mov_b64 exec, 1
    buffer_atomic_add v8, {v(V_Z)}, {s(SRD_DBG, 4)}, 0 offen offset:128 sc1
    s_mov_b64 exec, -1
    L1_norep:
    ; wo tr-read addresses: (4G + r)*128 + ((nt ^ (2(G&1) + r/2))*32) + 8c + window base
    v_lshl_add_u32 v8, v1, 2, v7
    v_bfe_u32 v9, v8, 1, 2
    v_lshlrev_b32 v8, 7, v8
    v_lshl_add_u32 v8, v4, 3, v8
    v_lshl_add_u32 v8, v9, 5, v8
    v_add_u32 {v(V_AA)}, {s(S_CB)}, v8
    v_add_u32 {v(V_AA + 4)}, {s(S_XC)}, v8
    """)
    for wdw in range(2):
        for nt in range(1, 4):
            mid(f"v_xor_b32 {v(V_AA + 4 * wdw + nt)}, {32 * nt}, {v(V_AA + 4 * wdw)}")
    for qt in range(1, 4):
        mid.extend(conv_q(qt, True))
    mid("s_waitcnt lgkmcnt(0)")
    mid("s_nop 0")

    def max_chain(qt):
        S = V_S + 8 * qt
        m = V_T + 2 * qt
        out = [f"v_max3_f32 {v(m)}, {v(S)}, {v(S + 1)}, {v(S + 2)}",
               f"v_max3_f32 {v(m + 1)}, {v(S + 3)}, {v(S + 4)}, {v(S + 5)}",
               f"v_max3_f32 {v(m)}, {v(m)}, {v(S + 6)}, {v(S + 7)}",
               f"v_max_f32 {v(m)}, {v(m)}, {v(m + 1)}",
               f"v_mov_b32 {v(m + 1)}, {v(m)}", "s_nop 1",
               f"v_permlane16_swap_b32 {v(m)}, {v(m + 1)}",
               f"v_max_f32 {v(m)}, {v(m)}, {v(m + 1)}",
               f"v_mov_b32 {v(m + 1)}, {v(m)}", "s_nop 1",
               f"v_permlane32_swap_b32 {v(m)}, {v(m + 1)}",
               f"v_max_f32 {v(m)}, {v(m)}, {v(m + 1)}"]
        if qt == 3 and OPT["padzero"]:
            out.append(f"v_add_f32 {v(m)}, {s(S_T1)}, {v(m)}")
        out += [f"v_sub_f32 {v(V_NM + 4 * qt + i)}, 0, {v(m)}" for i in range(4)]
        out += [f"v_sub_f32 {v(S + i)}, {v(S + i)}, {v(m)}" for i in range(8)]
        for i in range(8):
            e = 8 * qt + i
            if EG[e] < NG:
                out.append(sm_exp(e))
        out.append("s_nop 0")
        for i in range(1, 8, 2):
            e = 8 * qt + i
            if CG[e] < NG:
                out.append(sm_cvt(e, 0))
        return out

    mid(f"s_cmp_eq_u32 {s(S_WAVE)}, 3")
    mid(f"s_cselect_b32 {s(S_T1)}, {f32(1e4)}, 0")
    gaps = [[] for _ in range(32)]
    spread(gaps, kv_group(6), 1, 3)
    vm.add(("kv", 6), 4)
    work = max_chain(0) + max_chain(1) + max_chain(2) + max_chain(3)
    n0 = len(max_chain(0))
    done = 0
    for g in range(12, 32):
        avail = n0 * min(4, (g - 4) // 8)
        take = min(2, avail - done)
        gaps[g] += work[done:done + take]
        done += take
    mid.extend(interleave(qk_all(True, A_K0), gaps))
    mid.extend(work[done:])
    mid(f"s_mov_b32 {s(S_CNT)}, 6")
    stamp(mid)
    for t in range(1, 8):
        mid.extend(subtile(t, vm, "first"))
    if OPT["stamp"] > 1:
        stamp(mid, 16)

    body = Block()
    for t in range(8):
        body.extend(subtile(t))
    if OPT["stamp"] > 1:
        body(f"s_sub_u32 {s(S_T0)}, 22, {s(S_CNT)}")
        body(f"s_mov_b32 m0, {s(S_T0)}")
        stamp(body, "m0")
        body(f"s_cmp_lg_u32 {s(S_CNT)}, 0")
    body("s_cbranch_scc1 L1_loop")

    post = Block()
    vm = VM()
    for g in range(56, 63):
        vm.add(("kv", g), 4)
    for t in range(8):
        post.extend(subtile(t, vm, "last"))
    if OPT["stamp"] > 1:
        stamp(post, 23)
    for e in range(32):
        if EG[e] >= NG:
            post(sm_exp(e))
    post("s_nop 0")
    for e, g in CG.items():
        if g >= NG:
            post(sm_cvt(e, 1))
    post("s_nop 1")
    for qt in range(4):
        post(ones_mf(qt, 1))
    post("s_waitcnt lgkmcnt(0)")
    epi = Block()
    epi("L1_epi:")
    tail1, tail2 = oproj_tail()
    epi.extend(tail1)
    n_slow = len(epi.instrs())
    epi.extend(FAST)
    epi.extend(tail2)
    epi("L1_fin:")
    if OPT["stamp"]:
        epi("s_waitcnt vmcnt(0)")
        stamp(epi, 25)
        stamp_store(epi, "L1_end")
    epi("L1_end:")
    epi("s_endpgm")

    fb = Block()
    fb("L1_fallback:")
    fb(f"""
    s_waitcnt vmcnt(0) lgkmcnt(0)
    s_mov_b32 {s(S_T2)}, 0x7f800000
    s_sub_u32 {s(S_T0)}, {s(S_CB)}, {LDS_V - 16384}
    v_xor_b32 v8, v2, v1
    v_lshlrev_b32 v8, 4, v8
    v_lshl_add_u32 {v(V_KD)}, v1, 8, v8
    v_xor_b32 {v(V_KD + 1)}, 64, {v(V_KD)}
    v_xor_b32 {v(V_KD + 2)}, 0x80, {v(V_KD)}
    v_xor_b32 {v(V_KD + 3)}, 0xc0, {v(V_KD)}
    v_lshlrev_b32 v11, 4, v1
    s_nop 7
    """)
    for i in range(4):
        fb(f"v_add_u32 {v(V_KA + i)}, {s(S_CB)}, {v(V_KA + i)}")
    for i in range(8):
        fb(f"v_add_u32 {v(V_VA + i)}, {s(S_T0)}, {v(V_VA + i)}")
    for i in range(128):
        fb(f"v_accvgpr_write_b32 {a(A_O + i)}, 0")
    for i in range(16):
        fb(f"v_mov_b32 {v(V_LM + i)}, 0")
    for qt in range(4):
        fb(f"v_mov_b32 {v(V_M + qt)}, {f32(-3e38)}")
    fb(f"s_mov_b32 {s(S_KV)}, 0")
    fbl = Block()
    for q in range(2):
        fbl(f"s_add_u32 m0, {s(S_CB)}, {8192 * q}")
        fbl(f"s_add_u32 {s(S_T0)}, {s(S_KV)}, {4096 * q}")
        for n in range(4):
            fbl(k_dma(n, s(S_T0)))
        fbl(f"s_add_u32 m0, {s(S_CB)}, {16384 + 8192 * q}")
        fbl("s_nop 0")
        for n in range(4):
            fbl(v_dma(n, s(S_T0)))
    fbl("s_waitcnt vmcnt(0)")
    for kt in range(2):
        for st in range(4):
            fbl(f"ds_read_b128 {a(A_K + 16 * kt + 4 * st, 4)}, {v(V_KA + st)} offset:{kt * 8192}")
    for dt in range(8):
        for kt in range(2):
            fbl(f"ds_read_b64_tr_b16 {a(A_V + 4 * dt + 2 * kt, 2)}, {v(V_VA + dt)} offset:{kt * 8192}")
        if dt % 2:
            fbl("s_waitcnt lgkmcnt(0)")
    fbl.extend(qk_all(True))
    fbl("s_nop 7")
    for qt in range(4):
        S = V_S + 8 * qt
        m, m2, al, alt = V_T, V_T + 1, V_T + 2, V_T + 4
        M = V_M + qt
        fbl(f"v_max3_f32 {v(m)}, {v(S)}, {v(S + 1)}, {v(M)}")
        for i in range(2, 8, 2):
            fbl(f"v_max3_f32 {v(m)}, {v(m)}, {v(S + i)}, {v(S + i + 1)}")
        for swap in ("v_permlane16_swap_b32", "v_permlane32_swap_b32"):
            fbl(f"v_mov_b32 {v(m2)}, {v(m)}")
            fbl("s_nop 1")
            fbl(f"{swap} {v(m)}, {v(m2)}")
            fbl(f"v_max_f32 {v(m)}, {v(m)}, {v(m2)}")
        fbl(f"v_sub_f32 {v(al)}, {v(M)}, {v(m)}")
        fbl(f"v_exp_f32 {v(al)}, {v(al)}")
        fbl(f"v_mov_b32 {v(M)}, {v(m)}")
        for r in range(4):
            fbl(f"ds_bpermute_b32 {v(alt + r)}, v11, {v(al)} offset:{4 * r}")
        for e in range(8):
            fbl(f"v_sub_f32 {v(S + e)}, {v(S + e)}, {v(m)}")
        for e in range(8):
            fbl(sm_exp(8 * qt + e))
        fbl("s_waitcnt lgkmcnt(0)")
        for e in range(1, 8, 2):
            fbl(sm_cvt(8 * qt + e, 0))
        for r in range(4):
            fbl(f"v_mul_f32 {v(V_LM + 4 * qt + r)}, {v(V_LM + 4 * qt + r)}, {v(alt + r)}")
        for i in range(32):
            r = A_O + 32 * qt + i
            fbl(f"v_accvgpr_read_b32 {v(m2)}, {a(r)}")
            fbl(f"v_mul_f32 {v(m2)}, {v(m2)}, {v(alt + i % 4)}")
            fbl(f"v_accvgpr_write_b32 {a(r)}, {v(m2)}")
        fbl("s_nop 1")
        for dt in range(8):
            fbl(pv(qt, dt, 0))
        fbl(ones_mf(qt, 0))
    fbl("s_nop 7")
    fbl(f"s_add_u32 {s(S_KV)}, {s(S_KV)}, 8192")
    fbl(f"s_cmp_lt_u32 {s(S_KV)}, 524288")
    fbl("s_cbranch_scc1 L1_fbloop")
    fbe = Block()
    for i in range(16):
        fbe(f"v_mov_b32 {v(V_P + 16 + i)}, 0")
    for i in range(32):
        fbe(f"v_accvgpr_write_b32 {a(A_K + i)}, 0")
    for i in range(NREG0, NREG0 + 9):
        fbe(cell_m0(CELL0[i]))
        fbe(wo_off(i))
        for n in range(4):
            fbe(wo_dma(n))
    fbe("s_branch L1_epi")

    ep = epi.instrs()
    nf = len(FAST.instrs())
    ep_slow = ep[:n_slow] + ep[n_slow + nf:]
    br = next(i for i, x in enumerate(ep) if "L1_ready" in x) + 1
    ep_fast = ep[:br] + ep[n_slow:]
    check_trace(pre.instrs() + mid.instrs() + body.instrs() * 2 + post.instrs() + ep_slow, "main")
    check_trace(post.instrs() + ep_fast, "fast")
    cut = next(i for i, x in enumerate(ep) if "L1_fallback" in x) + 1
    check_trace(post.instrs() + ep[:cut] + fb.instrs() + fbl.instrs() * 2 + fbe.instrs() + ep_slow, "fallback")

    out = Block()
    out.extend(pre)
    out.extend(mid)
    out(".p2align 6")
    out("L1_loop:")
    out.extend(body)
    out(f"s_mov_b32 {s(S_CNT)}, {f32(2.0 ** 40)}")
    out.extend(post)
    out(f"s_mov_b32 {s(S_T2)}, {s(S_CNT)}")
    out.extend(epi)
    out.extend(fb)
    out("L1_fbloop:")
    out.extend(fbl)
    out.extend(fbe)
    return out


FAST = Block()


def oproj_tail():
    V_OA = 16
    V_OUT = 21
    V_PL = 22
    V_R = V_NM
    V_TMP = V_S
    NPRE = OPT["npre"]
    N0 = NREG0 + 9
    t1 = Block()
    vm = VM()
    for i in range(NREG0, N0):
        vm.add(("wo", i), 4)
    cellof = {i: CELL0[i] for i in range(N0)}
    freecells = []
    pool = [("a", 160 + 4 * i) for i in range(8)]
    pool += [("v", 48 + 4 * i) for i in range(16)]
    pool += [("a", 128 + 4 * i) for i in range(8)]
    pool += [("v", 144 + 4 * i) for i in range(8)]
    pool += [("v", 192 + 4 * i) for i in range(12)]
    late = [("a", 80 + 4 * i) for i in range(12)] + [("v", 112 + 4 * i) for i in range(8)] + [("v", 176 + 4 * i) for i in range(4)]
    areg = dict(AREG0)

    def a_reads(i):
        areg[i] = [pool.pop(0) for _ in range(4)]
        return wo_reads(areg[i], cellof[i])

    nd = [N0]

    def wo_grp():
        i = nd[0]
        nd[0] += 1
        cellof[i] = freecells.pop(0)
        vm.add(("wo", i), 4)
        return [cell_m0(cellof[i]), wo_off(i)] + [wo_dma(n) for n in range(4)]

    fin = [pv(qt, dt, 1, False, A_K) for qt in range(4) for dt in range(8)]
    m = V_T
    guard = [f"v_max3_f32 {v(m)}, {v(V_LM)}, {v(V_LM + 1)}, {v(V_LM + 2)}"]
    guard += [f"v_max3_f32 {v(m)}, {v(m)}, {v(V_LM + i)}, {v(V_LM + i + 1)}" for i in range(3, 15, 2)]
    guard += [f"v_max_f32 {v(m)}, {v(m)}, {v(V_LM + 15)}"]
    gaps = [[], [], []] + [guard[2 * i:2 * i + 2] for i in range(4)]
    gaps[0] = ["s_nop 1"]
    t1.extend(interleave(fin[:7], gaps))
    t1(f"v_cmp_gt_f32 vcc, {v(m)}, {s(S_T2)}")
    t1(fin[7])
    t1(f"s_lshl_b32 {s(S_T0)}, {s(S_WAVE)}, 19")
    t1("s_cbranch_vccnz L1_fallback")
    t1(f"s_lshl_b32 {s(S_T1)}, {s(S_H)}, 12")
    t1(f"s_add_u32 {s(S_T0)}, {s(S_T0)}, {s(S_T1)}")
    rcp = [f"v_rcp_f32 {v(V_R + i)}, {v(V_LM + i)}" for i in range(16)]

    def group(qt, r, packed):
        tb = V_TMP + 12 * ((4 * qt + r) % 2)
        out = [f"v_accvgpr_read_b32 {v(tb + i)}, {a(A_O + 32 * qt + 4 * i + r)}" for i in range(8)]
        if packed:
            sel = "op_sel_hi:[1,0]" if r % 2 == 0 else "op_sel:[0,1] op_sel_hi:[1,1]"
            out += [f"v_pk_mul_f32 {v(tb + 2 * i, 2)}, {v(tb + 2 * i, 2)}, {v(V_R + 4 * qt + (r & 2), 2)} {sel}" for i in range(4)]
        else:
            out += [f"v_mul_f32 {v(tb + i)}, {v(tb + i)}, {v(V_R + 4 * qt + r)}" for i in range(8)]
        out += [f"v_cvt_pk_bf16_f32 {v(tb + 8 + i)}, {v(tb + 2 * i)}, {v(tb + 2 * i + 1)}" for i in range(4)]
        out.append(f"buffer_store_dwordx4 {v(tb + 8, 4)}, {v(V_OS)}, {s(SRD_O, 4)}, {s(S_T0)} offen offset:{r * 1024} sc1")
        return out

    gaps = [[] for _ in range(24)]
    for i in range(4):
        gaps[i].append(rcp[i])
    seq = group(0, 0, False) + group(0, 1, False)
    vm.add("st", 2)
    gi = 4
    while seq and gi < 24:
        if seq[0].startswith("buffer"):
            gaps[gi].append(seq.pop(0))
        else:
            gaps[gi].append(seq.pop(0))
            if seq and not seq[0].startswith("buffer"):
                gaps[gi].append(seq.pop(0))
        gi += 1
    t1.extend(interleave(fin[8:], gaps))
    t1.extend(seq)
    t1.extend(rcp[4:])
    t1(f"""
    ; O load voffset: ((l%16)/4)*1024 + G*64 + (l%4)*16 + mt*131072
    v_lshlrev_b32 v8, 10, v7
    v_lshl_add_u32 v8, v1, 6, v8
    v_lshl_add_u32 {v(V_OA)}, v4, 4, v8
    v_add_u32 {v(V_OA + 1)}, 0x20000, {v(V_OA)}
    v_add_u32 {v(V_OA + 2)}, 0x40000, {v(V_OA)}
    v_add_u32 {v(V_OA + 3)}, 0x60000, {v(V_OA)}
    v_add_u32 {v(V_OA + 4)}, 0x80000, {v(V_OA)}
    ; out voffset: (4*(l%4) + (l%16)/4)*1280 + G*8
    v_lshl_add_u32 v8, v4, 2, v7
    v_mul_u32_u24 v8, 1280, v8
    v_lshl_add_u32 {v(V_OUT)}, v1, 3, v8
    s_mov_b32 {s(S_CNT)}, 0x40000
    L1_chk:
    v_readfirstlane_b32 {s(S_T1)}, {v(V_IN)}
    s_sub_u32 {s(S_CNT)}, {s(S_CNT)}, 1
    s_cbranch_scc1 L1_clr
    s_cmp_ge_u32 {s(S_T1)}, 32
    s_cbranch_scc1 L1_clr
    buffer_load_dword {v(V_IN)}, {v(V_Z)}, {s(SRD_DBG, 4)}, 0 offen offset:128 sc1 ; rare
    s_waitcnt vmcnt(0) ; rare
    s_branch L1_chk ; rare
    L1_clr:
    s_mov_b32 {s(S_CNT)}, 0x40000
    """)
    stamp(t1)
    POLL = f"buffer_load_dword {v(V_PL)}, {v(V_Z)}, {s(SRD_FL, 4)}, {s(S_POLL)} offen sc1"
    na = NREG0
    for idx in range(2, 16):
        qt, r = idx // 4, idx % 4
        if r == 0:
            t1(f"s_add_u32 {s(S_T0)}, {s(S_T0)}, 131072")
        t1.extend(group(qt, r, True))
        vm.add("st")
        if idx == OPT["pollat"]:
            t1(POLL)
            vm.add("poll")
        if OPT["stdma"] and na > NREG0 and nd[0] == na + 8:
            t1("s_waitcnt lgkmcnt(0)")
            freecells.append(cellof[na - 1])
            t1.extend(wo_grp())
        if na < NPRE:
            t1(f"s_waitcnt vmcnt({vm.cnt(('wo', na))})")
            t1.extend(a_reads(na))
            na += 1
    if not OPT["stdma"]:
        t1("s_waitcnt lgkmcnt(0)")
        for i in range(NREG0, NPRE):
            freecells.append(cellof[i])
            t1.extend(wo_grp())
    assert na == NPRE and nd[0] == NPRE + 9, (na, nd)
    stamp(t1)
    pool.extend(late)
    freecells.append(CELL_U[7])

    breg = {}
    nb = [0]
    free = pool

    def b_loads():
        ks = nb[0]
        nb[0] += 1
        breg[ks] = [free.pop(0) for _ in range(5)]
        vm.add(("o", ks), 5)
        return [f"buffer_load_dwordx4 {quad(breg[ks][mt])}, {v(V_OA + mt)}, {s(SRD_OO, 4)}, {s(S_OTAB + ks // 4)} offen offset:{(ks % 4) * 256} sc1"
                for mt in range(5)]

    def signal(lbl):
        return f"""
        s_barrier
        s_cmp_lg_u32 {s(S_WAVE)}, 0
        s_cbranch_scc1 {lbl}
        s_lshr_b32 {s(S_T0)}, {s(S_H)}, 3
        s_lshl_b32 {s(S_T1)}, {s(S_B)}, 2
        s_add_u32 {s(S_T0)}, {s(S_T0)}, {s(S_T1)}
        s_lshl_b32 {s(S_T0)}, {s(S_T0)}, 8
        v_mov_b32 v8, 1
        s_mov_b64 exec, 1
        buffer_atomic_add v8, {v(V_Z)}, {s(SRD_FL, 4)}, {s(S_T0)} offen sc1
        s_mov_b64 exec, -1
        {lbl}:
        """

    t1(f"s_waitcnt vmcnt({vm.cnt('poll')})")
    t1(f"""
    v_readfirstlane_b32 {s(S_T1)}, {v(V_PL)}
    s_cmp_ge_u32 {s(S_IDX)}, 30
    s_cselect_b32 {s(S_T1)}, 0, {s(S_T1)}
    s_cmp_ge_u32 {s(S_T1)}, 8
    s_cbranch_scc1 L1_ready
    """)
    n_st = vm.cnt("st")
    first_b = []
    while len(free) >= 5 and nb[0] < OPT["bdepth"]:
        first_b += b_loads()
    t1(f"s_waitcnt vmcnt({n_st})")
    t1(signal("L1_nosig"))
    stamp(t1)
    t1(f"""
    s_cmp_ge_u32 {s(S_IDX)}, 30
    s_cbranch_scc1 L1_fin
    L1_poll:
    {POLL}
    s_sub_u32 {s(S_CNT)}, {s(S_CNT)}, 1
    s_cbranch_scc1 L1_go
    s_waitcnt vmcnt(0)
    v_readfirstlane_b32 {s(S_T1)}, {v(V_PL)}
    s_nop 0
    s_cmp_lt_u32 {s(S_T1)}, 8
    s_cbranch_scc1 L1_poll
    L1_go:
    """)
    stamp(t1)
    t1.extend(first_b)
    t1("s_branch L1_mm")
    t1("L1_ready:")
    FAST.extend(first_b)
    FAST(f"s_waitcnt vmcnt({vm.cnt('st')})")
    FAST(signal("L1_nosig2"))
    if OPT["stamp"]:
        stamp(FAST, 6)
        stamp(FAST, 7)
    FAST("L1_mm:")
    t2 = Block()
    for ks in range(32):
        t2(f"s_waitcnt vmcnt({vm.cnt(('o', ks))})")
        if OPT["stamp"] > 2 and ks % 4 == 0:
            stamp(t2, 52 + ks // 4)
        mf = []
        for nt in range(4):
            for mt in range(5):
                d = a(4 * (5 * nt + mt), 4)
                c = "0" if ks == 0 else d
                mf.append(f"{MF} {d}, {quad(areg[ks][nt])}, {quad(breg[ks][mt])}, {c}")
        vmem = []
        dsr = []
        done = max(i for i, x in enumerate(vm.ops) if x == ("o", ks)) + 1
        if ks == 0:
            nd0 = nd[0]
        can_dma = nd[0] < 32 and freecells and (nd[0] - nd0) * 27 <= ks * (32 - nd0)
        if na < nd[0] and len(free) >= 9 and (na - ks <= 3 or ("wo", na) not in vm.ops[done:]):
            if ("wo", na) in vm.ops[done:]:
                t2(f"s_waitcnt vmcnt({vm.cnt(('wo', na))})")
            dsr = a_reads(na)
            na += 1
        assert na > ks + 1 or na == 32, (ks, na)
        if nb[0] < 32:
            vmem += b_loads()
        if can_dma:
            vmem += wo_grp()
        gaps = [[] for _ in range(20)]
        nv = sum(x.startswith("buffer") for x in vmem)
        step = max(1, 20 // max(nv, 1))
        gi = 0
        busy = set()
        for x in vmem:
            gaps[min(gi, 19)].append(x)
            if x.startswith("buffer"):
                busy.add(gi)
                gi += min(step, 4)
        gi = 0
        for x in dsr:
            while gi in busy and gi < 19:
                gi += 1
            gaps[min(gi, 19)].append(x)
            gi += 1
        t2.extend(interleave(mf, gaps))
        if dsr:
            t2("s_waitcnt lgkmcnt(0)")
            freecells.append(cellof[na - 1])
        free.extend(areg[ks] + breg[ks])
    stamp(t2, 24)
    VB = 48
    t2(f"""
    v_add_u32 v8, {s(S_CB)}, {v(V_OD)}
    s_lshl_b32 {s(S_T0)}, {s(S_WAVE)}, 10
    v_add_u32 v10, {s(S_T0)}, {v(V_OD)}
    v_add_u32 v11, 0x10000, v10
    s_nop 3
    """)
    for nt in range(4):
        for mt in range(5):
            t2(f"ds_write_b128 v8, {a(4 * (5 * nt + mt), 4)} offset:{mt * 8192 + nt * 1024}")
    t2("s_waitcnt lgkmcnt(0)")
    t2("s_barrier")
    for mt in range(5):
        for w in range(4):
            t2(f"ds_read_b128 {v(VB + 16 * mt + 4 * w, 4)}, v{10 + w // 2} offset:{(w % 2) * 4096 + mt * 8192}")
        if mt % 2 == 1:
            t2("s_waitcnt lgkmcnt(0)")
    t2(f"""
    s_lshl_b32 {s(S_T0)}, {s(S_CT)}, 7
    s_lshl_b32 {s(S_T1)}, {s(S_WAVE)}, 5
    s_add_u32 {s(S_T0)}, {s(S_T0)}, {s(S_T1)}
    s_waitcnt lgkmcnt(0)
    """)
    for mt in range(5):
        r = VB + 16 * mt
        for i in range(4):
            t2(f"v_add_f32 {v(r + i)}, {v(r + i)}, {v(r + 4 + i)}")
            t2(f"v_add_f32 {v(r + 8 + i)}, {v(r + 8 + i)}, {v(r + 12 + i)}")
        for i in range(4):
            t2(f"v_add_f32 {v(r + i)}, {v(r + i)}, {v(r + 8 + i)}")
        t2(f"v_cvt_pk_bf16_f32 {v(r + 4)}, {v(r)}, {v(r + 1)}")
        t2(f"v_cvt_pk_bf16_f32 {v(r + 5)}, {v(r + 2)}, {v(r + 3)}")
        t2(f"buffer_store_dwordx2 {v(r + 4, 2)}, {v(V_OUT)}, {s(SRD_OUT, 4)}, {s(S_T0)} offen")
        t2(f"s_add_u32 {s(S_T0)}, {s(S_T0)}, {16 * 1280}")
    return t1, t2


HEADER = """; Fused MHA block: q = x@wq, softmax(q k^T / sqrt(128)) v, out = o@wo   (gfx950, generated by gen/gen.py)
; Kernarg: 0 x, 8 k_cache, 16 v_cache, 24 wq, 32 wo, 40 out, 48 debug, 56 ws
; @launch grid=(256,1,1) block=(256,1,1) lds=163840
.amdgcn_target "amdgcn-amd-amdhsa--gfx950"
.text
"""


def kd(name, vg, acc):
    return f""".p2align 6
.amdhsa_kernel {name}
  .amdhsa_next_free_vgpr {vg}
  .amdhsa_next_free_sgpr 102
  .amdhsa_accum_offset {acc}
  .amdhsa_group_segment_fixed_size 0
  .amdhsa_kernarg_size 64
  .amdhsa_user_sgpr_count 2
  .amdhsa_user_sgpr_kernarg_segment_ptr 1
  .amdhsa_system_sgpr_workgroup_id_x 1
.end_amdhsa_kernel
"""


def main():
    k1 = kernel()
    txt = HEADER
    txt += f".globl {KNAME}\n.p2align 8\n.type {KNAME},@function\n" + k1.text()
    txt += '.section .rodata,"a"\n' + kd(KNAME, 512, 256)
    open(sys.argv[1], "w").write(txt)


main()
```

```python
import math
import struct
import sys
from asmlib import *

OPT = dict(stamp=0, nocompute=0, nodma=0, wotouch=4, orot=0, diagpace=0, adk=0, padzero=1, dbgout=0, qkord=0, npre=15, pollat=9, rot3=0, b2map=1, l2touch=0, l2h0=3, bdepth=5, stdma=1, ctouch=1, diagv=0, qrot=1, olay=1, tq=0, qpo=0, opo=0, kvat=8, x2at=1, tlb=0, lastm=3)
for arg in sys.argv[2:]:
    k, val = arg.split("=")
    assert k in OPT, k
    OPT[k] = int(val)


def f32(x):
    return "0x%08x" % struct.unpack("<I", struct.pack("<f", x))[0]


SCALE = math.log2(math.e) / math.sqrt(128.0)
MF = "v_mfma_f32_16x16x32_bf16"
KNAME = "standalone__mha_block_cached__near_ridge_kernel"

S_WAVE = 3
S_B, S_H = 100, 101
SRD_CODE = 4
SRD_X, SRD_WQ, SRD_K, SRD_V, SRD_O = 8, 12, 16, 20, 24
S_X0, S_X1, S_WQO = 28, 29, 30
S_XL = 0
S_WM0 = 32
S_WOO, S_CB, S_CT = 33, 34, 35
S_OTAB = 36
S_XB = 44
S_IDX, S_XC = 46, 47
S_W2048 = 49
S_KV = 50
S_CNT = 51
S_T0, S_T1, S_T2 = 52, 53, 54
S_ROT, S_B2, S_POLL, S_INIT = 55, 48, 58, 59
S_SCALE = 56
S_STAMP = 60
SRD_WO, SRD_OO, SRD_OUT, SRD_DBG, SRD_FL = 64, 68, 72, 80, 76
S_WTAB = 92
XB = [44, 45, 31]

V_KA = 16
V_VA = 20
V_KD = 28
V_VD = 32
V_XD = 34
V_WD = 38
V_WA = 40
V_ONE = 44
V_Q = 48
V_S = 112
V_P = 144
V_NM = 176
V_LM = 192
V_M = 208
V_T = 212
V_QACC = 112
V_ST = 240
V_DUM = 242
V_OD = 243
V_WDD = 244
V_XA = 248
V_OS = 254
V_Z = 255
V_IN = 14

A_O = 0
A_K = 128
A_V = 160
A_K0 = 192
A_QA = 0
A_QB = 64

LDS_WQ = 131072
LDS_V = 65536


def unit(t):
    return (t % 8) * 8192


nstamp = [0]


def stamp(b, lane=None):
    if not OPT["stamp"]:
        return
    if lane is None:
        lane = nstamp[0]
        nstamp[0] += 1
    b(f"s_memrealtime {s(S_STAMP, 2)}")
    b(f"s_memtime {s(S_STAMP + 2, 2)}")
    b("s_waitcnt lgkmcnt(0)")
    b(f"v_writelane_b32 {v(V_ST)}, {s(S_STAMP)}, {lane}")
    b(f"v_writelane_b32 {v(V_ST + 1)}, {s(S_STAMP + 2)}, {lane}")


def stamp_store(b, endlabel):
    b(f"""
    s_cmp_lg_u32 {s(S_WAVE)}, 0
    s_cbranch_scc1 {endlabel}
    s_add_u32 s8, s90, 0x4000000
    s_addc_u32 s9, s91, 0
    s_mov_b32 s10, 0x100000
    s_mov_b32 s11, 0x20000
    s_lshl_b32 s12, s2, 9
    v_lshlrev_b32 v1, 3, v0
    buffer_store_dwordx2 {v(V_ST, 2)}, v1, s[8:11], s12 offen
    """)


class VM:
    def __init__(self):
        self.ops = []

    def add(self, tag, n=1):
        self.ops += [tag] * n

    def cnt(self, *tags):
        last = max(i for i, x in enumerate(self.ops) if x in tags)
        return min(63, len(self.ops) - 1 - last)


def k_dma(n, soff):
    return f"buffer_load_dwordx4 {v(V_KD + n)}, {s(SRD_K, 4)}, {soff} offen offset:{1024 * n} nt lds"


def v_dma(n, soff):
    if OPT["diagv"]:
        return f"buffer_load_dwordx4 {v(V_VD + n % 2)}, {s(SRD_V, 4)}, {s(S_W2048)} offen offset:{1024 * n} sc1 lds"
    return f"buffer_load_dwordx4 {v(V_VD + n % 2)}, {s(SRD_V, 4)}, {soff} offen offset:{1024 * n} nt lds"


CTOUCH = f"buffer_load_dword v6, v12, {s(SRD_CODE, 4)}, 0 offen"
KV_INC = f"s_add_u32 {s(S_KV)}, {s(S_KV)}, 8192"


def kv_group(g):
    return [f"s_add_u32 m0, {s(S_W2048)}, {LDS_V + unit(g)}", v_dma(0, s(S_KV)), v_dma(1, s(S_KV)), KV_INC,
            f"s_add_u32 m0, {s(S_W2048)}, {unit(g + 1)}", k_dma(0, s(S_KV)), k_dma(1, s(S_KV))]


def k_read(t, kt, st, base=A_K):
    return f"ds_read_b128 {a(base + 16 * kt + 4 * st, 4)}, {v(V_KA + st)} offset:{unit(t) + 4096 * kt}"


def v_read(t, dt, kt, base=A_V):
    return f"ds_read_b64_tr_b16 {a(base + 4 * dt + 2 * kt, 2)}, {v(V_VA + dt)} offset:{unit(t) + 4096 * kt}"


def qk(qt, kt, st, c0, base=A_K):
    d = v(V_S + 8 * qt + 4 * kt, 4)
    c = c0 if st == 0 else d
    return f"{MF} {d}, {a(base + 16 * kt + 4 * st, 4)}, {v(V_Q + 16 * qt + 4 * st, 4)}, {c}"


def qk_all(zero=False, base=A_K):
    return [qk(qt, kt, st, "0" if zero else v(V_NM + 4 * qt, 4), base)
            for qt in range(4) for kt in range(2) for st in range(4)]


def pv(qt, dt, par, zero=False, base=A_V):
    d = a(A_O + 32 * qt + 4 * dt, 4)
    return f"{MF} {d}, {v(V_P + 16 * par + 4 * qt, 4)}, {a(base + 4 * dt, 4)}, {'0' if zero else d}"


def ones_mf(qt, par, zero=False):
    d = v(V_LM + 4 * qt, 4)
    return f"{MF} {d}, {v(V_P + 16 * par + 4 * qt, 4)}, {v(V_ONE, 4)}, {'0' if zero else d}"


def sm_exp(e):
    r = v(V_S + e)
    return f"v_exp_f32 {r}, {r}"


def sm_cvt(e, par):
    return f"v_cvt_pk_bf16_f32 {v(V_P + 16 * par + e // 2)}, {v(V_S + e - 1)}, {v(V_S + e)}"


NG = 68
EG = [10 + 2 * e for e in range(32)]
V_GAPS = list(range(1, 32, 2))
D_GAPS = [39, 45, 51, 57]
K_GAPS = [41, 43, 47, 49, 53, 55, 59, 61]
G_VWAIT, G_WAIT, G_BAR, G_M0A, G_INC, G_M0B, G_KWAIT = 30, 36, 37, 38, 46, 50, 67
G_CNT, G_CMP = 62, 64
CG = {}
for e in range(1, 32, 2):
    g = EG[e] + 1
    while g % NG in D_GAPS:
        g += 2
    CG[e] = g
XD_GAPS = [6, 12, 18, 24]


def wo_off(i):
    return f"s_add_u32 {s(S_WOO)}, {s(S_WTAB + i // 4)}, {(i % 4) * 4 * 1280}"


def wo_dma(n):
    return f"buffer_load_dwordx4 {v(V_WDD + n)}, {s(SRD_WO, 4)}, {s(S_WOO)} offen offset:{1024 * n} lds"


CELL_X = [(S_XC, 0), (S_XC, 4096)]
CELL_U = [(S_CB, 8192 * u) for u in range(8)]
NREG0 = 4
CELL0 = [CELL_X[0], CELL_X[1], CELL_X[0], CELL_U[0], CELL_X[1], CELL_U[1], CELL_U[2], CELL_U[3], CELL_U[4],
         CELL_X[0], CELL_U[5], CELL_U[0], CELL_U[6]]
V_AA = 34


def wo_reads(quads, cell):
    wdw = 1 if cell[0] == S_XC else 0
    return [f"ds_read_b64_tr_b16 {quad(quads[nt], 2 * e, 2)}, {v(V_AA + 4 * wdw + nt)} offset:{cell[1] + 2048 * e}"
            for nt in range(4) for e in range(2)]


def quad(q, off=0, n=4):
    kind, base = q
    return (a if kind == "a" else v)(base + off, n)


AREG0 = {i: [("a", 192 + 16 * i + 4 * nt) for nt in range(4)] for i in range(NREG0)}


def cell_m0(c):
    return f"s_add_u32 m0, {s(c[0])}, {c[1]}"


def subtile(t, vm=None, mode="loop"):
    par = t % 2
    zero = mode == "first" and t == 1
    mf = qk_all() + [pv(qt, dt, 1 - par, zero) for dt in range(8) for qt in range(4)] + [ones_mf(qt, 1 - par, zero) for qt in range(4)]
    gaps = [[] for _ in range(NG)]
    for r, g in zip([v_read(t - 1, dt, kt) for dt in range(8) for kt in range(2)], V_GAPS):
        gaps[g].append(r)
    gaps[G_VWAIT].append("s_waitcnt lgkmcnt(2)")
    final = mode == "last" and t == 7
    if final:
        fg = [41, 43, 47, 49, 53, 55, 59, 61, 63, 65, 40, 44, 48, 52, 56, 60]
        for r, g in zip([v_read(t, dt, kt, A_K) for dt in range(8) for kt in range(2)], sorted(fg)):
            gaps[g].append(r)
    else:
        for r, g in zip([k_read(t + 1, kt, st) for kt in range(2) for st in range(4)], K_GAPS):
            gaps[g].append(r)
        gaps[G_KWAIT].append("s_waitcnt lgkmcnt(0)")

    def put_group(ops, g_pre, dg):
        i = 0
        npre = 0
        for x in ops:
            if x.startswith("buffer"):
                gaps[dg[i]].append(x)
                i += 1
                npre = 0
            else:
                gaps[dg[i] - g_pre[npre]].append(x)
                npre += 1

    def wo_group(i):
        vm.add(("wo", i), 4)
        return [wo_off(i), cell_m0(CELL0[i])] + [wo_dma(n) for n in range(4)]

    if mode == "first" and t == 2:
        put_group(kv_group(8), [4, 2], XD_GAPS)
        vm.add(("kv", 8), 4)
    if mode == "first" and t in (4, 6):
        put_group(wo_group({4: 0, 6: 1}[t]), [4, 2], XD_GAPS)
    if mode == "last" and t in (1, 2, 6, 7):
        put_group(wo_group({1: 2, 2: 4, 6: 9, 7: 11}[t]), [4, 2], XD_GAPS)
    if (mode, t) == (("last", 0) if OPT["wotouch"] == 1 else ("first", 5)) and OPT["wotouch"] in (1, 2):
        gaps[28].append(f"buffer_load_dword {v(V_DUM)}, v15, {s(SRD_WO, 4)}, {s(S_T2)} offen")
        vm.add("touch")
    if mode == "last" and OPT["l2touch"] and OPT["l2h0"] + t < 8:
        gaps[33].append(f"buffer_load_dword {v(V_T + t)}, v13, {s(SRD_WO, 4)}, {s(S_WTAB + OPT['l2h0'] + t)} offen")
        vm.add("touch")
    if mode == "last" and t == 0:
        gaps[8].append(f"buffer_load_dword {v(V_IN)}, {v(V_Z)}, {s(SRD_DBG, 4)}, 0 offen offset:128 sc1")
        vm.add("init")
    rd0 = {("last", 0): 0, ("last", 5): 2, ("last", 6): 3}.get((mode, t))
    if rd0 is not None:
        steps = [0, 1] if rd0 == 0 else [rd0]
        fg = [40, 42, 44, 48, 52, 54, 63, 65] + [56, 58, 60, 62, 63, 64, 65, 66]
        rr = [x for i in steps for x in wo_reads(AREG0[i], CELL0[i])]
        for r, g in zip(rr, sorted(fg[:len(rr)])):
            gaps[g].append(r)
    n = 24 if mode == "loop" else vm.cnt(("kv", t + (56 if mode == "last" else 0)), ("wo", rd0))
    gaps[G_WAIT].append(f"s_waitcnt vmcnt({n}) lgkmcnt(0)")
    gaps[G_BAR].append("s_barrier")
    if mode == "last":
        if t == 0:
            put_group(kv_group(63)[:3], [1], D_GAPS)
            vm.add(("kv", 63), 2)
        else:
            put_group(wo_group({1: 3, 2: 5, 3: 6, 4: 7, 5: 8, 6: 10, 7: 12}[t]), [5, 1], D_GAPS)
    else:
        g = 7 if (mode == "first" and t == 1) else t + 7
        ops = kv_group(g)
        gaps[G_M0A].append(ops[0])
        gaps[D_GAPS[0]].append(ops[1])
        gaps[D_GAPS[1]].append(ops[2])
        gaps[G_INC].append(ops[3])
        gaps[G_M0B].append(ops[4])
        gaps[D_GAPS[2]].append(ops[5])
        gaps[D_GAPS[3]].append(ops[6])
        if vm is not None:
            vm.add(("kv", g), 4)
        if mode == "loop" and t == 3 and OPT["ctouch"] == 1:
            gaps[65].append(CTOUCH)
        if mode == "loop" and t == 6 and OPT["wotouch"] == 4:
            gaps[65].append(f"buffer_load_dword {v(V_DUM)}, v15, {s(SRD_WO, 4)}, {s(S_T2)} offen")
            gaps[66].append(f"s_add_u32 {s(S_T2)}, {s(S_T2)}, 4096")
        if mode == "loop" and t == 7:
            gaps[G_CNT].append(f"s_sub_u32 {s(S_CNT)}, {s(S_CNT)}, 1")
            gaps[G_CMP].append(f"s_cmp_lg_u32 {s(S_CNT)}, 0")
    for e in range(32):
        gaps[EG[e] % NG].append(sm_exp(e))
    for e, g in CG.items():
        gaps[g % NG].append(sm_cvt(e, par if g < NG else 1 - par))
    cand = [g for g in range(NG) if len(gaps[g]) == 2 and gaps[g][0].startswith("ds_") and gaps[g][1].startswith("v_cvt")]
    k = min(OPT["adk"], len(cand))
    for i in range(k):
        gaps[cand[(i * len(cand)) // k]].reverse()
    for i in range(OPT["diagpace"]):
        gaps[(2 * i) % NG].append("s_nop 1")
    if OPT["nocompute"]:
        return flat([x for g in gaps for x in g if x.startswith(("s_", "buffer"))])
    if OPT["nodma"]:
        gaps = [[x for x in g if not x.startswith("buffer")] for g in gaps]
    return interleave(mf, gaps)


def flat(lst):
    out = []
    for x in lst:
        out.append(x)
        if " m0," in x:
            out.append("s_nop 0")
    return out


def conv_q(qt, packed):
    out = []
    for st in range(4):
        acc = V_QACC + 4 * (8 * qt + 2 * st)
        if packed:
            out += [f"v_pk_mul_f32 {v(acc + 2 * i, 2)}, {v(acc + 2 * i, 2)}, {s(S_SCALE, 2)}" for i in range(4)]
        else:
            out += [f"v_mul_f32 {v(acc + i)}, {s(S_SCALE)}, {v(acc + i)}" for i in range(8)]
        out += [f"v_cvt_pk_bf16_f32 {v(V_Q + 16 * qt + 4 * st + i)}, {v(acc + 2 * i)}, {v(acc + 2 * i + 1)}" for i in range(4)]
    return out


def spread(gaps, dm, start, step):
    gi = start
    si = 0
    busy = set()
    for d in dm:
        if d.startswith("buffer"):
            gaps[gi].append(d)
            busy.add(gi)
            si = gi + 1
            gi += step
        else:
            g = min(si, gi - 1, len(gaps) - 1)
            gaps[g].append(d)
            si = g + 1
    return busy


def qproj_phase(vm):
    b = Block()

    def wq_dma(j):
        vm.add(("wq", j), 2)
        return ([f"s_add_u32 m0, {s(S_WM0)}, {(j % 4) * 8192}"]
                + [f"buffer_load_dwordx4 {v(V_WD + n)}, {s(SRD_WQ, 4)}, {s(S_WQO)} offen offset:{1024 * n} lds" for n in range(2)]
                + [f"s_add_u32 {s(S_WQO)}, {s(S_WQO)}, {32 * 8192}"]
                + ([f"s_cmp_ge_u32 {s(S_WQO)}, {640 * 8192}", f"s_cselect_b32 {s(S_T0)}, {640 * 8192}, 0",
                    f"s_sub_u32 {s(S_WQO)}, {s(S_WQO)}, {s(S_T0)}"] if OPT["qrot"] and j % 2 == 1 else []))

    def x_dma(st, g):
        vm.add(("x", st), 4)
        return ([f"s_add_u32 m0, {s(XB[st % 3])}, {4096 * g}"]
                + [f"buffer_load_dwordx4 {v(V_XD + n)}, {s(SRD_X, 4)}, {s(S_X0 + g)} offen offset:{1024 * n} lds" for n in range(4)]
                + [f"s_add_u32 {s(S_X0 + g)}, {s(S_X0 + g)}, 128"]
                + ([f"s_cmp_ge_u32 {s(S_X0 + g)}, {s(S_XL + g)}", f"s_cselect_b32 {s(S_T0)}, 1280, 0",
                    f"s_sub_u32 {s(S_X0 + g)}, {s(S_X0 + g)}, {s(S_T0)}"] if OPT["qrot"] else []))

    def kvg(g):
        vm.add(("kv", g), 4)
        return kv_group(g)

    first = Block()
    if OPT["ctouch"]:
        vm.add("touch")
    first.extend(flat(wq_dma(0) + x_dma(0, 0) + x_dma(0, 1) + wq_dma(1)))
    second = Block()
    second.extend(flat(wq_dma(2) + x_dma(1, 0) + x_dma(1, 1)))
    kv0 = Block()
    k0 = [f"s_mov_b32 m0, {s(S_W2048)}", k_dma(0, s(S_KV)), k_dma(1, s(S_KV))]
    if OPT["kvat"] == 0:
        kv0.extend(flat(k0))
        vm.add(("kv", -1), 2)
        kv0.extend(flat(kvg(0)))
    if OPT["tlb"]:
        kv0(f"buffer_load_dword v10, {v(V_Z)}, {s(SRD_K, 4)}, 0 offen nt")
        kv0(f"buffer_load_dword v11, {v(V_Z)}, {s(SRD_V, 4)}, 0 offen nt")
        vm.add("touch", 2)
    if OPT["x2at"] == 2:
        kv0.extend(flat(x_dma(2, 0) + x_dma(2, 1)))

    def a_reads(j):
        base = A_QA + 32 * (j % 2)
        return [f"ds_read_b64_tr_b16 {a(base + 4 * (2 * st + e) + 2 * jj, 2)}, {v(V_WA + st)} offset:{(j % 4) * 8192 + 1024 * jj + (8 if not OPT['qpo'] & 4 else 0) * e}"
                for st in range(4) for e in range(2) for jj in range(2)]

    def b_reads(stg):
        base = A_QB + 32 * (stg % 2)
        return [f"ds_read_b128 {a(base + 16 * ks + 4 * qt, 4)}, {v(V_XA + 2 * (stg % 3) + ks)} offset:{2048 * qt}"
                for ks in range(2) for qt in range(4)]

    def mfmas(j):
        ab = A_QA + 32 * (j % 2)
        bb = A_QB + 32 * ((j // 2) % 2) + 16 * (j % 2)
        out = []
        order = [(qt, dtile) for qt in range(4) for dtile in range(8)]
        if OPT["qpo"] & 1 and j < 19:
            order = [(qt, dtile) for dtile in range(8) for qt in range(4)]
        for qt, dtile in order:
            d = v(V_QACC + 4 * (8 * qt + dtile), 4)
            c = "0" if j == 0 else d
            if OPT["qpo"] & 2:
                out.append(f"{MF} {d}, {a(bb + 4 * qt, 4)}, {a(ab + 4 * dtile, 4)}, {c}")
            else:
                out.append(f"{MF} {d}, {a(ab + 4 * dtile, 4)}, {a(bb + 4 * qt, 4)}, {c}")
        return out

    for j in range(20):
        gaps = [[] for _ in range(32)]
        tags = [("wq", j)] + ([("x", j // 2)] if j % 2 == 0 else [])
        if j == 19:
            tags.append(("kv", 0))
        b(f"s_waitcnt vmcnt({vm.cnt(*tags)})")
        b("s_barrier")
        if j == 1:
            stamp(b)
        if OPT["stamp"] > 2:
            stamp(b, 32 + j)
        rd = a_reads(j)
        if j % 2 == 0:
            br = b_reads(j // 2)
            rd = br[:4] + rd + br[4:]
        dm = []
        if j + 3 < 20:
            dm += wq_dma(j + 3)
        if j == 0 and OPT["x2at"] == 0:
            dm += x_dma(2, 0) + x_dma(2, 1)
        if OPT["x2at"] == 1:
            xs = {1: [(2, 0)], 2: [(2, 1)], 3: [(3, 0)], 4: [(3, 1), (4, 0)], 5: [(4, 1)], 6: [(5, 0), (5, 1)]}.get(j)
            if xs is None:
                xs = []
                if j % 2 == 1 and j // 2 + 3 < 10:
                    xs = [(j // 2 + 3, 0)]
                if j % 2 == 0 and j >= 2 and j // 2 + 2 < 10:
                    xs = [(j // 2 + 2, 1)]
            for st_, g_ in xs:
                dm += x_dma(st_, g_)
        else:
            if j % 2 == 1 and j // 2 + 3 < 10:
                dm += x_dma(j // 2 + 3, 0)
            if j % 2 == 0 and j >= 2 and j // 2 + 2 < 10:
                dm += x_dma(j // 2 + 2, 1)
        if OPT["kvat"] == 15:
            if j == 15:
                dm += k0 + kv_group(0)
                vm.add(("kv", 0), 6)
        elif OPT["kvat"] and j - OPT["kvat"] in (0, 1, 2):
            g0 = kv_group(0)
            dm += [k0, g0[:4], g0[4:]][j - OPT["kvat"]]
            vm.add(("kv", 0), 2)
        if j == 17 and OPT["wotouch"] == 3:
            dm.append(f"buffer_load_dword {v(V_DUM)}, v15, {s(SRD_WO, 4)}, {s(S_T2)} offen")
            vm.add("touch")
        if j >= 16:
            dm += kvg(j - 15)
        if j == 0:
            b.extend(rd)
            b.extend(flat(dm))
        else:
            nd_ = sum(x.startswith("buffer") for x in dm)
            busy = spread(gaps, dm, 2 if nd_ <= 8 else 1, 5 if nd_ <= 6 else (4 if nd_ <= 8 else 3))
            fr = [g for g in range(30) if g not in busy]
            extra = len(rd) - len(fr)
            gi = 0
            for r in rd:
                gaps[fr[gi]].append(r)
                if extra > 0 and sum(x.startswith("ds_") for x in gaps[fr[gi]]) == 1:
                    extra -= 1
                else:
                    gi += 1
            b.extend(interleave(mfmas(j - 1), gaps))
        b("s_waitcnt lgkmcnt(0)")
    gaps = [[] for _ in range(32)]
    kr = [k_read(0, kt, st, A_K0) for kt in range(2) for st in range(4)] + [k_read(1, kt, st) for kt in range(2) for st in range(4)]
    busy = spread(gaps, kvg(5), 2, 3)
    gi = 0
    for r in kr[:9]:
        while gi in busy:
            gi += 1
        gaps[gi].append(r)
        gi += 1
    cv = conv_q(0, False)
    kr = kr[9:]
    for g in range(13, 32):
        if kr:
            gaps[g] += [kr.pop(0), cv.pop(0)]
        else:
            gaps[g] += [cv.pop(0), cv.pop(0)]
    b.extend(interleave(mfmas(19), gaps))
    b.extend(cv)
    return first, second, kv0, b


def kernel():
    vm = VM()
    b = Block()
    b(KNAME + ":")
    if OPT["stamp"]:
        b("s_memrealtime s[64:65]")
        b("s_memtime s[66:67]")
    b(f"""
    s_load_dwordx4 s[36:39], s[0:1], 0
    s_load_dwordx4 s[40:43], s[0:1], 16
    s_load_dwordx4 s[84:87], s[0:1], 32
    s_load_dwordx4 s[88:91], s[0:1], 48
    s_cmp_ge_u32 s2, 256
    s_cbranch_scc1 L1_end
    v_lshlrev_b32 v15, 7, v0
    v_lshrrev_b32 v1, 6, v0
    v_and_b32 v0, 63, v0
    v_readfirstlane_b32 {s(S_WAVE)}, v1
    s_and_b32 {s(S_T0)}, s2, 7
    s_lshr_b32 {s(S_IDX)}, s2, 3
    s_and_b32 {s(S_B)}, {s(S_T0)}, 1
    s_lshl_b32 {s(S_B)}, {s(S_B)}, 2
    s_and_b32 {s(S_H)}, {s(S_IDX)}, 3
    s_add_u32 {s(S_B)}, {s(S_B)}, {s(S_H)}
    s_lshr_b32 {s(S_H)}, {s(S_T0)}, 1
    s_lshl_b32 {s(S_H)}, {s(S_H)}, 3
    s_lshr_b32 {s(S_T0)}, {s(S_IDX)}, 2
    s_add_u32 {s(S_H)}, {s(S_H)}, {s(S_T0)}
    s_lshl_b32 {s(S_W2048)}, {s(S_WAVE)}, 11
    """)
    if OPT["ctouch"]:
        b(f"""
        ; instruction prefetch: every workgroup pulls one 8 KB chunk of this kernel's code into its L2 (16 lines per wave)
        s_getpc_b64 {s(SRD_CODE, 2)}
        L1_pc:
        s_sub_u32 {s(SRD_CODE)}, {s(SRD_CODE)}, L1_pc-{KNAME}
        s_subb_u32 {s(SRD_CODE + 1)}, {s(SRD_CODE + 1)}, 0
        s_mov_b32 {s(SRD_CODE + 2)}, L1_end-{KNAME}
        s_mov_b32 {s(SRD_CODE + 3)}, 0x20000
        s_and_b32 {s(S_T0)}, {s(S_IDX)}, 7
        s_lshl_b32 {s(S_T0)}, {s(S_T0)}, 13
        s_add_u32 {s(S_T0)}, {s(S_T0)}, {s(S_W2048)}
        v_and_b32 v12, 15, v0
        v_lshlrev_b32 v12, 7, v12
        v_add_u32 v12, {s(S_T0)}, v12
        {CTOUCH}
        """)
    b(f"""
    v_lshrrev_b32 v1, 4, v0
    v_and_b32 v2, 15, v0
    v_lshrrev_b32 v3, 3, v0
    v_and_b32 v5, 7, v0
    ; wq DMA voffsets: (4n + G)*8192 + ((l%16) ^ (G<<2))*16 - 1024n
    v_lshlrev_b32 v9, 2, v1
    v_xor_b32 v9, v2, v9
    v_lshlrev_b32 v9, 4, v9
    v_lshl_add_u32 {v(V_WD)}, v1, 13, v9
    v_add_u32 {v(V_WD + 1)}, {4 * 8192 - 1024}, {v(V_WD)}
    ; x DMA voffsets: (8n + l/8)*1280 + ((l%8) ^ (4(n&1) + G))*16 - 1024n
    v_xor_b32 v8, v5, v1
    v_lshlrev_b32 v8, 4, v8
    v_mul_u32_u24 v10, 1280, v3
    v_add_u32 {v(V_XD)}, v10, v8
    v_xor_b32 v8, 64, v8
    v_add_u32 v11, v10, v8
    v_add_u32 {v(V_XD + 1)}, {8 * 1280 - 1024}, v11
    v_add_u32 {v(V_XD + 2)}, {2 * (8 * 1280 - 1024)}, {v(V_XD)}
    v_add_u32 {v(V_XD + 3)}, {3 * (8 * 1280 - 1024)}, v11
    s_mul_i32 {s(S_X0)}, {s(S_WAVE)}, {64 * 1280}
    s_add_u32 {s(S_X1)}, {s(S_X0)}, {32 * 1280}
    s_lshl_b32 {s(S_WQO)}, {s(S_WAVE)}, 16
    s_add_u32 {s(S_CNT)}, {s(S_X0)}, 1280
    ; start stage of the k loop: (h%8 + 3*(b%4)) % 10, so that workgroups sharing x or wq fetch for each other
    s_and_b32 {s(S_T0)}, {s(S_IDX)}, 3
    s_mul_i32 {s(S_T0)}, {s(S_T0)}, {3 * OPT["qrot"]}
    s_lshr_b32 {s(S_T1)}, {s(S_IDX)}, 2
    s_mul_i32 {s(S_T1)}, {s(S_T1)}, {OPT["qrot"]}
    s_add_u32 {s(S_T0)}, {s(S_T0)}, {s(S_T1)}
    s_cmp_ge_u32 {s(S_T0)}, 10
    s_cselect_b32 {s(S_T1)}, 10, 0
    s_sub_u32 {s(S_T0)}, {s(S_T0)}, {s(S_T1)}
    s_lshl_b32 {s(S_T1)}, {s(S_T0)}, 7
    s_add_u32 {s(S_X0)}, {s(S_X0)}, {s(S_T1)}
    s_add_u32 {s(S_X1)}, {s(S_X1)}, {s(S_T1)}
    s_lshl_b32 {s(S_T1)}, {s(S_T0)}, 19
    s_add_u32 {s(S_WQO)}, {s(S_WQO)}, {s(S_T1)}
    s_lshl_b32 {s(S_XC)}, {s(S_WAVE)}, 13
    s_add_u32 {s(XB[0])}, {s(S_XC)}, {LDS_V + 32768}
    s_add_u32 {s(XB[2])}, {s(S_XC)}, 32768
    s_add_u32 {s(S_XC)}, {s(S_XC)}, {LDS_WQ}
    s_add_u32 {s(S_WM0)}, {s(S_W2048)}, {LDS_WQ}
    s_mul_i32 {s(S_T0)}, {s(S_B)}, 307200
    s_lshl_b32 {s(S_T1)}, {s(S_H)}, 8
    s_mov_b32 {s(SRD_X + 2)}, 307200
    s_mov_b32 {s(SRD_X + 3)}, 0x20000
    s_sub_u32 {s(SRD_WQ + 2)}, {640 * 8192}, {s(S_T1)}
    s_mov_b32 {s(SRD_WQ + 3)}, 0x20000
    s_waitcnt lgkmcnt(0)
    s_mov_b32 {s(S_XL)}, {s(S_CNT)}
    s_add_u32 {s(S_XL + 1)}, {s(S_CNT)}, {32 * 1280}
    s_add_u32 {s(SRD_X)}, s36, {s(S_T0)}
    s_addc_u32 {s(SRD_X + 1)}, s37, 0
    s_add_u32 {s(SRD_WQ)}, s42, {s(S_T1)}
    s_addc_u32 {s(SRD_WQ + 1)}, s43, 0
    """)
    stamp(b)
    if OPT["stamp"]:
        b(f"v_writelane_b32 {v(V_ST)}, s64, 30")
        b(f"v_writelane_b32 {v(V_ST + 1)}, s66, 30")
    first, second, kv0, qp = qproj_phase(vm)
    b.extend(first)
    b(f"""
    ; hand-off counters live in ws + 32 MB (256 B apart); wave 0 of workgroups 0..31 clears one each
    s_add_u32 {s(SRD_FL)}, s90, 0x2000000
    s_addc_u32 {s(SRD_FL + 1)}, s91, 0
    s_mov_b32 {s(SRD_FL + 2)}, 8192
    s_mov_b32 {s(SRD_FL + 3)}, 0x20000
    s_mov_b32 {s(SRD_DBG)}, s88
    s_mov_b32 {s(SRD_DBG + 1)}, s89
    s_mov_b32 {s(SRD_DBG + 2)}, 256
    s_mov_b32 {s(SRD_DBG + 3)}, 0x20000
    v_mov_b32 {v(V_Z)}, 0
    s_lshl_b32 {s(S_T0)}, {s(S_WAVE)}, 5
    s_add_u32 {s(S_INIT)}, {s(S_T0)}, s2
    s_cmp_ge_u32 {s(S_INIT)}, 32
    s_cbranch_scc1 L1_noclr
    s_lshl_b32 {s(S_T0)}, s2, 8
    s_mov_b64 exec, 1
    buffer_store_dword {v(V_Z)}, {v(V_Z)}, {s(SRD_FL, 4)}, {s(S_T0)} offen sc1
    s_mov_b64 exec, -1
    L1_noclr:
    """)
    b(f"""
    ; cell base: (w>>1)*65536 + (w&1)*4096 ; x buffer 1: (w>>1)*65536 + 16384 + (w&1)*8192
    s_lshr_b32 {s(S_CB)}, {s(S_WAVE)}, 1
    s_lshl_b32 {s(S_CB)}, {s(S_CB)}, 16
    s_and_b32 {s(S_T0)}, {s(S_WAVE)}, 1
    s_lshl_b32 {s(S_T0)}, {s(S_T0)}, 12
    s_add_u32 {s(S_CB)}, {s(S_CB)}, {s(S_T0)}
    s_add_u32 {s(XB[1])}, {s(S_CB)}, {s(S_T0)}
    s_add_u32 {s(XB[1])}, {s(XB[1])}, 16384
    v_and_b32 v4, 3, v0
    v_bfe_u32 v7, v0, 2, 2
    v_lshl_add_u32 v8, v1, 3, v7
    v_lshlrev_b32 v8, 8, v8
    v_lshl_add_u32 v8, v7, 6, v8
    v_lshl_add_u32 v8, v4, 4, v8
    v_add_u32 {v(V_WA)}, {LDS_WQ}, v8
    {"v_and_b32 v9, 1, v1" if OPT["qpo"] & 4 else ""}
    {f"v_lshl_add_u32 {v(V_WA)}, v9, 3, {v(V_WA)}" if OPT["qpo"] & 4 else ""}
    v_xor_b32 {v(V_WA + 1)}, 64, {v(V_WA)}
    v_xor_b32 {v(V_WA + 2)}, 0x80, {v(V_WA)}
    v_xor_b32 {v(V_WA + 3)}, 0xc0, {v(V_WA)}
    ; x read: buffer + (l%16)*128 + ((G ^ ((l%16)>>1))*16) ^ (ks*64)
    v_lshrrev_b32 v8, 1, v2
    v_xor_b32 v8, v1, v8
    v_lshlrev_b32 v8, 4, v8
    v_lshl_add_u32 v8, v2, 7, v8
    v_xor_b32 v9, 64, v8
    """)
    for i in range(3):
        b(f"v_add_u32 {v(V_XA + 2 * i)}, {s(XB[i])}, v8")
        b(f"v_add_u32 {v(V_XA + 2 * i + 1)}, {s(XB[i])}, v9")
    b.extend(second)
    b(f"""
    s_lshl_b32 {s(S_T0)}, {s(S_B)}, 5
    s_add_u32 {s(S_T0)}, {s(S_T0)}, {s(S_H)}
    s_lshl_b32 {s(S_T0)}, {s(S_T0)}, 19
    s_add_u32 {s(SRD_K)}, s38, {s(S_T0)}
    s_addc_u32 {s(SRD_K + 1)}, s39, 0
    s_mov_b32 {s(SRD_K + 2)}, 524288
    s_mov_b32 {s(SRD_K + 3)}, 0x20000
    s_add_u32 {s(SRD_V)}, s40, {s(S_T0)}
    s_addc_u32 {s(SRD_V + 1)}, s41, 0
    s_mov_b32 {s(SRD_V + 2)}, 524288
    s_mov_b32 {s(SRD_V + 3)}, 0x20000
    s_mov_b32 {s(S_KV)}, {s(S_W2048)}
    ; K DMA voffsets: G*256 + ((l%16) ^ (8(w&1) + 4n + G))*16 ; V: G*256 + ((l%16) ^ ((4n + G)<<1))*16
    s_and_b32 {s(S_T0)}, {s(S_WAVE)}, 1
    s_lshl_b32 {s(S_T0)}, {s(S_T0)}, 7
    v_xor_b32 v8, v2, v1
    v_lshlrev_b32 v8, 4, v8
    v_lshl_add_u32 v9, v1, 8, v8
    v_xor_b32 {v(V_KD)}, {s(S_T0)}, v9
    v_xor_b32 {v(V_KD + 1)}, 64, {v(V_KD)}
    v_lshlrev_b32 v9, 1, v1
    v_xor_b32 v9, v2, v9
    v_lshlrev_b32 v9, 4, v9
    v_lshl_add_u32 {v(V_VD)}, v1, 8, v9
    v_xor_b32 {v(V_VD + 1)}, 0x80, {v(V_VD)}
    """)
    b.extend(kv0)
    b(f"""
    s_mul_i32 {s(S_T0)}, {s(S_B)}, {15 * 131072}
    s_add_u32 {s(SRD_O)}, s90, {s(S_T0)}
    s_addc_u32 {s(SRD_O + 1)}, s91, 0
    s_mov_b32 {s(SRD_O + 2)}, {15 * 131072}
    s_mov_b32 {s(SRD_O + 3)}, 0x20000
    ; K read: (l%16)*256 + ((G ^ (l%16))*16) ^ (s*64)
    v_lshl_add_u32 {v(V_KA)}, v2, 8, v8
    v_xor_b32 {v(V_KA + 1)}, 64, {v(V_KA)}
    v_xor_b32 {v(V_KA + 2)}, 0x80, {v(V_KA)}
    v_xor_b32 {v(V_KA + 3)}, 0xc0, {v(V_KA)}
    v_lshl_add_u32 v8, v1, 2, v7
    v_and_b32 v9, 7, v8
    v_lshlrev_b32 v8, 8, v8
    v_lshl_add_u32 v8, v9, 5, v8
    v_lshl_add_u32 v8, v4, 3, v8
    v_add_u32 {v(V_VA)}, {LDS_V}, v8
    """)
    for dt in range(1, 8):
        b(f"v_xor_b32 {v(V_VA + dt)}, {32 * dt}, {v(V_VA)}")
    for i in range(4):
        b(f"v_mov_b32 {v(V_ONE + i)}, 0x3f803f80")
    b(f"""
    v_lshlrev_b32 {v(V_OD)}, 4, v0
    ; O store voffset: (4*(l%16) + G)*16
    v_lshl_add_u32 v8, v2, 2, v1
    v_lshlrev_b32 {v(V_OS)}, 4, v8
    {f"v_lshl_add_u32 v8, v4, 2, v1" if OPT["olay"] else ""}
    {f"v_lshlrev_b32 v8, 4, v8" if OPT["olay"] else ""}
    {f"v_lshl_add_u32 {v(V_OS)}, v7, 10, v8" if OPT["olay"] else ""}
    s_mov_b32 {s(S_SCALE)}, {f32(SCALE)}
    s_mov_b32 {s(S_SCALE + 1)}, {f32(SCALE)}
    ; ---- O-projection tile of this workgroup: batch s2%8, row tile idx/10, column tile idx%10
    s_mul_i32 {s(S_T1)}, {s(S_IDX)}, 26
    s_lshr_b32 {s(S_T1)}, {s(S_T1)}, 8
    s_mul_i32 {s(S_T0)}, {s(S_T1)}, 10
    s_sub_u32 {s(S_CT)}, {s(S_IDX)}, {s(S_T0)}
    ; consumer batch = 4*(1 - (j&1)) + (j>>1), j = s2%8 ; head rotation = ct + 3*rt
    s_mul_i32 {s(S_ROT)}, {s(S_T1)}, {3 * OPT['rot3']}
    s_add_u32 {s(S_ROT)}, {s(S_ROT)}, {s(S_CT)}
    s_andn2_b32 {s(S_B2)}, 1, s2
    s_lshl_b32 {s(S_B2)}, {s(S_B2)}, 2
    s_bfe_u32 {s(S_T0)}, s2, 0x20001
    s_add_u32 {s(S_B2)}, {s(S_B2)}, {s(S_T0)}
    {"" if OPT["b2map"] else f"s_and_b32 {s(S_B2)}, s2, 7"}
    s_mul_i32 {s(S_T0)}, {s(S_B2)}, 15
    s_min_u32 {s(S_T1)}, {s(S_T1)}, 2
    v_mul_u32_u24 v13, 3, v0
    v_add_u32 v13, {s(S_T1)}, v13
    v_min_u32 v13, 127, v13
    v_mul_u32_u24 v13, 1280, v13
    s_mul_i32 {s(S_T1)}, {s(S_T1)}, 5
    s_add_u32 {s(S_T0)}, {s(S_T0)}, {s(S_T1)}
    s_lshl_b32 {s(S_T1)}, {s(S_T0)}, 17
    s_add_u32 {s(SRD_OO)}, s90, {s(S_T1)}
    s_addc_u32 {s(SRD_OO + 1)}, s91, 0
    s_mov_b32 {s(SRD_OO + 2)}, {5 * 131072}
    s_mov_b32 {s(SRD_OO + 3)}, 0x20000
    s_mul_i32 {s(S_T1)}, {s(S_T0)}, {16 * 1280}
    s_add_u32 {s(SRD_OUT)}, s86, {s(S_T1)}
    s_addc_u32 {s(SRD_OUT + 1)}, s87, 0
    s_mov_b32 {s(SRD_OUT + 2)}, {80 * 1280}
    s_mov_b32 {s(SRD_OUT + 3)}, 0x20000
    s_mov_b32 {s(SRD_WO)}, s84
    s_mov_b32 {s(SRD_WO + 1)}, s85
    s_mov_b32 {s(SRD_WO + 2)}, {4096 * 1280}
    s_mov_b32 {s(SRD_WO + 3)}, 0x20000
    s_mul_i32 {s(S_WOO)}, {s(S_WAVE)}, {1024 * 1280}
    s_lshl_b32 {s(S_T0)}, {s(S_CT)}, 7
    s_add_u32 {s(S_WOO)}, {s(S_WOO)}, {s(S_T0)}
    s_lshl_b32 {s(S_T2)}, {s(S_WAVE)}, 15
    """)
    for j in range(8):
        if OPT["orot"]:
            b(f"s_add_u32 {s(S_T0)}, {s(S_ROT)}, {j}")
            b(f"s_and_b32 {s(S_T0)}, {s(S_T0)}, 7")
        else:
            b(f"s_mov_b32 {s(S_T0)}, {j}")
        b(f"s_mul_i32 {s(S_T1)}, {s(S_T0)}, {128 * 1280}")
        b(f"s_add_u32 {s(S_WTAB + j)}, {s(S_WOO)}, {s(S_T1)}")
        b(f"s_lshl_b32 {s(S_T1)}, {s(S_T0)}, 12")
        b(f"s_add_u32 {s(S_OTAB + j)}, {s(S_T2)}, {s(S_T1)}")
    b(f"""
    s_mul_i32 {s(S_T2)}, s2, 20480
    {f"v_lshlrev_b32 v15, 7, v5" if OPT["wotouch"] == 4 else ""}
    {f"s_lshl_b32 {s(S_T0)}, {s(S_WAVE)}, 10" if OPT["wotouch"] == 4 else ""}
    {f"v_add_u32 v15, {s(S_T0)}, v15" if OPT["wotouch"] == 4 else ""}
    s_lshl_b32 {s(S_POLL)}, {s(S_B2)}, 2
    s_add_u32 {s(S_POLL)}, {s(S_POLL)}, {s(S_WAVE)}
    s_lshl_b32 {s(S_POLL)}, {s(S_POLL)}, 8
    ; wo DMA voffset n: (64(n/2) + 2(n%2) + 16*((l/8)%4) + l/32)*1280 + (((l%8) ^ (G<<1))*16) - 1024n
    v_and_b32 v8, 3, v3
    v_lshlrev_b32 v8, 4, v8
    v_lshrrev_b32 v9, 5, v0
    v_add_u32 v8, v8, v9
    v_mul_u32_u24 v8, 1280, v8
    v_lshlrev_b32 v9, 1, v1
    v_xor_b32 v9, v5, v9
    v_lshl_add_u32 {v(V_WDD)}, v9, 4, v8
    v_add_u32 {v(V_WDD + 1)}, {2 * 1280 - 1024}, {v(V_WDD)}
    v_add_u32 {v(V_WDD + 2)}, {64 * 1280 - 2048}, {v(V_WDD)}
    v_add_u32 {v(V_WDD + 3)}, {66 * 1280 - 3072}, {v(V_WDD)}
    """)
    b.extend(qp)
    stamp(b)
    pre = b

    mid = Block()
    mid(f"""
    s_cmp_ge_u32 {s(S_INIT)}, 32
    s_cbranch_scc1 L1_norep
    v_mov_b32 v8, 1
    s_mov_b64 exec, 1
    buffer_atomic_add v8, {v(V_Z)}, {s(SRD_DBG, 4)}, 0 offen offset:128 sc1
    s_mov_b64 exec, -1
    L1_norep:
    ; wo tr-read addresses: (4G + r)*128 + ((nt ^ (2(G&1) + r/2))*32) + 8c + window base
    v_lshl_add_u32 v8, v1, 2, v7
    v_bfe_u32 v9, v8, 1, 2
    v_lshlrev_b32 v8, 7, v8
    v_lshl_add_u32 v8, v4, 3, v8
    v_lshl_add_u32 v8, v9, 5, v8
    v_add_u32 {v(V_AA)}, {s(S_CB)}, v8
    v_add_u32 {v(V_AA + 4)}, {s(S_XC)}, v8
    """)
    for wdw in range(2):
        for nt in range(1, 4):
            mid(f"v_xor_b32 {v(V_AA + 4 * wdw + nt)}, {32 * nt}, {v(V_AA + 4 * wdw)}")
    for qt in range(1, 4):
        mid.extend(conv_q(qt, True))
    mid("s_waitcnt lgkmcnt(0)")
    mid("s_nop 0")

    def max_chain(qt):
        S = V_S + 8 * qt
        m = V_T + 2 * qt
        out = [f"v_max3_f32 {v(m)}, {v(S)}, {v(S + 1)}, {v(S + 2)}",
               f"v_max3_f32 {v(m + 1)}, {v(S + 3)}, {v(S + 4)}, {v(S + 5)}",
               f"v_max3_f32 {v(m)}, {v(m)}, {v(S + 6)}, {v(S + 7)}",
               f"v_max_f32 {v(m)}, {v(m)}, {v(m + 1)}",
               f"v_mov_b32 {v(m + 1)}, {v(m)}", "s_nop 1",
               f"v_permlane16_swap_b32 {v(m)}, {v(m + 1)}",
               f"v_max_f32 {v(m)}, {v(m)}, {v(m + 1)}",
               f"v_mov_b32 {v(m + 1)}, {v(m)}", "s_nop 1",
               f"v_permlane32_swap_b32 {v(m)}, {v(m + 1)}",
               f"v_max_f32 {v(m)}, {v(m)}, {v(m + 1)}"]
        if qt == 3 and OPT["padzero"]:
            out.append(f"v_add_f32 {v(m)}, {s(S_T1)}, {v(m)}")
        out += [f"v_sub_f32 {v(V_NM + 4 * qt + i)}, 0, {v(m)}" for i in range(4)]
        out += [f"v_sub_f32 {v(S + i)}, {v(S + i)}, {v(m)}" for i in range(8)]
        for i in range(8):
            e = 8 * qt + i
            if EG[e] < NG:
                out.append(sm_exp(e))
        out.append("s_nop 0")
        for i in range(1, 8, 2):
            e = 8 * qt + i
            if CG[e] < NG:
                out.append(sm_cvt(e, 0))
        return out

    mid(f"s_cmp_eq_u32 {s(S_WAVE)}, 3")
    mid(f"s_cselect_b32 {s(S_T1)}, {f32(1e4)}, 0")
    gaps = [[] for _ in range(32)]
    spread(gaps, kv_group(6), 1, 3)
    vm.add(("kv", 6), 4)
    work = max_chain(0) + max_chain(1) + max_chain(2) + max_chain(3)
    n0 = len(max_chain(0))
    done = 0
    for g in range(12, 32):
        avail = n0 * min(4, (g - 4) // 8)
        take = min(2, avail - done)
        gaps[g] += work[done:done + take]
        done += take
    mid.extend(interleave(qk_all(True, A_K0), gaps))
    mid.extend(work[done:])
    mid(f"s_mov_b32 {s(S_CNT)}, 6")
    stamp(mid)
    for t in range(1, 8):
        mid.extend(subtile(t, vm, "first"))
    if OPT["stamp"] > 1:
        stamp(mid, 16)

    body = Block()
    for t in range(8):
        body.extend(subtile(t))
    if OPT["stamp"] > 1:
        body(f"s_sub_u32 {s(S_T0)}, 22, {s(S_CNT)}")
        body(f"s_mov_b32 m0, {s(S_T0)}")
        stamp(body, "m0")
        body(f"s_cmp_lg_u32 {s(S_CNT)}, 0")
    body("s_cbranch_scc1 L1_loop")

    post = Block()
    vm = VM()
    for g in range(56, 63):
        vm.add(("kv", g), 4)
    for t in range(8):
        post.extend(subtile(t, vm, "last"))
    if OPT["stamp"] > 1:
        stamp(post, 23)
    for e in range(32):
        if EG[e] >= NG:
            post(sm_exp(e))
    post("s_nop 0")
    for e, g in CG.items():
        if g >= NG:
            post(sm_cvt(e, 1))
    post("s_nop 1")
    for qt in range(4):
        post(ones_mf(qt, 1))
    post("s_waitcnt lgkmcnt(0)")
    epi = Block()
    epi("L1_epi:")
    tail1, tail2 = oproj_tail()
    epi.extend(tail1)
    n_slow = len(epi.instrs())
    epi.extend(FAST)
    epi.extend(tail2)
    epi("L1_fin:")
    if OPT["stamp"]:
        epi("s_waitcnt vmcnt(0)")
        stamp(epi, 25)
        stamp_store(epi, "L1_end")
    epi("L1_end:")
    epi("s_endpgm")

    fb = Block()
    fb("L1_fallback:")
    fb(f"""
    s_waitcnt vmcnt(0) lgkmcnt(0)
    s_mov_b32 {s(S_T2)}, 0x7f800000
    s_sub_u32 {s(S_T0)}, {s(S_CB)}, {LDS_V - 16384}
    v_xor_b32 v8, v2, v1
    v_lshlrev_b32 v8, 4, v8
    v_lshl_add_u32 {v(V_KD)}, v1, 8, v8
    v_xor_b32 {v(V_KD + 1)}, 64, {v(V_KD)}
    v_xor_b32 {v(V_KD + 2)}, 0x80, {v(V_KD)}
    v_xor_b32 {v(V_KD + 3)}, 0xc0, {v(V_KD)}
    v_lshlrev_b32 v11, 4, v1
    s_nop 7
    """)
    for i in range(4):
        fb(f"v_add_u32 {v(V_KA + i)}, {s(S_CB)}, {v(V_KA + i)}")
    for i in range(8):
        fb(f"v_add_u32 {v(V_VA + i)}, {s(S_T0)}, {v(V_VA + i)}")
    for i in range(128):
        fb(f"v_accvgpr_write_b32 {a(A_O + i)}, 0")
    for i in range(16):
        fb(f"v_mov_b32 {v(V_LM + i)}, 0")
    for qt in range(4):
        fb(f"v_mov_b32 {v(V_M + qt)}, {f32(-3e38)}")
    fb(f"s_mov_b32 {s(S_KV)}, 0")
    fbl = Block()
    for q in range(2):
        fbl(f"s_add_u32 m0, {s(S_CB)}, {8192 * q}")
        fbl(f"s_add_u32 {s(S_T0)}, {s(S_KV)}, {4096 * q}")
        for n in range(4):
            fbl(k_dma(n, s(S_T0)))
        fbl(f"s_add_u32 m0, {s(S_CB)}, {16384 + 8192 * q}")
        fbl("s_nop 0")
        for n in range(4):
            fbl(v_dma(n, s(S_T0)))
    fbl("s_waitcnt vmcnt(0)")
    for kt in range(2):
        for st in range(4):
            fbl(f"ds_read_b128 {a(A_K + 16 * kt + 4 * st, 4)}, {v(V_KA + st)} offset:{kt * 8192}")
    for dt in range(8):
        for kt in range(2):
            fbl(f"ds_read_b64_tr_b16 {a(A_V + 4 * dt + 2 * kt, 2)}, {v(V_VA + dt)} offset:{kt * 8192}")
        if dt % 2:
            fbl("s_waitcnt lgkmcnt(0)")
    fbl.extend(qk_all(True))
    fbl("s_nop 7")
    for qt in range(4):
        S = V_S + 8 * qt
        m, m2, al, alt = V_T, V_T + 1, V_T + 2, V_T + 4
        M = V_M + qt
        fbl(f"v_max3_f32 {v(m)}, {v(S)}, {v(S + 1)}, {v(M)}")
        for i in range(2, 8, 2):
            fbl(f"v_max3_f32 {v(m)}, {v(m)}, {v(S + i)}, {v(S + i + 1)}")
        for swap in ("v_permlane16_swap_b32", "v_permlane32_swap_b32"):
            fbl(f"v_mov_b32 {v(m2)}, {v(m)}")
            fbl("s_nop 1")
            fbl(f"{swap} {v(m)}, {v(m2)}")
            fbl(f"v_max_f32 {v(m)}, {v(m)}, {v(m2)}")
        fbl(f"v_sub_f32 {v(al)}, {v(M)}, {v(m)}")
        fbl(f"v_exp_f32 {v(al)}, {v(al)}")
        fbl(f"v_mov_b32 {v(M)}, {v(m)}")
        for r in range(4):
            fbl(f"ds_bpermute_b32 {v(alt + r)}, v11, {v(al)} offset:{4 * r}")
        for e in range(8):
            fbl(f"v_sub_f32 {v(S + e)}, {v(S + e)}, {v(m)}")
        for e in range(8):
            fbl(sm_exp(8 * qt + e))
        fbl("s_waitcnt lgkmcnt(0)")
        for e in range(1, 8, 2):
            fbl(sm_cvt(8 * qt + e, 0))
        for r in range(4):
            fbl(f"v_mul_f32 {v(V_LM + 4 * qt + r)}, {v(V_LM + 4 * qt + r)}, {v(alt + r)}")
        for i in range(32):
            r = A_O + 32 * qt + i
            fbl(f"v_accvgpr_read_b32 {v(m2)}, {a(r)}")
            fbl(f"v_mul_f32 {v(m2)}, {v(m2)}, {v(alt + i % 4)}")
            fbl(f"v_accvgpr_write_b32 {a(r)}, {v(m2)}")
        fbl("s_nop 1")
        for dt in range(8):
            fbl(pv(qt, dt, 0))
        fbl(ones_mf(qt, 0))
    fbl("s_nop 7")
    fbl(f"s_add_u32 {s(S_KV)}, {s(S_KV)}, 8192")
    fbl(f"s_cmp_lt_u32 {s(S_KV)}, 524288")
    fbl("s_cbranch_scc1 L1_fbloop")
    fbe = Block()
    for i in range(16):
        fbe(f"v_mov_b32 {v(V_P + 16 + i)}, 0")
    for i in range(32):
        fbe(f"v_accvgpr_write_b32 {a(A_K + i)}, 0")
    for i in range(NREG0, NREG0 + 9):
        fbe(cell_m0(CELL0[i]))
        fbe(wo_off(i))
        for n in range(4):
            fbe(wo_dma(n))
    fbe("s_branch L1_epi")

    ep = epi.instrs()
    nf = len(FAST.instrs())
    ep_slow = ep[:n_slow] + ep[n_slow + nf:]
    br = next(i for i, x in enumerate(ep) if "L1_ready" in x) + 1
    ep_fast = ep[:br] + ep[n_slow:]
    check_trace(pre.instrs() + mid.instrs() + body.instrs() * 2 + post.instrs() + ep_slow, "main")
    check_trace(post.instrs() + ep_fast, "fast")
    cut = next(i for i, x in enumerate(ep) if "L1_fallback" in x) + 1
    check_trace(post.instrs() + ep[:cut] + fb.instrs() + fbl.instrs() * 2 + fbe.instrs() + ep_slow, "fallback")

    out = Block()
    out.extend(pre)
    out.extend(mid)
    out(".p2align 6")
    out("L1_loop:")
    out.extend(body)
    out(f"s_mov_b32 {s(S_CNT)}, {f32(2.0 ** 40)}")
    out.extend(post)
    out(f"s_mov_b32 {s(S_T2)}, {s(S_CNT)}")
    out.extend(epi)
    out.extend(fb)
    out("L1_fbloop:")
    out.extend(fbl)
    out.extend(fbe)
    return out


FAST = Block()


def oproj_tail():
    V_OA = 16
    V_OUT = 21
    V_PL = 22
    V_R = V_NM
    V_TMP = V_S
    NPRE = OPT["npre"]
    N0 = NREG0 + 9
    t1 = Block()
    vm = VM()
    for i in range(NREG0, N0):
        vm.add(("wo", i), 4)
    cellof = {i: CELL0[i] for i in range(N0)}
    freecells = []
    pool = [("a", 160 + 4 * i) for i in range(8)]
    pool += [("v", 48 + 4 * i) for i in range(16)]
    pool += [("a", 128 + 4 * i) for i in range(8)]
    pool += [("v", 144 + 4 * i) for i in range(8)]
    pool += [("v", 192 + 4 * i) for i in range(12)]
    late = [("a", 80 + 4 * i) for i in range(12)] + [("v", 112 + 4 * i) for i in range(8)] + [("v", 176 + 4 * i) for i in range(4)]
    areg = dict(AREG0)

    def a_reads(i):
        areg[i] = [pool.pop(0) for _ in range(4)]
        return wo_reads(areg[i], cellof[i])

    nd = [N0]

    def wo_grp():
        i = nd[0]
        nd[0] += 1
        cellof[i] = freecells.pop(0)
        vm.add(("wo", i), 4)
        return [cell_m0(cellof[i]), wo_off(i)] + [wo_dma(n) for n in range(4)]

    fin = [pv(qt, dt, 1, False, A_K) for qt in range(4) for dt in range(8)]
    m = V_T
    guard = [f"v_max3_f32 {v(m)}, {v(V_LM)}, {v(V_LM + 1)}, {v(V_LM + 2)}"]
    guard += [f"v_max3_f32 {v(m)}, {v(m)}, {v(V_LM + i)}, {v(V_LM + i + 1)}" for i in range(3, 15, 2)]
    guard += [f"v_max_f32 {v(m)}, {v(m)}, {v(V_LM + 15)}"]
    gaps = [[], [], []] + [guard[2 * i:2 * i + 2] for i in range(4)]
    gaps[0] = ["s_nop 1"]
    t1.extend(interleave(fin[:7], gaps))
    t1(f"v_cmp_gt_f32 vcc, {v(m)}, {s(S_T2)}")
    t1(fin[7])
    t1(f"s_lshl_b32 {s(S_T0)}, {s(S_WAVE)}, 19")
    t1("s_cbranch_vccnz L1_fallback")
    t1(f"s_lshl_b32 {s(S_T1)}, {s(S_H)}, 12")
    t1(f"s_add_u32 {s(S_T0)}, {s(S_T0)}, {s(S_T1)}")
    rcp = [f"v_rcp_f32 {v(V_R + i)}, {v(V_LM + i)}" for i in range(16)]

    def group(qt, r, packed):
        tb = V_TMP + 12 * ((4 * qt + r) % 2)
        out = [f"v_accvgpr_read_b32 {v(tb + i)}, {a(A_O + 32 * qt + 4 * i + r)}" for i in range(8)]
        if packed:
            sel = "op_sel_hi:[1,0]" if r % 2 == 0 else "op_sel:[0,1] op_sel_hi:[1,1]"
            out += [f"v_pk_mul_f32 {v(tb + 2 * i, 2)}, {v(tb + 2 * i, 2)}, {v(V_R + 4 * qt + (r & 2), 2)} {sel}" for i in range(4)]
        else:
            out += [f"v_mul_f32 {v(tb + i)}, {v(tb + i)}, {v(V_R + 4 * qt + r)}" for i in range(8)]
        out += [f"v_cvt_pk_bf16_f32 {v(tb + 8 + i)}, {v(tb + 2 * i)}, {v(tb + 2 * i + 1)}" for i in range(4)]
        out.append(f"buffer_store_dwordx4 {v(tb + 8, 4)}, {v(V_OS)}, {s(SRD_O, 4)}, {s(S_T0)} offen offset:{r * (256 if OPT['olay'] else 1024)} sc1")
        return out

    gaps = [[] for _ in range(24)]
    for i in range(4):
        gaps[i].append(rcp[i])
    seq = group(0, 0, False) + group(0, 1, False)
    vm.add("st", 2)
    gi = 4
    while seq and gi < 24:
        if seq[0].startswith("buffer"):
            gaps[gi].append(seq.pop(0))
        else:
            gaps[gi].append(seq.pop(0))
            if seq and not seq[0].startswith("buffer"):
                gaps[gi].append(seq.pop(0))
        gi += 1
    t1.extend(interleave(fin[8:], gaps))
    t1.extend(seq)
    t1.extend(rcp[4:])
    t1(f"""
    ; O load voffset: ((l%16)/4)*1024 + G*64 + (l%4)*16 + mt*131072
    v_lshlrev_b32 v8, {8 if OPT['olay'] else 10}, v7
    v_lshl_add_u32 v8, v1, 6, v8
    v_lshl_add_u32 {v(V_OA)}, v4, 4, v8
    v_add_u32 {v(V_OA + 1)}, 0x20000, {v(V_OA)}
    v_add_u32 {v(V_OA + 2)}, 0x40000, {v(V_OA)}
    v_add_u32 {v(V_OA + 3)}, 0x60000, {v(V_OA)}
    v_add_u32 {v(V_OA + 4)}, 0x80000, {v(V_OA)}
    ; out voffset: (4*(l%4) + (l%16)/4)*1280 + G*8
    v_lshl_add_u32 v8, v4, 2, v7
    v_mul_u32_u24 v8, 1280, v8
    v_lshl_add_u32 {v(V_OUT)}, v1, 3, v8
    s_mov_b32 {s(S_CNT)}, 0x40000
    L1_chk:
    v_readfirstlane_b32 {s(S_T1)}, {v(V_IN)}
    s_sub_u32 {s(S_CNT)}, {s(S_CNT)}, 1
    s_cbranch_scc1 L1_clr
    s_cmp_ge_u32 {s(S_T1)}, 32
    s_cbranch_scc1 L1_clr
    buffer_load_dword {v(V_IN)}, {v(V_Z)}, {s(SRD_DBG, 4)}, 0 offen offset:128 sc1 ; rare
    s_waitcnt vmcnt(0) ; rare
    s_branch L1_chk ; rare
    L1_clr:
    s_mov_b32 {s(S_CNT)}, 0x40000
    """)
    stamp(t1)
    POLL = f"buffer_load_dword {v(V_PL)}, {v(V_Z)}, {s(SRD_FL, 4)}, {s(S_POLL)} offen sc1"
    na = NREG0
    for idx in range(2, 16):
        qt, r = idx // 4, idx % 4
        if r == 0:
            t1(f"s_add_u32 {s(S_T0)}, {s(S_T0)}, 131072")
        t1.extend(group(qt, r, True))
        vm.add("st")
        if idx == OPT["pollat"]:
            t1(POLL)
            vm.add("poll")
        if OPT["stdma"] and na > NREG0 and nd[0] == na + 8:
            t1("s_waitcnt lgkmcnt(0)")
            freecells.append(cellof[na - 1])
            t1.extend(wo_grp())
        if na < NPRE:
            t1(f"s_waitcnt vmcnt({vm.cnt(('wo', na))})")
            t1.extend(a_reads(na))
            na += 1
    if not OPT["stdma"]:
        t1("s_waitcnt lgkmcnt(0)")
        for i in range(NREG0, NPRE):
            freecells.append(cellof[i])
            t1.extend(wo_grp())
    assert na == NPRE and nd[0] == NPRE + 9, (na, nd)
    stamp(t1)
    pool.extend(late)
    freecells.append(CELL_U[7])

    breg = {}
    nb = [0]
    free = pool

    def b_loads():
        ks = nb[0]
        nb[0] += 1
        breg[ks] = [free.pop(0) for _ in range(5)]
        vm.add(("o", ks), 5)
        return [f"buffer_load_dwordx4 {quad(breg[ks][mt])}, {v(V_OA + mt)}, {s(SRD_OO, 4)}, {s(S_OTAB + ks // 4)} offen offset:{(ks % 4) * (1024 if OPT['olay'] else 256)} sc1"
                for mt in range(5)]

    def signal(lbl):
        return f"""
        s_barrier
        s_cmp_lg_u32 {s(S_WAVE)}, 0
        s_cbranch_scc1 {lbl}
        s_lshr_b32 {s(S_T0)}, {s(S_H)}, 3
        s_lshl_b32 {s(S_T1)}, {s(S_B)}, 2
        s_add_u32 {s(S_T0)}, {s(S_T0)}, {s(S_T1)}
        s_lshl_b32 {s(S_T0)}, {s(S_T0)}, 8
        v_mov_b32 v8, 1
        s_mov_b64 exec, 1
        buffer_atomic_add v8, {v(V_Z)}, {s(SRD_FL, 4)}, {s(S_T0)} offen sc1
        s_mov_b64 exec, -1
        {lbl}:
        """

    t1(f"s_waitcnt vmcnt({vm.cnt('poll')})")
    t1(f"""
    v_readfirstlane_b32 {s(S_T1)}, {v(V_PL)}
    s_cmp_ge_u32 {s(S_IDX)}, 30
    s_cselect_b32 {s(S_T1)}, 0, {s(S_T1)}
    s_cmp_ge_u32 {s(S_T1)}, 8
    s_cbranch_scc1 L1_ready
    """)
    n_st = vm.cnt("st")
    first_b = []
    while len(free) >= 5 and nb[0] < OPT["bdepth"]:
        first_b += b_loads()
    t1(f"s_waitcnt vmcnt({n_st})")
    t1(signal("L1_nosig"))
    stamp(t1)
    t1(f"""
    s_cmp_ge_u32 {s(S_IDX)}, 30
    s_cbranch_scc1 L1_fin
    L1_poll:
    {POLL}
    s_sub_u32 {s(S_CNT)}, {s(S_CNT)}, 1
    s_cbranch_scc1 L1_go
    s_waitcnt vmcnt(0)
    v_readfirstlane_b32 {s(S_T1)}, {v(V_PL)}
    s_nop 0
    s_cmp_lt_u32 {s(S_T1)}, 8
    s_cbranch_scc1 L1_poll
    L1_go:
    """)
    stamp(t1)
    t1.extend(first_b)
    t1("s_branch L1_mm")
    t1("L1_ready:")
    FAST.extend(first_b)
    FAST(f"s_waitcnt vmcnt({vm.cnt('st')})")
    FAST(signal("L1_nosig2"))
    if OPT["stamp"]:
        stamp(FAST, 6)
        stamp(FAST, 7)
    FAST("L1_mm:")
    t2 = Block()
    LM_ = OPT["lastm"]
    for ks in range(32 - LM_):
        t2(f"s_waitcnt vmcnt({vm.cnt(('o', ks))})")
        if OPT["stamp"] > 2 and ks % 4 == 0:
            stamp(t2, 52 + ks // 4)
        mf = []
        order = [(nt, mt) for nt in range(4) for mt in range(5)]
        if OPT["opo"] & 1:
            order = [(nt, mt) for mt in range(5) for nt in range(4)]
        for nt, mt in order:
            d = a(4 * (5 * nt + mt), 4)
            c = "0" if ks == 0 else d
            if OPT["opo"] & 2:
                mf.append(f"{MF} {d}, {quad(breg[ks][mt])}, {quad(areg[ks][nt])}, {c}")
            else:
                mf.append(f"{MF} {d}, {quad(areg[ks][nt])}, {quad(breg[ks][mt])}, {c}")
        vmem = []
        dsr = []
        done = max(i for i, x in enumerate(vm.ops) if x == ("o", ks)) + 1
        if ks == 0:
            nd0 = nd[0]
        can_dma = nd[0] < 32 and freecells and (nd[0] - nd0) * 25 <= ks * (32 - nd0)
        if na < nd[0] and len(free) >= 9 and (na - ks <= 3 + (LM_ if na > 27 else 0) or ("wo", na) not in vm.ops[done:]):
            if ("wo", na) in vm.ops[done:]:
                t2(f"s_waitcnt vmcnt({vm.cnt(('wo', na))})")
            dsr = a_reads(na)
            na += 1
        assert na > ks + 1 or na == 32, (ks, na)
        if nb[0] < 32:
            vmem += b_loads()
        if can_dma:
            vmem += wo_grp()
        gaps = [[] for _ in range(20)]
        nv = sum(x.startswith("buffer") for x in vmem)
        step = max(1, 20 // max(nv, 1))
        gi = 0
        busy = set()
        for x in vmem:
            gaps[min(gi, 19)].append(x)
            if x.startswith("buffer"):
                busy.add(gi)
                gi += min(step, 4)
        gi = 0
        for x in dsr:
            while gi in busy and gi < 19:
                gi += 1
            gaps[min(gi, 19)].append(x)
            gi += 1
        if OPT["tq"] & 1:
            gaps = [[("s_nop 0" if x.endswith("sc1") else x) for x in g] for g in gaps]
        if OPT["tq"] & 2:
            gaps = [[("s_nop 0" if x.endswith("lds") else x) for x in g] for g in gaps]
        if OPT["tq"] & 4:
            mf = ["s_nop 0"] * 20
        if OPT["tq"] & 8:
            gaps = [[x.replace(" sc1", "") for x in g] for g in gaps]
        t2.extend(interleave(mf, gaps))
        if dsr:
            t2("s_waitcnt lgkmcnt(0)")
            freecells.append(cellof[na - 1])
        free.extend(areg[ks] + breg[ks])
    assert na == 32 and nb[0] == 32 and nd[0] == 32
    VB = 48
    t2(f"v_add_u32 v8, {s(S_CB)}, {v(V_OD)}")
    t2(f"s_waitcnt vmcnt(0)")
    tiles = [(nt, mt) for mt in range(5) for nt in range(4)]
    mf = []
    for nt, mt in tiles:
        d = a(4 * (5 * nt + mt), 4)
        for ks in range(32 - LM_, 32):
            mf.append(f"{MF} {d}, {quad(areg[ks][nt])}, {quad(breg[ks][mt])}, {d}")
    wr = [f"ds_write_b128 v8, {a(4 * (5 * nt + mt), 4)} offset:{mt * 8192 + nt * 1024}" for nt, mt in tiles]
    gaps = [[] for _ in mf]
    gaps[0] = [f"s_lshl_b32 {s(S_T0)}, {s(S_WAVE)}, 10", f"v_add_u32 v10, {s(S_T0)}, {v(V_OD)}"]
    gaps[1] = [f"s_lshl_b32 {s(S_T0)}, {s(S_CT)}, 7", f"v_add_u32 v11, 0x10000, v10"]
    gaps[2] = [f"s_lshl_b32 {s(S_T1)}, {s(S_WAVE)}, 5"]
    gaps[3] = [f"s_add_u32 {s(S_T0)}, {s(S_T0)}, {s(S_T1)}"]
    rest = []
    for i, w_ in enumerate(wr):
        g = LM_ * (i + 1) - 1 + 7
        if g < len(mf):
            gaps[g].append(w_)
        else:
            rest.append(w_)
    t2.extend(interleave(mf, gaps))
    stamp(t2, 24)
    t2("s_nop 3")
    t2.extend(rest[:-1])
    t2("s_nop 1")
    t2(rest[-1])
    t2("s_waitcnt lgkmcnt(0)")
    t2("s_barrier")

    def red_reads(mt):
        return [f"ds_read_b128 {v(VB + 16 * mt + 4 * w, 4)}, v{10 + w // 2} offset:{(w % 2) * 4096 + mt * 8192}" for w in range(4)]

    for mt in range(3):
        t2.extend(red_reads(mt))
    for mt in range(5):
        t2(f"s_waitcnt lgkmcnt({min(8, 4 * (4 - mt))})")
        if mt + 3 < 5:
            t2.extend(red_reads(mt + 3))
        r = VB + 16 * mt
        for i in range(0, 4, 2):
            t2(f"v_pk_add_f32 {v(r + i, 2)}, {v(r + i, 2)}, {v(r + 4 + i, 2)}")
            t2(f"v_pk_add_f32 {v(r + 8 + i, 2)}, {v(r + 8 + i, 2)}, {v(r + 12 + i, 2)}")
        for i in range(0, 4, 2):
            t2(f"v_pk_add_f32 {v(r + i, 2)}, {v(r + i, 2)}, {v(r + 8 + i, 2)}")
        t2(f"v_cvt_pk_bf16_f32 {v(r + 4)}, {v(r)}, {v(r + 1)}")
        t2(f"v_cvt_pk_bf16_f32 {v(r + 5)}, {v(r + 2)}, {v(r + 3)}")
        t2(f"buffer_store_dwordx2 {v(r + 4, 2)}, {v(V_OUT)}, {s(SRD_OUT, 4)}, {s(S_T0)} offen")
        t2(f"s_add_u32 {s(S_T0)}, {s(S_T0)}, {16 * 1280}")
    return t1, t2


HEADER = """; Fused MHA block: q = x@wq, softmax(q k^T / sqrt(128)) v, out = o@wo   (gfx950, generated by gen/gen.py)
; Kernarg: 0 x, 8 k_cache, 16 v_cache, 24 wq, 32 wo, 40 out, 48 debug, 56 ws
; @launch grid=(256,1,1) block=(256,1,1) lds=163840
.amdgcn_target "amdgcn-amd-amdhsa--gfx950"
.text
"""


def kd(name, vg, acc):
    return f""".p2align 6
.amdhsa_kernel {name}
  .amdhsa_next_free_vgpr {vg}
  .amdhsa_next_free_sgpr 102
  .amdhsa_accum_offset {acc}
  .amdhsa_group_segment_fixed_size 0
  .amdhsa_kernarg_size 64
  .amdhsa_user_sgpr_count 2
  .amdhsa_user_sgpr_kernarg_segment_ptr 1
  .amdhsa_system_sgpr_workgroup_id_x 1
.end_amdhsa_kernel
"""


def main():
    k1 = kernel()
    txt = HEADER
    txt += f".globl {KNAME}\n.p2align 8\n.type {KNAME},@function\n" + k1.text()
    txt += '.section .rodata,"a"\n' + kd(KNAME, 512, 256)
    open(sys.argv[1], "w").write(txt)


main()
```

```python
import math
import struct
import sys
from asmlib import *

OPT = dict(stamp=0, nodma=0, diagpace=0, adk=0, npre=15, pollat=9, bdepth=5, lastm=3, qrot=1, kv3=1, kvrate=1, kvrot=0, lct=1, lwt=2, swt=0, cwt=0, wont=0, jnt=0, cnt_=0)
for arg in sys.argv[2:]:
    k, val = arg.split("=")
    assert k in OPT, k
    OPT[k] = int(val)


def f32(x):
    return "0x%08x" % struct.unpack("<I", struct.pack("<f", x))[0]


SCALE = math.log2(math.e) / math.sqrt(128.0)
MF = "v_mfma_f32_16x16x32_bf16"
KNAME = "standalone__mha_block_cached__near_ridge_kernel"

S_JLIM, S_JWRAP = 0, 1
S_WAVE = 3
SRD_CODE = 4
SRD_J, SRD_K, SRD_V, SRD_O = 8, 16, 20, 24
S_JM = 12
S_J0, S_J1, S_JDG, S_JIA, S_JIB = 28, 29, 30, 31, 32
S_WOO, S_CB, S_CT = 33, 34, 35
S_OTAB = 36
S_OB, S_WB = 44, 45
S_IDX, S_XC, S_B2 = 46, 47, 48
S_W2048 = 49
S_KV = 50
S_CNT = 51
S_T0, S_T1, S_T2 = 52, 53, 54
S_OK = 55
S_SCALE = 56
S_POLL, S_INIT = 58, 59
S_STAMP = 60
SRD_WO, SRD_OO, SRD_OUT, SRD_FL, SRD_DBG = 64, 68, 72, 76, 80
S_B, S_H, S_SI, S_ROT = 92, 93, 94, 95

V_CT, V_IN, V_WT = 12, 14, 15
V_KA = 16
V_VA = 20
V_KD = 28
V_VD = 32
V_JD = 34
V_WA = 38
V_AA = 34
V_ONE = 44
V_Q = 48
V_S = 112
V_P = 144
V_NM = 176
V_LM = 192
V_M = 208
V_T = 212
V_QACC = 112
V_ST = 240
V_DUM = 242
V_OD = 243
V_WDD = 244
V_XA = 248
V_OS = 254
V_Z = 255

A_O = 0
A_K = 128
A_V = 160
A_K0 = 192
A_QA = 128
A_QB = 192

LDS_V = 65536
LDS_WQ = 131072
XBUF = [32768, LDS_V + 32768]


def unit(t):
    return (t % 8) * 8192


nstamp = [0]


def stamp(b, lane=None, force=False):
    if not OPT["stamp"]:
        return
    if OPT["stamp"] == 4 and not force and lane != 0:
        return
    b(f"s_memrealtime {s(S_STAMP, 2)}")
    b(f"s_memtime {s(S_STAMP + 2, 2)}")
    b("s_waitcnt lgkmcnt(0)")
    b(f"v_writelane_b32 {v(V_ST)}, {s(S_STAMP)}, {lane}")
    b(f"v_writelane_b32 {v(V_ST + 1)}, {s(S_STAMP + 2)}, {lane}")


def stamp_store(b, endlabel):
    b(f"""
    s_cmp_lg_u32 {s(S_WAVE)}, 0
    s_cbranch_scc1 {endlabel}
    s_add_u32 s8, s90, 0x4000000
    s_addc_u32 s9, s91, 0
    s_mov_b32 s10, 0x100000
    s_mov_b32 s11, 0x20000
    s_lshl_b32 s12, s2, 9
    v_lshlrev_b32 v1, 3, v0
    buffer_store_dwordx2 {v(V_ST, 2)}, v1, s[8:11], s12 offen
    """)


class VM:
    def __init__(self):
        self.ops = []

    def add(self, tag, n=1):
        self.ops += [tag] * n

    def cnt(self, *tags):
        last = max(i for i, x in enumerate(self.ops) if x in tags)
        return min(63, len(self.ops) - 1 - last)


def k_dma(n, soff, reg=None):
    return f"buffer_load_dwordx4 {v(V_KD + (n if reg is None else reg))}, {s(SRD_K, 4)}, {soff} offen offset:{1024 * n} nt lds"


def v_dma(n, soff):
    return f"buffer_load_dwordx4 {v(V_VD + n % 2)}, {s(SRD_V, 4)}, {soff} offen offset:{1024 * n} nt lds"


CTOUCH = f"buffer_load_dword v6, {v(V_CT)}, {s(SRD_CODE, 4)}, 0 offen{' nt' if OPT['cnt_'] else ''}"
KV_INC = f"s_add_u32 {s(S_KV)}, {s(S_KV)}, 8192"


def kv_group(g):
    return [f"s_add_u32 m0, {s(S_W2048)}, {LDS_V + unit(g)}", v_dma(0, s(S_KV)), v_dma(1, s(S_KV)), KV_INC,
            f"s_and_b32 {s(S_KV)}, {s(S_KV)}, 0x7ffff",
            f"s_add_u32 m0, {s(S_W2048)}, {unit(g + 1)}", k_dma(0, s(S_KV)), k_dma(1, s(S_KV))]


def k_read(t, kt, st, base=A_K):
    return f"ds_read_b128 {a(base + 16 * kt + 4 * st, 4)}, {v(V_KA + st)} offset:{unit(t) + 4096 * kt}"


def v_read(t, dt, kt, base=A_V):
    return f"ds_read_b64_tr_b16 {a(base + 4 * dt + 2 * kt, 2)}, {v(V_VA + dt)} offset:{unit(t) + 4096 * kt}"


def qk_all(zero=False, base=A_K):
    out = []
    for i, (qt, kt) in enumerate([(0, 0), (0, 1), (1, 1), (1, 0), (2, 0), (2, 1), (3, 1), (3, 0)]):
        d = v(V_S + 8 * qt + 4 * kt, 4)
        for n, st in enumerate([0, 1, 2, 3] if i % 2 == 0 else [3, 2, 1, 0]):
            c = d if n else ("0" if zero else v(V_NM + 4 * qt, 4))
            out.append(f"{MF} {d}, {a(base + 16 * kt + 4 * st, 4)}, {v(V_Q + 16 * qt + 4 * st, 4)}, {c}")
    return out


def pv(qt, dt, par, base=A_V):
    d = a(A_O + 32 * qt + 4 * dt, 4)
    return f"{MF} {d}, {v(V_P + 16 * par + 4 * qt, 4)}, {a(base + 4 * dt, 4)}, {d}"


def ones_mf(qt, par):
    d = v(V_LM + 4 * qt, 4)
    return f"{MF} {d}, {v(V_P + 16 * par + 4 * qt, 4)}, {v(V_ONE, 4)}, {d}"


def sm_exp(e):
    r = v(V_S + e)
    return f"v_exp_f32 {r}, {r}"


def sm_cvt(e, par):
    return f"v_cvt_pk_bf16_f32 {v(V_P + 16 * par + e // 2)}, {v(V_S + e - 1)}, {v(V_S + e)}"


NG = 68
EG = [10 + 2 * e for e in range(32)]
V_GAPS = list(range(1, 32, 2))
D_GAPS = [39, 45, 51, 57]
K_GAPS = [41, 43, 47, 49, 53, 55, 59, 61]
G_VWAIT, G_WAIT, G_BAR, G_M0A, G_INC, G_M0B, G_KWAIT = 30, 36, 37, 38, 46, 50, 67
G_CNT, G_CMP = 62, 64
CG = {}
for e in range(1, 32, 2):
    g = EG[e] + 1
    while g % NG in D_GAPS:
        g += 2
    CG[e] = g
XD_GAPS = [6, 12, 18, 24]


def wo_off(i):
    return f"s_add_u32 {s(S_WOO)}, {s(S_WB)}, {((i // 4) * 128 + (i % 4) * 4) * 1280}"


def wo_dma(n):
    return f"buffer_load_dwordx4 {v(V_WDD + n)}, {s(SRD_WO, 4)}, {s(S_WOO)} offen offset:{1024 * n}{' nt' if OPT['wont'] else ''} lds"


CELL_X = [(S_XC, 0), (S_XC, 4096)]
CELL_U = [(S_CB, 8192 * u) for u in range(8)]
NREG0 = 4
CELL0 = [CELL_X[0], CELL_X[1], CELL_X[0], CELL_U[0], CELL_X[1], CELL_U[1], CELL_U[2], CELL_U[3], CELL_U[4],
         CELL_X[0], CELL_U[5], CELL_U[0], CELL_U[6]]


def quad(q, off=0, n=4):
    kind, base = q
    return (a if kind == "a" else v)(base + off, n)


def wo_reads(quads, cell):
    wdw = 1 if cell[0] == S_XC else 0
    return [f"ds_read_b64_tr_b16 {quad(quads[nt], 2 * e, 2)}, {v(V_AA + 4 * wdw + nt)} offset:{cell[1] + 2048 * e}"
            for nt in range(4) for e in range(2)]


AREG0 = {i: [("a", 192 + 16 * i + 4 * nt) for nt in range(4)] for i in range(NREG0)}


def cell_m0(c):
    return f"s_add_u32 m0, {s(c[0])}, {c[1]}"


def subtile(t, vm=None, last=False):
    par = t % 2
    pvo = [(qt if dt % 2 == 0 else 3 - qt, dt) for dt in range(8) for qt in range(4)]
    mf = qk_all() + [pv(qt, dt, 1 - par) for qt, dt in pvo] + [ones_mf(qt, 1 - par) for qt in range(4)]
    gaps = [[] for _ in range(NG)]
    for r, g in zip([v_read(t - 1, dt, kt) for dt in range(8) for kt in range(2)], V_GAPS):
        gaps[g].append(r)
    gaps[G_VWAIT].append("s_waitcnt lgkmcnt(2)")
    if last and t == 7:
        fg = [41, 43, 47, 49, 53, 55, 59, 61, 63, 65, 40, 44, 48, 52, 56, 60]
        for r, g in zip([v_read(t, dt, kt, A_K) for dt in range(8) for kt in range(2)], sorted(fg)):
            gaps[g].append(r)
    else:
        for r, g in zip([k_read(t + 1, kt, st) for kt in range(2) for st in range(4)], K_GAPS):
            gaps[g].append(r)
        gaps[G_KWAIT].append("s_waitcnt lgkmcnt(0)")

    def put_group(ops, g_pre, dg):
        i = 0
        npre = 0
        for x in ops:
            if x.startswith("buffer"):
                gaps[dg[i]].append(x)
                i += 1
                npre = 0
            else:
                gaps[dg[i] - g_pre[npre]].append(x)
                npre += 1

    def wo_group(i):
        vm.add(("wo", i), 4)
        return [wo_off(i), cell_m0(CELL0[i])] + [wo_dma(n) for n in range(4)]

    n = 24
    if last:
        if t in (1, 2, 6, 7):
            put_group(wo_group({1: 2, 2: 4, 6: 9, 7: 11}[t]), [4, 2], XD_GAPS)
        if t == 0:
            gaps[8].append(f"buffer_load_dword {v(V_IN)}, {v(V_Z)}, {s(SRD_DBG, 4)}, 0 offen offset:128 sc1")
            vm.add("init")
        rd0 = {0: 0, 5: 2, 6: 3}.get(t)
        if rd0 is not None:
            fg = [40, 42, 44, 48, 52, 54, 63, 65] + [56, 58, 60, 62, 63, 64, 65, 66]
            rr = [x for i in ([0, 1] if rd0 == 0 else [rd0]) for x in wo_reads(AREG0[i], CELL0[i])]
            for r, g in zip(rr, sorted(fg[:len(rr)])):
                gaps[g].append(r)
        n = vm.cnt(("kv", t + 56), ("wo", rd0))
    gaps[G_WAIT].append(f"s_waitcnt vmcnt({n}) lgkmcnt(0)")
    gaps[G_BAR].append("s_barrier")
    if last:
        if t == 0:
            put_group(kv_group(63)[:3], [1], D_GAPS)
            vm.add(("kv", 63), 2)
        else:
            put_group(wo_group({1: 3, 2: 5, 3: 6, 4: 7, 5: 8, 6: 10, 7: 12}[t]), [5, 1], D_GAPS)
    else:
        ops = kv_group(t + 7)
        for x, g in zip(ops, [G_M0A, D_GAPS[0], D_GAPS[1], G_INC, G_INC + 2, G_M0B, D_GAPS[2], D_GAPS[3]]):
            gaps[g].append(x)
        if t == 3 and OPT['lct'] == 1:
            gaps[65].append(CTOUCH)
        if (t == 6 and OPT['lwt']) or (t == 2 and OPT['lwt'] == 3):
            gaps[65].append(f"buffer_load_dword {v(V_DUM)}, {v(V_WT)}, {s(SRD_WO, 4)}, {s(S_T2)} offen")
            if OPT["lwt"] == 2:
                gaps[66].append(f"s_add_u32 {s(S_T2)}, {s(S_T2)}, {0x40000000 + 2560}")
                gaps[67].append(f"s_and_b32 {s(S_T2)}, {s(S_T2)}, 0x7fffffff")
            else:
                gaps[66].append(f"s_add_u32 {s(S_T2)}, {s(S_T2)}, {4096 if OPT['lwt'] == 1 else 2048}")
        if t == 7:
            gaps[G_CNT].append(f"s_sub_u32 {s(S_CNT)}, {s(S_CNT)}, 1")
            gaps[G_CMP].append(f"s_cmp_gt_u32 {s(S_CNT)}, 1")
    for e in range(32):
        gaps[EG[e] % NG].append(sm_exp(e))
    for e, g in CG.items():
        gaps[g % NG].append(sm_cvt(e, par if g < NG else 1 - par))
    cand = [g for g in range(NG) if len(gaps[g]) == 2 and gaps[g][0].startswith("ds_") and gaps[g][1].startswith("v_cvt")]
    k = min(OPT["adk"], len(cand))
    for i in range(k):
        gaps[cand[(i * len(cand)) // k]].reverse()
    for i in range(OPT["diagpace"]):
        gaps[(2 * i) % NG].append("s_nop 1")
    if OPT["nodma"]:
        gaps = [[x for x in g if not x.startswith("buffer")] for g in gaps]
    res = interleave(mf, gaps)
    if OPT["stamp"] == 4:
        sb = Block()
        sb(f"s_mov_b32 m0, {s(S_SI)}")
        stamp(sb, "m0", True)
        sb(f"s_add_u32 {s(S_SI)}, {s(S_SI)}, 1")
        if not last and t == 7:
            sb(f"s_cmp_gt_u32 {s(S_CNT)}, 1")
        res += sb.lines
    return res


def flat(lst):
    out = []
    for i, x in enumerate(lst):
        out.append(x)
        if " m0," in x and i + 1 < len(lst) and lst[i + 1].startswith("buffer"):
            out.append("s_nop 0")
    return out


def conv_q(qt, packed):
    out = []
    for st in range(4):
        acc = V_QACC + 4 * (8 * qt + 2 * st)
        if packed:
            out += [f"v_pk_mul_f32 {v(acc + 2 * i, 2)}, {v(acc + 2 * i, 2)}, {s(S_SCALE, 2)}" for i in range(4)]
        else:
            out += [f"v_mul_f32 {v(acc + i)}, {s(S_SCALE)}, {v(acc + i)}" for i in range(8)]
        out += [f"v_cvt_pk_bf16_f32 {v(V_Q + 16 * qt + 4 * st + i)}, {v(acc + 2 * i)}, {v(acc + 2 * i + 1)}" for i in range(4)]
    return out


def spread(gaps, dm, start, step):
    gi = start
    si = 0
    busy = set()
    for d in dm:
        if d.startswith("buffer"):
            gaps[gi].append(d)
            busy.add(gi)
            si = gi + 1
            gi += step
        else:
            g = min(si, gi - 1, len(gaps) - 1)
            gaps[g].append(d)
            si = g + 1
    return busy


def job(i):
    ld = [f"buffer_load_dwordx4 {v(V_JD + n)}, {s(SRD_J, 4)}, {{}} offen offset:{1024 * n}{' nt' if OPT['jnt'] else ''} lds" for n in range(4)]
    out = [f"s_mov_b32 m0, {s(S_JM + i % 4)}", f"s_add_u32 {s(S_J1)}, {s(S_J0)}, {s(S_JDG)}"]
    out += [x.format(s(S_J0)) for x in ld]
    out += [f"s_add_u32 m0, {s(S_JM + i % 4)}, 4096", f"s_add_u32 {s(S_J0)}, {s(S_J0)}, {s(S_JIA if i % 2 == 0 else S_JIB)}"]
    out += [ld[0].format(s(S_J1))]
    if i % 2 == 1:
        out += [f"s_cmp_ge_u32 {s(S_J0)}, {s(S_JLIM)}", f"s_cselect_b32 {s(S_T0)}, {s(S_JWRAP)}, 0",
                f"s_sub_u32 {s(S_J0)}, {s(S_J0)}, {s(S_T0)}"]
    out += [x.format(s(S_J1)) for x in ld[1:]]
    return out


def kv_half(i):
    u, isv, hf = i // 4, (i % 4) // 2, i % 2
    out = [f"s_mov_b32 m0, {(LDS_V if isv else 0) + unit(u) + 4096 * hf}", f"s_add_u32 {s(S_J0)}, {s(S_ROT)}, {u * 8192 + 4096 * hf}",
           f"s_and_b32 {s(S_J0)}, {s(S_J0)}, 0x7ffff"]
    for n in range(4):
        out.append(v_dma(n, s(S_J0)) if isv else k_dma(n, s(S_J0), (n + 2) % 4))
    return out


def q_areads(j):
    base = A_QA + 32 * (j % 2)
    return [f"ds_read_b64_tr_b16 {a(base + 4 * (2 * st + e) + 2 * jj, 2)}, {v(V_WA + st)} offset:{(j % 4) * 8192 + 1024 * jj + 8 * e}"
            for st in range(4) for e in range(2) for jj in range(2)]


def q_breads(stg):
    base = A_QB + 32 * (stg % 2)
    return [f"ds_read_b128 {a(base + 16 * ks + 4 * qt, 4)}, {v(V_XA + 2 * (stg % 2) + ks)} offset:{2048 * qt}"
            for ks in range(2) for qt in range(4)]


def q_mfmas(j):
    ab = A_QA + 32 * (j % 2)
    bb = A_QB + 32 * ((j // 2) % 2) + 16 * (j % 2)
    out = []
    for qt in range(4):
        for dd in range(8):
            dtile = dd if qt % 2 == 0 else 7 - dd
            d = v(V_QACC + 4 * (8 * qt + dtile), 4)
            out.append(f"{MF} {d}, {a(ab + 4 * dtile, 4)}, {a(bb + 4 * qt, 4)}, {'0' if j == 0 else d}")
    return out


def q_step(b, j, dm, wait, zero):
    if wait is not None:
        b(f"s_waitcnt vmcnt({wait})")
    b("s_barrier")
    if j == 1:
        stamp(b, 1)
    if OPT["stamp"] == 3:
        stamp(b, 32 + j)
    rd = q_areads(j)
    if j % 2 == 0:
        br = q_breads(j // 2)
        rd = br[:4] + rd + br[4:]
    if j == 0:
        b.extend(rd)
        b.extend(flat(dm))
    else:
        gaps = [[] for _ in range(32)]
        nd = sum(x.startswith("buffer") for x in dm)
        busy = spread(gaps, dm, 2, 4 if nd > 6 else 5)
        fr = [g for g in range(30) if g not in busy]
        extra = len(rd) - len(fr)
        gi = 0
        for r in rd:
            lone = not gaps[fr[gi]]
            gaps[fr[gi]].append(r)
            if extra > 0 and sum(x.startswith("ds_") for x in gaps[fr[gi]]) == 1:
                extra -= 1
            else:
                if lone and zero:
                    gaps[fr[gi]].append(zero.pop(0))
                gi += 1
        b.extend(interleave(q_mfmas(j - 1), gaps))
    b("s_waitcnt lgkmcnt(0)")


WTOUCH = [f"buffer_load_dword v8, {v(V_WT)}, {s(SRD_WO, 4)}, {s(S_T2)} offen",
          f"s_add_u32 {s(S_T2)}, {s(S_T2)}, 8192",
          f"buffer_load_dword v9, {v(V_WT)}, {s(SRD_WO, 4)}, {s(S_T2)} offen",
          f"s_add_u32 {s(S_T2)}, {s(S_T2)}, 4096",
          f"buffer_load_dword v10, {v(V_WT)}, {s(SRD_WO, 4)}, {s(S_T2)} offen"]
JSPLIT = 18


def qproj_role(role3):
    b = Block()
    if role3 and OPT["swt"] == 1:
        b.extend(WTOUCH)
    zero = [f"v_accvgpr_write_b32 {a(A_O + i)}, 0" for i in range(128)]
    for j in range(JSPLIT):
        if role3:
            i0 = (j - OPT["kv3"]) * OPT["kvrate"]
            dm = [x for i in range(i0, i0 + OPT["kvrate"]) if 0 <= i < 16 for x in kv_half(i)]
            if OPT["swt"] >= 2 and j == OPT["swt"] - 2:
                dm = [x for x in WTOUCH if not x.startswith(";")] + dm
            wait = 48 if i0 >= 12 else None
        else:
            dm = job(j + 3) if j + 3 < 20 else []
            wait = 8 if j % 2 == 0 else None
        q_step(b, j, dm, wait, zero)
    assert not zero
    return b


def qproj_end():
    b = Block()
    k4 = [f"s_add_u32 m0, {s(S_W2048)}, {unit(4)}", f"s_add_u32 {s(S_KV)}, {s(S_ROT)}, {4 * 8192}",
          f"s_and_b32 {s(S_KV)}, {s(S_KV)}, 0x7ffff", f"s_add_u32 {s(S_KV)}, {s(S_KV)}, {s(S_W2048)}",
          k_dma(0, s(S_KV)), k_dma(1, s(S_KV))]
    q_step(b, 18, k4, 0, [])
    q_step(b, 19, kv_group(4), None, [])
    gaps = [[] for _ in range(32)]
    kr = [k_read(0, kt, st, A_K0) for kt in range(2) for st in range(4)] + [k_read(1, kt, st) for kt in range(2) for st in range(4)]
    busy = spread(gaps, kv_group(5), 2, 3)
    gi = 0
    for r in kr[:9]:
        while gi in busy:
            gi += 1
        gaps[gi].append(r)
        gi += 1
    cv = conv_q(0, False)
    kr = kr[9:]
    for g in range(13, 32):
        if kr:
            gaps[g] += [kr.pop(0), cv.pop(0)]
        else:
            gaps[g] += [cv.pop(0), cv.pop(0)]
    b.extend(interleave(q_mfmas(19), gaps))
    b.extend(cv)
    return b


def kernel():
    b = Block()
    b(KNAME + ":")
    b(f"""
    s_load_dwordx4 s[36:39], s[0:1], 0
    s_load_dwordx4 s[40:43], s[0:1], 16
    s_load_dwordx4 s[84:87], s[0:1], 32
    s_load_dwordx4 s[88:91], s[0:1], 48
    s_cmp_ge_u32 s2, 256
    s_cbranch_scc1 L1_end
    v_lshrrev_b32 v1, 6, v0
    v_and_b32 v0, 63, v0
    v_readfirstlane_b32 {s(S_WAVE)}, v1
    ; attention problem of this workgroup: b = 4*(j&1) + idx%4, h = 8*(j>>1) + idx/4  (j = id%8, idx = id/8)
    s_and_b32 {s(S_T0)}, s2, 7
    s_lshr_b32 {s(S_IDX)}, s2, 3
    s_and_b32 {s(S_B)}, {s(S_T0)}, 1
    s_lshl_b32 {s(S_B)}, {s(S_B)}, 2
    s_and_b32 {s(S_H)}, {s(S_IDX)}, 3
    s_add_u32 {s(S_B)}, {s(S_B)}, {s(S_H)}
    s_lshr_b32 {s(S_H)}, {s(S_T0)}, 1
    s_lshl_b32 {s(S_H)}, {s(S_H)}, 3
    s_lshr_b32 {s(S_T0)}, {s(S_IDX)}, 2
    s_add_u32 {s(S_H)}, {s(S_H)}, {s(S_T0)}
    s_lshl_b32 {s(S_W2048)}, {s(S_WAVE)}, 11
    ; instruction prefetch: every workgroup pulls one 8 KB chunk of this kernel's code into its L2 (16 lines per wave)
    s_getpc_b64 {s(SRD_CODE, 2)}
    L1_pc:
    s_sub_u32 {s(SRD_CODE)}, {s(SRD_CODE)}, L1_pc-{KNAME}
    s_subb_u32 {s(SRD_CODE + 1)}, {s(SRD_CODE + 1)}, 0
    s_mov_b32 {s(SRD_CODE + 2)}, L1_end-{KNAME}
    s_mov_b32 {s(SRD_CODE + 3)}, 0x20000
    s_and_b32 {s(S_T0)}, {s(S_IDX)}, 7
    s_lshl_b32 {s(S_T0)}, {s(S_T0)}, 13
    s_add_u32 {s(S_T0)}, {s(S_T0)}, {s(S_W2048)}
    ; lane fields: v1 = G = l/16, v2 = l%16, v3 = l/8, v4 = c = l%4, v5 = l%8, v7 = r = (l/4)%4
    v_and_b32 v2, 15, v0
    v_lshrrev_b32 v1, 4, v0
    v_lshl_add_u32 {v(V_CT)}, v2, 7, {s(S_T0)}
    v_lshrrev_b32 v3, 3, v0
    v_and_b32 v5, 7, v0
    {CTOUCH}
    ; job voffsets.  wq (wave 0): (4n + G)*8192 + ((l%16) ^ (G<<2))*16 - 1024n
    ;                x (waves 1, 2): (8n + l/8)*1280 + ((l%8) ^ (4(n&1) + G))*16 - 1024n
    v_lshlrev_b32 v9, 2, v1
    v_xor_b32 v9, v2, v9
    v_lshlrev_b32 v9, 4, v9
    v_lshl_add_u32 v9, v1, 13, v9
    v_xor_b32 v8, v5, v1
    v_lshlrev_b32 v8, 4, v8
    v_mul_u32_u24 v10, 1280, v3
    v_xor_b32 v11, 64, v8
    v_add_u32 v8, v10, v8
    v_add_u32 v11, v10, v11
    s_mov_b32 {s(S_T1)}, {8 * 1280 - 1024}
    s_cmp_eq_u32 {s(S_WAVE)}, 0
    s_cselect_b64 vcc, -1, 0
    s_cselect_b32 {s(S_T1)}, {4 * 8192 - 1024}, {s(S_T1)}
    s_lshl_b32 {s(S_T2)}, {s(S_T1)}, 1
    v_cndmask_b32 {v(V_JD)}, v8, v9, vcc
    v_cndmask_b32 v11, v11, v9, vcc
    v_add_u32 {v(V_JD + 1)}, {s(S_T1)}, v11
    v_add_u32 {v(V_JD + 2)}, {s(S_T2)}, {v(V_JD)}
    v_add_u32 {v(V_JD + 3)}, {s(S_T2)}, {v(V_JD + 1)}
    ; start stage of the k loop: (h%8 + 3*(b%4)) % 10, so that workgroups sharing x or wq fetch for each other
    s_and_b32 {s(S_T0)}, {s(S_IDX)}, 3
    s_mul_i32 {s(S_T0)}, {s(S_T0)}, {3 * OPT["qrot"]}
    s_lshr_b32 {s(S_T1)}, {s(S_IDX)}, 2
    s_mul_i32 {s(S_T1)}, {s(S_T1)}, {OPT["qrot"]}
    s_add_u32 {s(S_T0)}, {s(S_T0)}, {s(S_T1)}
    s_cmp_ge_u32 {s(S_T0)}, 10
    s_cselect_b32 {s(S_T1)}, 10, 0
    s_sub_u32 {s(S_T0)}, {s(S_T0)}, {s(S_T1)}
    s_sub_u32 {s(S_T1)}, {s(S_WAVE)}, 1
    s_mul_i32 {s(S_CNT)}, {s(S_T1)}, {128 * 1280}
    s_lshl_b32 {s(S_J0)}, {s(S_T0)}, 7
    s_add_u32 {s(S_J0)}, {s(S_J0)}, {s(S_CNT)}
    s_add_u32 {s(S_CNT)}, {s(S_CNT)}, 1280
    s_mov_b32 {s(S_KV)}, 1280
    s_mov_b32 {s(S_JDG)}, {32 * 1280}
    s_mov_b32 {s(S_JIA)}, {64 * 1280}
    s_mov_b32 {s(S_JIB)}, {128 - 64 * 1280}
    s_lshl_b32 {s(S_T1)}, {s(S_T1)}, 14
    s_add_u32 {s(S_JM)}, {s(S_T1)}, {XBUF[0]}
    s_add_u32 {s(S_JM + 1)}, {s(S_T1)}, {XBUF[0] + 8192}
    s_add_u32 {s(S_JM + 2)}, {s(S_T1)}, {XBUF[1]}
    s_add_u32 {s(S_JM + 3)}, {s(S_T1)}, {XBUF[1] + 8192}
    s_mul_i32 {s(S_T2)}, {s(S_B)}, 307200
    s_mov_b32 {s(SRD_J + 2)}, 307200
    s_mov_b32 {s(SRD_J + 3)}, 0x20000
    s_cmp_lg_u32 {s(S_WAVE)}, 0
    s_cbranch_scc1 L1_xjob
    s_lshl_b32 {s(S_J0)}, {s(S_T0)}, 19
    s_mov_b32 {s(S_CNT)}, {640 * 8192}
    s_mov_b32 {s(S_KV)}, {640 * 8192}
    s_mov_b32 {s(S_JDG)}, {16 * 8192}
    s_mov_b32 {s(S_JIA)}, {32 * 8192}
    s_mov_b32 {s(S_JIB)}, {32 * 8192}
    s_mov_b32 {s(S_JM)}, {LDS_WQ}
    s_mov_b32 {s(S_JM + 1)}, {LDS_WQ + 8192}
    s_mov_b32 {s(S_JM + 2)}, {LDS_WQ + 2 * 8192}
    s_mov_b32 {s(S_JM + 3)}, {LDS_WQ + 3 * 8192}
    s_lshl_b32 {s(S_T2)}, {s(S_H)}, 8
    s_sub_u32 {s(SRD_J + 2)}, {640 * 8192}, {s(S_T2)}
    L1_xjob:
    s_waitcnt lgkmcnt(0)
    s_mov_b32 {s(S_JLIM)}, {s(S_CNT)}
    s_mov_b32 {s(S_JWRAP)}, {s(S_KV)}
    s_cmp_eq_u32 {s(S_WAVE)}, 0
    s_cselect_b32 {s(SRD_J)}, s42, s36
    s_cselect_b32 {s(SRD_J + 1)}, s43, s37
    s_add_u32 {s(SRD_J)}, {s(SRD_J)}, {s(S_T2)}
    s_addc_u32 {s(SRD_J + 1)}, {s(SRD_J + 1)}, 0
    """)
    stamp(b, 0)
    b(f"s_cmp_eq_u32 {s(S_WAVE)}, 3")
    b("s_cbranch_scc1 L1_nojob")
    jobs0 = Block()
    jobs0.extend(flat(job(0) + job(1) + job(2)))
    b2 = Block()
    b2("L1_nojob:")
    b2(f"""
    ; hand-off counters live in ws + 32 MB (256 B apart); wave 3 of workgroups 0..31 clears one each
    s_add_u32 {s(SRD_FL)}, s90, 0x2000000
    s_addc_u32 {s(SRD_FL + 1)}, s91, 0
    s_mov_b32 {s(SRD_FL + 2)}, 8192
    s_mov_b32 {s(SRD_FL + 3)}, 0x20000
    s_mov_b32 {s(SRD_DBG)}, s88
    s_mov_b32 {s(SRD_DBG + 1)}, s89
    s_mov_b32 {s(SRD_DBG + 2)}, 256
    s_mov_b32 {s(SRD_DBG + 3)}, 0x20000
    v_mov_b32 {v(V_Z)}, 0
    s_xor_b32 {s(S_T0)}, {s(S_WAVE)}, 3
    s_lshl_b32 {s(S_T0)}, {s(S_T0)}, 5
    s_add_u32 {s(S_INIT)}, {s(S_T0)}, s2
    s_cmp_ge_u32 {s(S_INIT)}, 32
    s_cbranch_scc1 L1_noclr
    s_lshl_b32 {s(S_T0)}, s2, 8
    s_mov_b64 exec, 1
    buffer_store_dword {v(V_Z)}, {v(V_Z)}, {s(SRD_FL, 4)}, {s(S_T0)} offen sc1 ; rare
    s_mov_b64 exec, -1
    L1_noclr:
    s_lshr_b32 {s(S_CB)}, {s(S_WAVE)}, 1
    s_lshl_b32 {s(S_CB)}, {s(S_CB)}, 16
    s_and_b32 {s(S_T0)}, {s(S_WAVE)}, 1
    s_lshl_b32 {s(S_T0)}, {s(S_T0)}, 12
    s_add_u32 {s(S_CB)}, {s(S_CB)}, {s(S_T0)}
    s_lshl_b32 {s(S_XC)}, {s(S_WAVE)}, 13
    v_and_b32 v4, 3, v0
    v_bfe_u32 v7, v0, 2, 2
    v_lshl_add_u32 v8, v1, 3, v7
    v_lshlrev_b32 v8, 8, v8
    v_lshl_add_u32 v8, v7, 6, v8
    v_lshl_add_u32 v8, v4, 4, v8
    v_add_u32 {v(V_WA)}, {LDS_WQ}, v8
    v_xor_b32 {v(V_WA + 1)}, 64, {v(V_WA)}
    v_xor_b32 {v(V_WA + 2)}, 0x80, {v(V_WA)}
    v_xor_b32 {v(V_WA + 3)}, 0xc0, {v(V_WA)}
    ; x read: buffer + w*8192 + (l%16)*128 + ((G ^ ((l%16)>>1))*16) ^ (ks*64)
    v_lshrrev_b32 v8, 1, v2
    v_xor_b32 v8, v1, v8
    v_lshlrev_b32 v8, 4, v8
    v_lshl_add_u32 v8, v2, 7, v8
    v_add_u32 v8, {s(S_XC)}, v8
    v_add_u32 {v(V_XA)}, {XBUF[0]}, v8
    v_xor_b32 {v(V_XA + 1)}, 64, {v(V_XA)}
    v_add_u32 {v(V_XA + 2)}, {XBUF[1]}, v8
    v_xor_b32 {v(V_XA + 3)}, 64, {v(V_XA + 2)}
    s_add_u32 {s(S_XC)}, {s(S_XC)}, {LDS_WQ}
    s_lshl_b32 {s(S_T0)}, {s(S_B)}, 5
    s_add_u32 {s(S_T0)}, {s(S_T0)}, {s(S_H)}
    s_lshl_b32 {s(S_T0)}, {s(S_T0)}, 19
    s_add_u32 {s(SRD_K)}, s38, {s(S_T0)}
    s_addc_u32 {s(SRD_K + 1)}, s39, 0
    s_mov_b32 {s(SRD_K + 2)}, 524288
    s_mov_b32 {s(SRD_K + 3)}, 0x20000
    s_add_u32 {s(SRD_V)}, s40, {s(S_T0)}
    s_addc_u32 {s(SRD_V + 1)}, s41, 0
    s_mov_b32 {s(SRD_V + 2)}, 524288
    s_mov_b32 {s(SRD_V + 3)}, 0x20000
    s_mul_i32 {s(S_ROT)}, s2, {OPT["kvrot"] * 8192}
    s_and_b32 {s(S_ROT)}, {s(S_ROT)}, 0x7ffff
    ; K DMA voffsets: G*256 + ((l%16) ^ (8(w&1) + 4n + G))*16 ; V: G*256 + ((l%16) ^ ((4n + G)<<1))*16
    s_and_b32 {s(S_T0)}, {s(S_WAVE)}, 1
    s_lshl_b32 {s(S_T0)}, {s(S_T0)}, 7
    v_xor_b32 v8, v2, v1
    v_lshlrev_b32 v8, 4, v8
    v_lshl_add_u32 v9, v1, 8, v8
    v_xor_b32 {v(V_KD)}, {s(S_T0)}, v9
    v_xor_b32 {v(V_KD + 1)}, 64, {v(V_KD)}
    v_xor_b32 {v(V_KD + 2)}, 0x80, {v(V_KD)}
    v_xor_b32 {v(V_KD + 3)}, 0xc0, {v(V_KD)}
    v_lshlrev_b32 v9, 1, v1
    v_xor_b32 v9, v2, v9
    v_lshlrev_b32 v9, 4, v9
    v_lshl_add_u32 {v(V_VD)}, v1, 8, v9
    v_xor_b32 {v(V_VD + 1)}, 0x80, {v(V_VD)}
    s_mul_i32 {s(S_T0)}, {s(S_B)}, {15 * 131072}
    s_add_u32 {s(SRD_O)}, s90, {s(S_T0)}
    s_addc_u32 {s(SRD_O + 1)}, s91, 0
    s_mov_b32 {s(SRD_O + 2)}, {15 * 131072}
    s_mov_b32 {s(SRD_O + 3)}, 0x20000
    ; K read: (l%16)*256 + ((G ^ (l%16))*16) ^ (s*64)
    v_lshl_add_u32 {v(V_KA)}, v2, 8, v8
    v_xor_b32 {v(V_KA + 1)}, 64, {v(V_KA)}
    v_xor_b32 {v(V_KA + 2)}, 0x80, {v(V_KA)}
    v_xor_b32 {v(V_KA + 3)}, 0xc0, {v(V_KA)}
    v_lshl_add_u32 v8, v1, 2, v7
    v_and_b32 v9, 7, v8
    v_lshlrev_b32 v8, 8, v8
    v_lshl_add_u32 v8, v9, 5, v8
    v_lshl_add_u32 v8, v4, 3, v8
    v_add_u32 {v(V_VA)}, {LDS_V}, v8
    """)
    for dt in range(1, 8):
        b2(f"v_xor_b32 {v(V_VA + dt)}, {32 * dt}, {v(V_VA)}")
    for i in range(4):
        b2(f"v_mov_b32 {v(V_ONE + i)}, 0x3f803f80")
    b2(f"""
    v_lshlrev_b32 {v(V_OD)}, 4, v0
    ; O store voffset: ((l%16)/4)*1024 + (4*(l%4) + G)*16
    v_lshl_add_u32 v8, v4, 2, v1
    v_lshlrev_b32 v8, 4, v8
    v_lshl_add_u32 {v(V_OS)}, v7, 10, v8
    s_mov_b32 {s(S_SCALE)}, {f32(SCALE)}
    s_mov_b32 {s(S_SCALE + 1)}, {f32(SCALE)}
    ; ---- O-projection tile of this workgroup: batch 4*(1 - (j&1)) + (j>>1), row tile idx/10, column tile idx%10
    s_mul_i32 {s(S_T1)}, {s(S_IDX)}, 26
    s_lshr_b32 {s(S_T1)}, {s(S_T1)}, 8
    s_mul_i32 {s(S_T0)}, {s(S_T1)}, 10
    s_sub_u32 {s(S_CT)}, {s(S_IDX)}, {s(S_T0)}
    s_andn2_b32 {s(S_B2)}, 1, s2
    s_lshl_b32 {s(S_B2)}, {s(S_B2)}, 2
    s_bfe_u32 {s(S_T0)}, s2, 0x20001
    s_add_u32 {s(S_B2)}, {s(S_B2)}, {s(S_T0)}
    s_mul_i32 {s(S_T0)}, {s(S_B2)}, 15
    s_min_u32 {s(S_T1)}, {s(S_T1)}, 2
    s_mul_i32 {s(S_T1)}, {s(S_T1)}, 5
    s_add_u32 {s(S_T0)}, {s(S_T0)}, {s(S_T1)}
    s_lshl_b32 {s(S_T1)}, {s(S_T0)}, 17
    s_add_u32 {s(SRD_OO)}, s90, {s(S_T1)}
    s_addc_u32 {s(SRD_OO + 1)}, s91, 0
    s_mov_b32 {s(SRD_OO + 2)}, {5 * 131072}
    s_mov_b32 {s(SRD_OO + 3)}, 0x20000
    s_mul_i32 {s(S_T1)}, {s(S_T0)}, {16 * 1280}
    s_add_u32 {s(SRD_OUT)}, s86, {s(S_T1)}
    s_addc_u32 {s(SRD_OUT + 1)}, s87, 0
    s_mov_b32 {s(SRD_OUT + 2)}, {80 * 1280}
    s_mov_b32 {s(SRD_OUT + 3)}, 0x20000
    s_mov_b32 {s(SRD_WO)}, s84
    s_mov_b32 {s(SRD_WO + 1)}, s85
    s_mov_b32 {s(SRD_WO + 2)}, {4096 * 1280}
    s_mov_b32 {s(SRD_WO + 3)}, 0x20000
    s_mul_i32 {s(S_WB)}, {s(S_WAVE)}, {1024 * 1280}
    s_lshl_b32 {s(S_T0)}, {s(S_CT)}, 7
    s_add_u32 {s(S_WB)}, {s(S_WB)}, {s(S_T0)}
    s_lshl_b32 {s(S_OB)}, {s(S_WAVE)}, 15
    s_mul_i32 {s(S_T2)}, s2, 20480
    s_lshl_b32 {s(S_T0)}, {s(S_WAVE)}, 10
    {f"v_lshl_add_u32 {v(V_WT)}, v5, 7, {s(S_T0)}" if OPT["lwt"] else f"v_lshlrev_b32 {v(V_WT)}, 7, v0"}
    """)
    if OPT["lwt"] in (2, 3):
        nl = 10 if OPT["lwt"] == 2 else 4
        b2(f"""
        s_mul_i32 {s(S_T0)}, {s(S_WAVE)}, {nl * 128}
        v_min_u32 {v(V_WT)}, {nl - 1}, v0
        v_lshl_add_u32 {v(V_WT)}, {v(V_WT)}, 7, {s(S_T0)}
        """)
    if OPT["cwt"]:
        b2(f"""
        ; share of wo (heads 3..7 of every group of 8) that this wave pulls into the last-level cache: 25 lines
        s_lshr_b32 {s(S_T0)}, s2, 6
        s_mul_i32 {s(S_T2)}, {s(S_T0)}, {1024 * 1280}
        s_and_b32 {s(S_T0)}, s2, 63
        s_lshl_b32 {s(S_T0)}, {s(S_T0)}, 2
        s_add_u32 {s(S_T0)}, {s(S_T0)}, {s(S_WAVE)}
        s_mul_i32 {s(S_T0)}, {s(S_T0)}, {25 * 128}
        s_add_u32 {s(S_T2)}, {s(S_T2)}, {s(S_T0)}
        s_add_u32 {s(S_T2)}, {s(S_T2)}, {384 * 1280}
        v_min_u32 {v(V_WT)}, 24, v0
        v_lshlrev_b32 {v(V_WT)}, 7, {v(V_WT)}
        """)
    b2(f"""
    s_lshl_b32 {s(S_POLL)}, {s(S_B2)}, 2
    s_add_u32 {s(S_POLL)}, {s(S_POLL)}, {s(S_WAVE)}
    s_lshl_b32 {s(S_POLL)}, {s(S_POLL)}, 8
    ; wo DMA voffset n: (64(n/2) + 2(n%2) + 16*((l/8)%4) + l/32)*1280 + (((l%8) ^ (G<<1))*16) - 1024n
    v_and_b32 v8, 3, v3
    v_lshlrev_b32 v8, 4, v8
    v_lshrrev_b32 v9, 5, v0
    v_add_u32 v8, v8, v9
    v_mul_u32_u24 v8, 1280, v8
    v_lshlrev_b32 v9, 1, v1
    v_xor_b32 v9, v5, v9
    v_lshl_add_u32 {v(V_WDD)}, v9, 4, v8
    v_add_u32 {v(V_WDD + 1)}, {2 * 1280 - 1024}, {v(V_WDD)}
    v_add_u32 {v(V_WDD + 2)}, {64 * 1280 - 2048}, {v(V_WDD)}
    v_add_u32 {v(V_WDD + 3)}, {66 * 1280 - 3072}, {v(V_WDD)}
    s_cmp_eq_u32 {s(S_WAVE)}, 3
    s_cbranch_scc1 L1_q3
    """)
    qa = qproj_role(False)
    qb = qproj_role(True)
    qe = qproj_end()
    stamp(qe, 2)

    mid = Block()
    mid(f"""
    s_waitcnt lgkmcnt(0)
    s_barrier
    s_cmp_ge_u32 {s(S_INIT)}, 32
    s_cbranch_scc1 L1_norep
    v_mov_b32 v8, 1
    s_mov_b64 exec, 1
    buffer_atomic_add v8, {v(V_Z)}, {s(SRD_DBG, 4)}, 0 offen offset:128 sc1 ; rare
    s_mov_b64 exec, -1
    L1_norep:
    ; wo tr-read addresses: (4G + r)*128 + ((nt ^ (2(G&1) + r/2))*32) + 8c + window base
    v_lshl_add_u32 v10, v1, 2, v7
    v_bfe_u32 v9, v10, 1, 2
    v_lshlrev_b32 v10, 7, v10
    v_lshl_add_u32 v10, v4, 3, v10
    v_lshl_add_u32 v10, v9, 5, v10
    v_add_u32 {v(V_AA)}, {s(S_CB)}, v10
    v_add_u32 {v(V_AA + 4)}, {s(S_XC)}, v10
    """)
    for wdw in range(2):
        for nt in range(1, 4):
            mid(f"v_xor_b32 {v(V_AA + 4 * wdw + nt)}, {32 * nt}, {v(V_AA + 4 * wdw)}")
    dm = kv_group(6)
    cv = conv_q(1, True) + conv_q(2, True) + conv_q(3, True)
    pos = 0
    for x in dm:
        mid(x)
        n = 22 if x.startswith("buffer") else 2
        mid.extend(cv[pos:pos + n])
        pos += n
    mid.extend(cv[pos:])
    mid(f"s_cmp_eq_u32 {s(S_WAVE)}, 3")
    mid(f"s_cselect_b32 {s(S_T1)}, {f32(1e4)}, 0")

    def max_chain(qt):
        S = V_S + 8 * qt
        m = V_T + 2 * qt
        out = [f"v_max3_f32 {v(m)}, {v(S)}, {v(S + 1)}, {v(S + 2)}",
               f"v_max3_f32 {v(m + 1)}, {v(S + 3)}, {v(S + 4)}, {v(S + 5)}",
               f"v_max3_f32 {v(m)}, {v(m)}, {v(S + 6)}, {v(S + 7)}",
               f"v_max_f32 {v(m)}, {v(m)}, {v(m + 1)}",
               f"v_mov_b32 {v(m + 1)}, {v(m)}", "s_nop 1",
               f"v_permlane16_swap_b32 {v(m)}, {v(m + 1)}",
               f"v_max_f32 {v(m)}, {v(m)}, {v(m + 1)}",
               f"v_mov_b32 {v(m + 1)}, {v(m)}", "s_nop 1",
               f"v_permlane32_swap_b32 {v(m)}, {v(m + 1)}",
               f"v_max_f32 {v(m)}, {v(m)}, {v(m + 1)}"]
        if qt == 3:
            out.append(f"v_add_f32 {v(m)}, {s(S_T1)}, {v(m)}")
        out += [f"v_sub_f32 {v(V_NM + 4 * qt + i)}, 0, {v(m)}" for i in range(4)]
        out += [f"v_sub_f32 {v(S + i)}, {v(S + i)}, {v(m)}" for i in range(8)]
        for i in range(8):
            e = 8 * qt + i
            if EG[e] < NG:
                out.append(sm_exp(e))
        out.append("s_nop 0")
        for i in range(1, 8, 2):
            e = 8 * qt + i
            if CG[e] < NG:
                out.append(sm_cvt(e, 0))
        return out

    gaps = [[] for _ in range(32)]
    for i in range(8):
        gaps[i] += [f"v_mov_b32 {v(V_LM + 2 * i)}, 0", f"v_mov_b32 {v(V_LM + 2 * i + 1)}, 0"]
    work = max_chain(0) + max_chain(1) + max_chain(2) + max_chain(3)
    n0 = len(max_chain(0))
    done = 0
    for g in range(12, 32):
        avail = n0 * min(4, (g - 4) // 8)
        take = min(2, avail - done)
        gaps[g] += work[done:done + take]
        done += take
    mid.extend(interleave(qk_all(True, A_K0), gaps))
    rest = work[done:]
    pos = 0
    for x in kv_group(7):
        mid(x)
        n = 20 if x.startswith("buffer") else 2
        mid.extend(rest[pos:pos + n])
        pos += n
    mid.extend(rest[pos:])
    mid(f"s_mov_b32 {s(S_CNT)}, 7")
    if OPT["stamp"] == 4:
        mid(f"s_mov_b32 {s(S_SI)}, 1")
    stamp(mid, 3)
    mid("s_branch L1_it1")

    it0 = Block()
    it0.extend(subtile(0))
    body = Block()
    for t in range(1, 8):
        body.extend(subtile(t))
    if OPT["stamp"] in (2, 3):
        body(f"s_sub_u32 {s(S_T0)}, 22, {s(S_CNT)}")
        body(f"s_mov_b32 m0, {s(S_T0)}")
        stamp(body, "m0")
        body(f"s_cmp_gt_u32 {s(S_CNT)}, 1")
    body("s_cbranch_scc1 L1_loop")
    wo01 = Block()
    wo01(f"s_cmp_eq_u32 {s(S_CNT)}, 0")
    wo01("s_cbranch_scc1 L1_last")
    for i in range(2):
        wo01.extend([x + " ; rare" for x in [cell_m0(CELL0[i]), wo_off(i)] + [wo_dma(n) for n in range(4)]])
    if OPT["cwt"]:
        wo01(f"buffer_load_dword {v(V_DUM)}, {v(V_WT)}, {s(SRD_WO, 4)}, {s(S_T2)} offen ; rare")
    if OPT["lct"] == 2:
        wo01(CTOUCH + " ; rare")
    wo01("s_branch L1_loop ; rare")
    wo01("L1_last:")

    post = Block()
    vm = VM()
    for g in range(56, 63):
        vm.add(("kv", g), 4)
    for t in range(8):
        post.extend(subtile(t, vm, True))
    stamp(post, 23)
    for e in range(32):
        if EG[e] >= NG:
            post(sm_exp(e))
    post(f"s_mov_b32 {s(S_T2)}, {f32(2.0 ** 40)}")
    for e, g in CG.items():
        if g >= NG:
            post(sm_cvt(e, 1))
    post("s_nop 1")
    for qt in range(4):
        post(ones_mf(qt, 1))
    post("s_waitcnt lgkmcnt(0)")
    epi = Block()
    epi("L1_epi:")
    tail1, fast, tail2 = oproj_tail()
    epi.extend(tail1)
    n_slow = len(epi.instrs())
    epi.extend(fast)
    epi.extend(tail2)
    epi("L1_fin:")
    if OPT["stamp"]:
        epi("s_waitcnt vmcnt(0)")
        stamp(epi, 25)
        stamp_store(epi, "L1_end")
    epi("L1_end:")
    epi("s_endpgm")

    fb = Block()
    fb("L1_fallback:")
    fb(f"""
    s_waitcnt vmcnt(0) lgkmcnt(0)
    s_mov_b32 {s(S_T2)}, 0x7f800000
    s_sub_u32 {s(S_T0)}, {s(S_CB)}, {LDS_V - 16384}
    v_xor_b32 v8, v2, v1
    v_lshlrev_b32 v8, 4, v8
    v_lshl_add_u32 {v(V_KD)}, v1, 8, v8
    v_xor_b32 {v(V_KD + 1)}, 64, {v(V_KD)}
    v_xor_b32 {v(V_KD + 2)}, 0x80, {v(V_KD)}
    v_xor_b32 {v(V_KD + 3)}, 0xc0, {v(V_KD)}
    v_lshlrev_b32 v11, 4, v1
    s_nop 7
    """)
    for i in range(4):
        fb(f"v_add_u32 {v(V_KA + i)}, {s(S_CB)}, {v(V_KA + i)}")
    for i in range(8):
        fb(f"v_add_u32 {v(V_VA + i)}, {s(S_T0)}, {v(V_VA + i)}")
    for i in range(128):
        fb(f"v_accvgpr_write_b32 {a(A_O + i)}, 0")
    for i in range(16):
        fb(f"v_mov_b32 {v(V_LM + i)}, 0")
    for qt in range(4):
        fb(f"v_mov_b32 {v(V_M + qt)}, {f32(-3e38)}")
    fb(f"s_mov_b32 {s(S_KV)}, 0")
    fbl = Block()
    for q in range(2):
        fbl(f"s_add_u32 m0, {s(S_CB)}, {8192 * q}")
        fbl(f"s_add_u32 {s(S_T0)}, {s(S_KV)}, {4096 * q}")
        for n in range(4):
            fbl(k_dma(n, s(S_T0)))
        fbl(f"s_add_u32 m0, {s(S_CB)}, {16384 + 8192 * q}")
        fbl("s_nop 0")
        for n in range(4):
            fbl(v_dma(n, s(S_T0)))
    fbl("s_waitcnt vmcnt(0)")
    for kt in range(2):
        for st in range(4):
            fbl(f"ds_read_b128 {a(A_K + 16 * kt + 4 * st, 4)}, {v(V_KA + st)} offset:{kt * 8192}")
    for dt in range(8):
        for kt in range(2):
            fbl(f"ds_read_b64_tr_b16 {a(A_V + 4 * dt + 2 * kt, 2)}, {v(V_VA + dt)} offset:{kt * 8192}")
        if dt % 2:
            fbl("s_waitcnt lgkmcnt(0)")
    fbl.extend(qk_all(True))
    fbl("s_nop 7")
    for qt in range(4):
        S = V_S + 8 * qt
        m, m2, al, alt = V_T, V_T + 1, V_T + 2, V_T + 4
        M = V_M + qt
        fbl(f"v_max3_f32 {v(m)}, {v(S)}, {v(S + 1)}, {v(M)}")
        for i in range(2, 8, 2):
            fbl(f"v_max3_f32 {v(m)}, {v(m)}, {v(S + i)}, {v(S + i + 1)}")
        for swap in ("v_permlane16_swap_b32", "v_permlane32_swap_b32"):
            fbl(f"v_mov_b32 {v(m2)}, {v(m)}")
            fbl("s_nop 1")
            fbl(f"{swap} {v(m)}, {v(m2)}")
            fbl(f"v_max_f32 {v(m)}, {v(m)}, {v(m2)}")
        fbl(f"v_sub_f32 {v(al)}, {v(M)}, {v(m)}")
        fbl(f"v_exp_f32 {v(al)}, {v(al)}")
        fbl(f"v_mov_b32 {v(M)}, {v(m)}")
        for r in range(4):
            fbl(f"ds_bpermute_b32 {v(alt + r)}, v11, {v(al)} offset:{4 * r}")
        for e in range(8):
            fbl(f"v_sub_f32 {v(S + e)}, {v(S + e)}, {v(m)}")
        for e in range(8):
            fbl(sm_exp(8 * qt + e))
        fbl("s_waitcnt lgkmcnt(0)")
        for e in range(1, 8, 2):
            fbl(sm_cvt(8 * qt + e, 0))
        for r in range(4):
            fbl(f"v_mul_f32 {v(V_LM + 4 * qt + r)}, {v(V_LM + 4 * qt + r)}, {v(alt + r)}")
        for i in range(32):
            r = A_O + 32 * qt + i
            fbl(f"v_accvgpr_read_b32 {v(m2)}, {a(r)}")
            fbl(f"v_mul_f32 {v(m2)}, {v(m2)}, {v(alt + i % 4)}")
            fbl(f"v_accvgpr_write_b32 {a(r)}, {v(m2)}")
        fbl("s_nop 1")
        for dt in range(8):
            fbl(pv(qt, dt, 0))
        fbl(ones_mf(qt, 0))
    fbl("s_nop 7")
    fbl(f"s_add_u32 {s(S_KV)}, {s(S_KV)}, 8192")
    fbl(f"s_cmp_lt_u32 {s(S_KV)}, 524288")
    fbl("s_cbranch_scc1 L1_fbloop")
    fbe = Block()
    for i in range(16):
        fbe(f"v_mov_b32 {v(V_P + 16 + i)}, 0")
    for i in range(32):
        fbe(f"v_accvgpr_write_b32 {a(A_K + i)}, 0")
    for i in range(NREG0, NREG0 + 9):
        fbe(cell_m0(CELL0[i]))
        fbe(wo_off(i))
        for n in range(4):
            fbe(wo_dma(n))
    fbe("s_branch L1_epi")

    ep = epi.instrs()
    nf = len(fast.instrs())
    ep_slow = ep[:n_slow] + ep[n_slow + nf:]
    br = next(i for i, x in enumerate(ep) if "L1_ready" in x) + 1
    ep_fast = ep[:br] + ep[n_slow:]
    loop = body.instrs() + it0.instrs() + body.instrs()
    check_trace(b.instrs() + jobs0.instrs() + b2.instrs() + qa.instrs() + qe.instrs() + mid.instrs() + loop + post.instrs() + ep_slow, "main")
    check_trace(b.instrs() + b2.instrs() + qb.instrs() + qe.instrs() + mid.instrs() + body.instrs(), "wave3")
    check_trace(post.instrs() + ep_fast, "fast")
    cut = next(i for i, x in enumerate(ep) if "L1_fallback" in x) + 1
    check_trace(post.instrs() + ep[:cut] + fb.instrs() + fbl.instrs() * 2 + fbe.instrs() + ep_slow, "fallback")

    out = Block()
    out.extend(b)
    out.extend(jobs0)
    out.extend(b2)
    out.extend(qa)
    out("s_branch L1_qend")
    out("L1_q3:")
    out.extend(qb)
    out("L1_qend:")
    out.extend(qe)
    out.extend(mid)
    out(".p2align 6")
    out("L1_loop:")
    out.extend(it0)
    out("L1_it1:")
    out.extend(body)
    out.extend(wo01)
    out.extend(post)
    out.extend(epi)
    out.extend(fb)
    out("L1_fbloop:")
    out.extend(fbl)
    out.extend(fbe)
    return out


def oproj_tail():
    V_OA = 16
    V_OUT = 21
    V_PL = 22
    V_R = V_NM
    V_TMP = V_S
    NPRE = OPT["npre"]
    N0 = NREG0 + 9
    t1 = Block()
    vm = VM()
    for i in range(NREG0, N0):
        vm.add(("wo", i), 4)
    cellof = {i: CELL0[i] for i in range(N0)}
    freecells = []
    pool = [("a", 160 + 4 * i) for i in range(8)]
    pool += [("v", 48 + 4 * i) for i in range(16)]
    pool += [("a", 128 + 4 * i) for i in range(8)]
    pool += [("v", 144 + 4 * i) for i in range(8)]
    pool += [("v", 192 + 4 * i) for i in range(12)]
    late = [("a", 80 + 4 * i) for i in range(12)] + [("v", 112 + 4 * i) for i in range(8)] + [("v", 176 + 4 * i) for i in range(4)]
    areg = dict(AREG0)

    def a_reads(i):
        areg[i] = [pool.pop(0) for _ in range(4)]
        return wo_reads(areg[i], cellof[i])

    nd = [N0]

    def wo_grp():
        i = nd[0]
        nd[0] += 1
        cellof[i] = freecells.pop(0)
        vm.add(("wo", i), 4)
        return [cell_m0(cellof[i]), wo_off(i)] + [wo_dma(n) for n in range(4)]

    fin = [pv(qt, dt, 1, A_K) for qt in range(4) for dt in range(8)]
    m = V_T
    guard = [f"v_max3_f32 {v(m)}, {v(V_LM)}, {v(V_LM + 1)}, {v(V_LM + 2)}"]
    guard += [f"v_max3_f32 {v(m)}, {v(m)}, {v(V_LM + i)}, {v(V_LM + i + 1)}" for i in range(3, 15, 2)]
    guard += [f"v_max_f32 {v(m)}, {v(m)}, {v(V_LM + 15)}"]
    gaps = [[], [], []] + [guard[2 * i:2 * i + 2] for i in range(4)]
    gaps[0] = ["s_nop 1"]
    t1.extend(interleave(fin[:7], gaps))
    t1(f"v_cmp_gt_f32 vcc, {v(m)}, {s(S_T2)}")
    t1(fin[7])
    t1(f"s_lshl_b32 {s(S_T0)}, {s(S_WAVE)}, 19")
    t1("s_cbranch_vccnz L1_fallback")
    t1(f"s_lshl_b32 {s(S_T1)}, {s(S_H)}, 12")
    t1(f"s_add_u32 {s(S_T0)}, {s(S_T0)}, {s(S_T1)}")
    rcp = [f"v_rcp_f32 {v(V_R + i)}, {v(V_LM + i)}" for i in range(16)]

    def group(qt, r, packed):
        tb = V_TMP + 12 * ((4 * qt + r) % 2)
        out = [f"v_accvgpr_read_b32 {v(tb + i)}, {a(A_O + 32 * qt + 4 * i + r)}" for i in range(8)]
        if packed:
            sel = "op_sel_hi:[1,0]" if r % 2 == 0 else "op_sel:[0,1] op_sel_hi:[1,1]"
            out += [f"v_pk_mul_f32 {v(tb + 2 * i, 2)}, {v(tb + 2 * i, 2)}, {v(V_R + 4 * qt + (r & 2), 2)} {sel}" for i in range(4)]
        else:
            out += [f"v_mul_f32 {v(tb + i)}, {v(tb + i)}, {v(V_R + 4 * qt + r)}" for i in range(8)]
        out += [f"v_cvt_pk_bf16_f32 {v(tb + 8 + i)}, {v(tb + 2 * i)}, {v(tb + 2 * i + 1)}" for i in range(4)]
        out.append(f"buffer_store_dwordx4 {v(tb + 8, 4)}, {v(V_OS)}, {s(SRD_O, 4)}, {s(S_T0)} offen offset:{r * 256} sc1")
        return out

    gaps = [[] for _ in range(24)]
    for i in range(4):
        gaps[i].append(rcp[i])
    seq = group(0, 0, False) + group(0, 1, False)
    vm.add("st", 2)
    gi = 4
    while seq and gi < 24:
        gaps[gi].append(seq.pop(0))
        if seq and not seq[0].startswith("buffer") and not gaps[gi][0].startswith("buffer"):
            gaps[gi].append(seq.pop(0))
        gi += 1
    t1.extend(interleave(fin[8:], gaps))
    t1.extend(seq)
    t1.extend(rcp[4:])
    t1(f"""
    ; O load voffset: ((l%16)/4)*256 + G*64 + (l%4)*16 + mt*131072
    v_lshlrev_b32 v8, 8, v7
    v_lshl_add_u32 v8, v1, 6, v8
    v_lshl_add_u32 {v(V_OA)}, v4, 4, v8
    v_add_u32 {v(V_OA + 1)}, 0x20000, {v(V_OA)}
    v_add_u32 {v(V_OA + 2)}, 0x40000, {v(V_OA)}
    v_add_u32 {v(V_OA + 3)}, 0x60000, {v(V_OA)}
    v_add_u32 {v(V_OA + 4)}, 0x80000, {v(V_OA)}
    ; out voffset: (4*(l%4) + (l%16)/4)*1280 + G*8
    v_lshl_add_u32 v8, v4, 2, v7
    v_mul_u32_u24 v8, 1280, v8
    v_lshl_add_u32 {v(V_OUT)}, v1, 3, v8
    s_mov_b32 {s(S_CNT)}, 0x40000
    L1_chk:
    v_readfirstlane_b32 {s(S_T1)}, {v(V_IN)}
    s_sub_u32 {s(S_CNT)}, {s(S_CNT)}, 1
    s_cbranch_scc1 L1_clr
    s_cmp_ge_u32 {s(S_T1)}, 32
    s_cbranch_scc1 L1_clr
    buffer_load_dword {v(V_IN)}, {v(V_Z)}, {s(SRD_DBG, 4)}, 0 offen offset:128 sc1 ; rare
    s_waitcnt vmcnt(0) ; rare
    s_branch L1_chk ; rare
    L1_clr:
    s_mov_b32 {s(S_CNT)}, 0x40000
    """)
    stamp(t1, 4)
    POLL = f"buffer_load_dword {v(V_PL)}, {v(V_Z)}, {s(SRD_FL, 4)}, {s(S_POLL)} offen sc1"
    na = NREG0
    for idx in range(2, 16):
        qt, r = idx // 4, idx % 4
        if r == 0:
            t1(f"s_add_u32 {s(S_T0)}, {s(S_T0)}, 131072")
        t1.extend(group(qt, r, True))
        vm.add("st")
        if idx == OPT["pollat"]:
            t1(POLL)
            vm.add("poll")
        if na > NREG0 and nd[0] == na + 8:
            t1("s_waitcnt lgkmcnt(0)")
            freecells.append(cellof[na - 1])
            t1.extend(wo_grp())
        if na < NPRE:
            t1(f"s_waitcnt vmcnt({vm.cnt(('wo', na))})")
            t1.extend(a_reads(na))
            na += 1
    assert na == NPRE and nd[0] == NPRE + 9, (na, nd)
    stamp(t1, 5)
    pool.extend(late)
    freecells.append(CELL_U[7])

    breg = {}
    nb = [0]
    free = pool

    def b_loads():
        ks = nb[0]
        nb[0] += 1
        breg[ks] = [free.pop(0) for _ in range(5)]
        vm.add(("o", ks), 5)
        out = [f"s_add_u32 {s(S_OK)}, {s(S_OB)}, {(ks // 4) * 4096}"] if ks % 4 == 0 else []
        return out + [f"buffer_load_dwordx4 {quad(breg[ks][mt])}, {v(V_OA + mt)}, {s(SRD_OO, 4)}, {s(S_OK)} offen offset:{(ks % 4) * 1024} sc1"
                      for mt in range(5)]

    def signal(lbl):
        return f"""
        s_waitcnt vmcnt(0)
        s_barrier
        s_cmp_lg_u32 {s(S_WAVE)}, 0
        s_cbranch_scc1 {lbl}
        s_lshr_b32 {s(S_T0)}, {s(S_H)}, 3
        s_lshl_b32 {s(S_T1)}, {s(S_B)}, 2
        s_add_u32 {s(S_T0)}, {s(S_T0)}, {s(S_T1)}
        s_lshl_b32 {s(S_T0)}, {s(S_T0)}, 8
        v_mov_b32 v8, 1
        s_mov_b64 exec, 1
        buffer_atomic_add v8, {v(V_Z)}, {s(SRD_FL, 4)}, {s(S_T0)} offen sc1
        s_mov_b64 exec, -1
        {lbl}:
        """

    t1(f"s_waitcnt vmcnt({vm.cnt('poll')})")
    t1(f"""
    v_readfirstlane_b32 {s(S_T1)}, {v(V_PL)}
    s_cmp_ge_u32 {s(S_IDX)}, 30
    s_cselect_b32 {s(S_T1)}, 0, {s(S_T1)}
    s_cmp_ge_u32 {s(S_T1)}, 8
    s_cbranch_scc1 L1_ready
    """)
    first_b = []
    while len(free) >= 5 and nb[0] < OPT["bdepth"]:
        first_b += b_loads()
    t1("; publish (every wave's O stores have been drained, then one atomic per workgroup), poll, load")
    t1(signal("L1_nosig"))
    stamp(t1, 6)
    t1(f"""
    s_cmp_ge_u32 {s(S_IDX)}, 30
    s_cbranch_scc1 L1_fin
    L1_poll:
    {POLL}
    s_sub_u32 {s(S_CNT)}, {s(S_CNT)}, 1
    s_cbranch_scc1 L1_go
    s_waitcnt vmcnt(0)
    v_readfirstlane_b32 {s(S_T1)}, {v(V_PL)}
    s_nop 0
    s_cmp_lt_u32 {s(S_T1)}, 8
    s_cbranch_scc1 L1_poll
    L1_go:
    """)
    stamp(t1, 7)
    t1.extend(first_b)
    t1("s_branch L1_mm")
    t1("L1_ready:")
    fast = Block()
    fast.extend(first_b)
    fast(signal("L1_nosig2"))
    stamp(fast, 6)
    stamp(fast, 7)
    fast("L1_mm:")
    t2 = Block()
    LM_ = OPT["lastm"]
    nd0 = nd[0]
    for ks in range(32 - LM_):
        t2(f"s_waitcnt vmcnt({vm.cnt(('o', ks))})")
        if OPT["stamp"] == 3 and ks % 4 == 0:
            stamp(t2, 52 + ks // 4)
        mf = []
        for nt in range(4):
            for mm in range(5):
                mt = mm if nt % 2 == 0 else 4 - mm
                d = a(4 * (5 * nt + mt), 4)
                mf.append(f"{MF} {d}, {quad(areg[ks][nt])}, {quad(breg[ks][mt])}, {'0' if ks == 0 else d}")
        vmem = []
        dsr = []
        done = max(i for i, x in enumerate(vm.ops) if x == ("o", ks)) + 1
        can_dma = nd[0] < 32 and freecells and (nd[0] - nd0) * 25 <= ks * (32 - nd0)
        if na < nd[0] and len(free) >= 9 and (na - ks <= 3 + (LM_ if na > 27 else 0) or ("wo", na) not in vm.ops[done:]):
            if ("wo", na) in vm.ops[done:]:
                t2(f"s_waitcnt vmcnt({vm.cnt(('wo', na))})")
            dsr = a_reads(na)
            na += 1
        assert na > ks + 1 or na == 32, (ks, na)
        if nb[0] < 32:
            vmem += b_loads()
        if can_dma:
            vmem += wo_grp()
        gaps = [[] for _ in range(20)]
        nv = sum(x.startswith("buffer") for x in vmem)
        step = max(1, 20 // max(nv, 1))
        gi = 0
        busy = set()
        for x in vmem:
            gaps[min(gi, 19)].append(x)
            if x.startswith("buffer"):
                busy.add(gi)
                gi += min(step, 4)
        gi = 0
        for x in dsr:
            while gi in busy and gi < 19:
                gi += 1
            gaps[min(gi, 19)].append(x)
            gi += 1
        t2.extend(interleave(mf, gaps))
        if dsr:
            t2("s_waitcnt lgkmcnt(0)")
            freecells.append(cellof[na - 1])
        free.extend(areg[ks] + breg[ks])
    assert na == 32 and nb[0] == 32 and nd[0] == 32
    VB = 48
    t2(f"v_add_u32 v8, {s(S_CB)}, {v(V_OD)}")
    t2("s_waitcnt vmcnt(0)")
    tiles = [(nt, mt) for mt in range(5) for nt in range(4)]
    mf = []
    for nt, mt in tiles:
        d = a(4 * (5 * nt + mt), 4)
        for ks in range(32 - LM_, 32):
            mf.append(f"{MF} {d}, {quad(areg[ks][nt])}, {quad(breg[ks][mt])}, {d}")
    wr = [f"ds_write_b128 v8, {a(4 * (5 * nt + mt), 4)} offset:{mt * 8192 + nt * 1024}" for nt, mt in tiles]
    gaps = [[] for _ in mf]
    gaps[0] = [f"s_lshl_b32 {s(S_T0)}, {s(S_WAVE)}, 10", f"v_add_u32 v10, {s(S_T0)}, {v(V_OD)}"]
    gaps[1] = [f"s_lshl_b32 {s(S_T0)}, {s(S_CT)}, 7", "v_add_u32 v11, 0x10000, v10"]
    gaps[2] = [f"s_lshl_b32 {s(S_T1)}, {s(S_WAVE)}, 5"]
    gaps[3] = [f"s_add_u32 {s(S_T0)}, {s(S_T0)}, {s(S_T1)}"]
    rest = []
    for i, w_ in enumerate(wr):
        g = LM_ * (i + 1) - 1 + 7
        if g < len(mf):
            gaps[g].append(w_)
        else:
            rest.append(w_)
    t2.extend(interleave(mf, gaps))
    stamp(t2, 24)
    t2("s_nop 3")
    t2.extend(rest[:-1])
    t2("s_nop 1")
    t2(rest[-1])
    t2("s_waitcnt lgkmcnt(0)")
    t2("s_barrier")

    def red_reads(mt):
        return [f"ds_read_b128 {v(VB + 16 * mt + 4 * w, 4)}, v{10 + w // 2} offset:{(w % 2) * 4096 + mt * 8192}" for w in range(4)]

    for mt in range(3):
        t2.extend(red_reads(mt))
    for mt in range(5):
        t2(f"s_waitcnt lgkmcnt({min(8, 4 * (4 - mt))})")
        if mt + 3 < 5:
            t2.extend(red_reads(mt + 3))
        r = VB + 16 * mt
        for i in range(0, 4, 2):
            t2(f"v_pk_add_f32 {v(r + i, 2)}, {v(r + i, 2)}, {v(r + 4 + i, 2)}")
            t2(f"v_pk_add_f32 {v(r + 8 + i, 2)}, {v(r + 8 + i, 2)}, {v(r + 12 + i, 2)}")
        for i in range(0, 4, 2):
            t2(f"v_pk_add_f32 {v(r + i, 2)}, {v(r + i, 2)}, {v(r + 8 + i, 2)}")
        t2(f"v_cvt_pk_bf16_f32 {v(r + 4)}, {v(r)}, {v(r + 1)}")
        t2(f"v_cvt_pk_bf16_f32 {v(r + 5)}, {v(r + 2)}, {v(r + 3)}")
        t2(f"buffer_store_dwordx2 {v(r + 4, 2)}, {v(V_OUT)}, {s(SRD_OUT, 4)}, {s(S_T0)} offen")
        t2(f"s_add_u32 {s(S_T0)}, {s(S_T0)}, {16 * 1280}")
    return t1, fast, t2


HEADER = """; Fused MHA block: q = x@wq, softmax(q k^T / sqrt(128)) v, out = o@wo   (gfx950, generated by gen/gen.py)
; Kernarg: 0 x, 8 k_cache, 16 v_cache, 24 wq, 32 wo, 40 out, 48 debug, 56 ws
; @launch grid=(256,1,1) block=(256,1,1) lds=163840
.amdgcn_target "amdgcn-amd-amdhsa--gfx950"
.text
"""


def kd(name, vg, acc):
    return f""".p2align 6
.amdhsa_kernel {name}
  .amdhsa_next_free_vgpr {vg}
  .amdhsa_next_free_sgpr 102
  .amdhsa_accum_offset {acc}
  .amdhsa_group_segment_fixed_size 0
  .amdhsa_kernarg_size 64
  .amdhsa_user_sgpr_count 2
  .amdhsa_user_sgpr_kernarg_segment_ptr 1
  .amdhsa_system_sgpr_workgroup_id_x 1
.end_amdhsa_kernel
"""


def main():
    k1 = kernel()
    txt = HEADER
    txt += f".globl {KNAME}\n.p2align 8\n.type {KNAME},@function\n" + k1.text()
    txt += '.section .rodata,"a"\n' + kd(KNAME, 512, 256)
    open(sys.argv[1], "w").write(txt)


main()
```

```python
import math
import struct
import sys
from asmlib import *

OPT = dict(stamp=0, nodma=0, diagpace=0, adk=0, npre=15, pollat=9, bdepth=5, lastm=3, qrot=1, kv3=1, kvrate=1, kvrot=0, lct=1, lwt=0, swt=0, cwt=0, wont=0, jnt=0, cnt_=0, perm=0, pvchain=0, kvmap=0, kvpair=1, ewt=1, ewh=3)
for arg in sys.argv[2:]:
    k, val = arg.split("=")
    assert k in OPT, k
    OPT[k] = int(val)


def f32(x):
    return "0x%08x" % struct.unpack("<I", struct.pack("<f", x))[0]


SCALE = math.log2(math.e) / math.sqrt(128.0)
MF = "v_mfma_f32_16x16x32_bf16"
KNAME = "standalone__mha_block_cached__near_ridge_kernel"

S_JLIM, S_JWRAP = 0, 1
S_WAVE = 3
SRD_CODE = 4
SRD_J, SRD_K, SRD_V, SRD_O = 8, 16, 20, 24
S_JM = 12
S_J0, S_J1, S_JDG, S_JIA, S_JIB = 28, 29, 30, 31, 32
S_WOO, S_CB, S_CT = 33, 34, 35
S_OTAB = 36
S_OB, S_WB = 44, 45
S_IDX, S_XC, S_B2 = 46, 47, 48
S_W2048 = 49
S_KV = 50
S_CNT = 51
S_T0, S_T1, S_T2 = 52, 53, 54
S_OK = 55
S_SCALE = 56
S_POLL, S_INIT = 58, 59
S_STAMP = 60
SRD_WO, SRD_OO, SRD_OUT, SRD_FL, SRD_DBG = 64, 68, 72, 76, 80
S_B, S_H, S_SI, S_ROT, S_SEL, S_W4096, S_W1024, S_KV2 = 92, 93, 94, 95, 96, 97, 98, 99

V_CT, V_IN, V_WT = 12, 14, 15
V_KA = 16
V_VA = 20
V_KD = 28
V_VD = 32
V_JD = 34
V_WA = 38
V_AA = 34
V_ONE = 44
V_Q = 48
V_S = 112
V_P = 144
V_NM = 176
V_LM = 192
V_M = 208
V_T = 212
V_QACC = 112
V_ST = 240
V_DUM = 242
V_OD = 243
V_WDD = 244
V_XA = 248
V_OS = 254
V_Z = 255

A_O = 0
A_K = 128
A_V = 160
A_K0 = 192
A_QA = 128
A_QB = 192

LDS_V = 65536
LDS_WQ = 131072
XBUF = [32768, LDS_V + 32768]


def unit(t):
    return (t % 8) * 8192


nstamp = [0]


def stamp(b, lane=None, force=False):
    if not OPT["stamp"]:
        return
    if OPT["stamp"] == 4 and not force and lane != 0:
        return
    b(f"s_memrealtime {s(S_STAMP, 2)}")
    b(f"s_memtime {s(S_STAMP + 2, 2)}")
    b("s_waitcnt lgkmcnt(0)")
    b(f"v_writelane_b32 {v(V_ST)}, {s(S_STAMP)}, {lane}")
    b(f"v_writelane_b32 {v(V_ST + 1)}, {s(S_STAMP + 2)}, {lane}")


def stamp_store(b, endlabel):
    b(f"""
    s_cmp_lg_u32 {s(S_WAVE)}, 0
    s_cbranch_scc1 {endlabel}
    s_add_u32 s8, s90, 0x4000000
    s_addc_u32 s9, s91, 0
    s_mov_b32 s10, 0x100000
    s_mov_b32 s11, 0x20000
    s_lshl_b32 s12, s2, 9
    v_lshlrev_b32 v1, 3, v0
    buffer_store_dwordx2 {v(V_ST, 2)}, v1, s[8:11], s12 offen
    """)


class VM:
    def __init__(self):
        self.ops = []

    def add(self, tag, n=1):
        self.ops += [tag] * n

    def cnt(self, *tags):
        last = max(i for i, x in enumerate(self.ops) if x in tags)
        return min(63, len(self.ops) - 1 - last)


def k_dma(n, soff, reg=None):
    return f"buffer_load_dwordx4 {v(V_KD + (n if reg is None else reg))}, {s(SRD_K, 4)}, {soff} offen offset:{1024 * n} nt lds"


def v_dma(n, soff):
    return f"buffer_load_dwordx4 {v(V_VD + n % 2)}, {s(SRD_V, 4)}, {soff} offen offset:{1024 * n} nt lds"


CTOUCH = f"buffer_load_dword v6, {v(V_CT)}, {s(SRD_CODE, 4)}, 0 offen{' nt' if OPT['cnt_'] else ''}"
KV_INC = f"s_add_u32 {s(S_KV)}, {s(S_KV)}, {2048 if OPT['kvmap'] else 8192}"


def kv_group(g):
    return [f"s_add_u32 m0, {s(S_W2048)}, {LDS_V + unit(g)}", v_dma(0, s(S_KV)), v_dma(1, s(S_KV)), KV_INC,
            f"s_and_b32 {s(S_KV)}, {s(S_KV)}, 0x7ffff",
            f"s_add_u32 m0, {s(S_W2048)}, {unit(g + 1)}", k_dma(0, s(S_KV)), k_dma(1, s(S_KV))]


def kv_pair(u, isv):
    if OPT["kvpair"] == 2:
        out = []
        for n in range(4):
            out.append(f"s_add_u32 {s(S_KV2)}, {s(S_KV)}, {4096 * n}")
            out.append(f"s_add_u32 m0, {s(S_W1024)}, {(LDS_V if isv else 0) + unit(u) + 4096 * n}")
            out.append(f"buffer_load_dwordx4 {v(252 + isv)}, {s(SRD_V if isv else SRD_K, 4)}, {s(S_KV2)} offen nt lds")
        if isv:
            out.append(f"s_add_u32 {s(S_KV)}, {s(S_KV)}, 16384")
        return out
    out = [f"s_add_u32 m0, {s(S_W4096)}, {(LDS_V if isv else 0) + unit(u)}"]
    out += [(v_dma if isv else k_dma)(n, s(S_KV)) for n in range(4)]
    if isv:
        out.append(f"s_add_u32 {s(S_KV)}, {s(S_KV)}, 16384")
    return out


def k_read(t, kt, st, base=A_K):
    return f"ds_read_b128 {a(base + 16 * kt + 4 * st, 4)}, {v(V_KA + st)} offset:{unit(t) + 4096 * kt}"


def v_read(t, dt, kt, base=A_V):
    return f"ds_read_b64_tr_b16 {a(base + 4 * dt + 2 * kt, 2)}, {v(V_VA + dt)} offset:{unit(t) + 4096 * kt}"


def qk_all(zero=False, base=A_K):
    out = []
    for i, (qt, kt) in enumerate([(0, 0), (0, 1), (1, 1), (1, 0), (2, 0), (2, 1), (3, 1), (3, 0)]):
        d = v(V_S + 8 * qt + 4 * kt, 4)
        for n, st in enumerate([0, 1, 2, 3] if i % 2 == 0 else [3, 2, 1, 0]):
            c = d if n else ("0" if zero else v(V_NM + 4 * qt, 4))
            out.append(f"{MF} {d}, {a(base + 16 * kt + 4 * st, 4)}, {v(V_Q + 16 * qt + 4 * st, 4)}, {c}")
    return out


def pv(qt, dt, par, base=A_V):
    d = a(A_O + 32 * qt + 4 * dt, 4)
    return f"{MF} {d}, {v(V_P + 16 * par + 4 * qt, 4)}, {a(base + 4 * dt, 4)}, {d}"


def ones_mf(qt, par):
    d = v(V_LM + 4 * qt, 4)
    return f"{MF} {d}, {v(V_P + 16 * par + 4 * qt, 4)}, {v(V_ONE, 4)}, {d}"


def sm_exp(e):
    r = v(V_S + e)
    return f"v_exp_f32 {r}, {r}"


def sm_cvt(e, par):
    if OPT["perm"]:
        return f"v_perm_b32 {v(V_P + 16 * par + e // 2)}, {v(V_S + e)}, {v(V_S + e - 1)}, {s(S_SEL)}"
    return f"v_cvt_pk_bf16_f32 {v(V_P + 16 * par + e // 2)}, {v(V_S + e - 1)}, {v(V_S + e)}"


NG = 68
EG = [10 + 2 * e for e in range(32)]
V_GAPS = list(range(1, 32, 2))
D_GAPS = [39, 45, 51, 57]
K_GAPS = [41, 43, 47, 49, 53, 55, 59, 61]
G_VWAIT, G_WAIT, G_BAR, G_M0A, G_INC, G_M0B, G_KWAIT = 30, 36, 37, 38, 46, 50, 67
G_CNT, G_CMP = 62, 64
CG = {}
for e in range(1, 32, 2):
    g = EG[e] + 1
    while g % NG in D_GAPS:
        g += 2
    CG[e] = g
XD_GAPS = [6, 12, 18, 24]


def wo_off(i):
    return f"s_add_u32 {s(S_WOO)}, {s(S_WB)}, {((i // 4) * 128 + (i % 4) * 4) * 1280}"


def wo_dma(n):
    return f"buffer_load_dwordx4 {v(V_WDD + n)}, {s(SRD_WO, 4)}, {s(S_WOO)} offen offset:{1024 * n}{' nt' if OPT['wont'] else ''} lds"


CELL_X = [(S_XC, 0), (S_XC, 4096)]
CELL_U = [(S_CB, 8192 * u) for u in range(8)]
NREG0 = 4
CELL0 = [CELL_X[0], CELL_X[1], CELL_X[0], CELL_U[0], CELL_X[1], CELL_U[1], CELL_U[2], CELL_U[3], CELL_U[4],
         CELL_X[0], CELL_U[5], CELL_U[0], CELL_U[6]]


def quad(q, off=0, n=4):
    kind, base = q
    return (a if kind == "a" else v)(base + off, n)


def wo_reads(quads, cell):
    wdw = 1 if cell[0] == S_XC else 0
    return [f"ds_read_b64_tr_b16 {quad(quads[nt], 2 * e, 2)}, {v(V_AA + 4 * wdw + nt)} offset:{cell[1] + 2048 * e}"
            for nt in range(4) for e in range(2)]


AREG0 = {i: [("a", 192 + 16 * i + 4 * nt) for nt in range(4)] for i in range(NREG0)}


def cell_m0(c):
    return f"s_add_u32 m0, {s(c[0])}, {c[1]}"


def subtile(t, vm=None, last=False):
    par = t % 2
    pvo = [(qt if dt % 2 == 0 else 3 - qt, dt) for dt in range(8) for qt in range(4)]
    mf = qk_all() + [pv(qt, dt, 1 - par) for qt, dt in pvo] + [ones_mf(qt, 1 - par) for qt in range(4)]
    if OPT["pvchain"]:
        ch = []
        i = 0
        for dp in range(4):
            for qq in range(4):
                qt = qq if dp % 2 == 0 else 3 - qq
                d = a(A_O + 32 * qt + 4 * (2 * dp + par), 4)
                pair = [(qt, 2 * dp), ((qt + 2) % 4, 2 * dp + 1)]
                if i % 2:
                    pair = pair[::-1]
                for pq, dv in pair:
                    ch.append(f"{MF} {d}, {v(V_P + 16 * (1 - par) + 4 * pq, 4)}, {a(A_V + 4 * dv, 4)}, {d}")
                i += 1
        mf = mf[:32] + ch + mf[64:]
    gaps = [[] for _ in range(NG)]
    for r, g in zip([v_read(t - 1, dt, kt) for dt in range(8) for kt in range(2)], V_GAPS):
        gaps[g].append(r)
    gaps[G_VWAIT].append("s_waitcnt lgkmcnt(2)")
    if last and t == 7:
        fg = [41, 43, 47, 49, 53, 55, 59, 61, 63, 65, 40, 44, 48, 52, 56, 60]
        for r, g in zip([v_read(t, dt, kt, A_K) for dt in range(8) for kt in range(2)], sorted(fg)):
            gaps[g].append(r)
    else:
        for r, g in zip([k_read(t + 1, kt, st) for kt in range(2) for st in range(4)], K_GAPS):
            gaps[g].append(r)
        gaps[G_KWAIT].append("s_waitcnt lgkmcnt(0)")

    def put_group(ops, g_pre, dg):
        i = 0
        npre = 0
        for x in ops:
            if x.startswith("buffer"):
                gaps[dg[i]].append(x)
                i += 1
                npre = 0
            else:
                gaps[dg[i] - g_pre[npre]].append(x)
                npre += 1

    def wo_group(i):
        vm.add(("wo", i), 4)
        return [wo_off(i), cell_m0(CELL0[i])] + [wo_dma(n) for n in range(4)]

    n = 20 if OPT["kvpair"] else 24
    if last:
        if t in (1, 2, 6, 7):
            put_group(wo_group({1: 2, 2: 4, 6: 9, 7: 11}[t]), [4, 2], XD_GAPS)
        if t == 0:
            gaps[8].append(f"buffer_load_dword {v(V_IN)}, {v(V_Z)}, {s(SRD_DBG, 4)}, 0 offen offset:128 sc1")
            vm.add("init")
        rd0 = {0: 0, 5: 2, 6: 3}.get(t)
        if rd0 is not None:
            fg = [40, 42, 44, 48, 52, 54, 63, 65] + [56, 58, 60, 62, 63, 64, 65, 66]
            rr = [x for i in ([0, 1] if rd0 == 0 else [rd0]) for x in wo_reads(AREG0[i], CELL0[i])]
            for r, g in zip(rr, sorted(fg[:len(rr)])):
                gaps[g].append(r)
        if OPT["kvpair"]:
            n = vm.cnt(("K", (t + 57) // 2), ("V", (t + 56) // 2), ("wo", rd0))
        else:
            n = vm.cnt(("kv", t + 56), ("wo", rd0))
    gaps[G_WAIT].append(f"s_waitcnt vmcnt({n}) lgkmcnt(0)")
    gaps[G_BAR].append("s_barrier")
    if last:
        if t == 0 and OPT["kvpair"]:
            put_group(kv_pair(62, 1)[:-1], [5, 1] if OPT["kvpair"] == 2 else [1], D_GAPS)
            vm.add(("V", 31), 4)
        elif t == 0:
            put_group(kv_group(63)[:3], [1], D_GAPS)
            vm.add(("kv", 63), 2)
        else:
            put_group(wo_group({1: 3, 2: 5, 3: 6, 4: 7, 5: 8, 6: 10, 7: 12}[t]), [5, 1], D_GAPS)
    else:
        ops = kv_group(t + 7)
        if OPT["kvpair"]:
            ops = []
            pos = [G_M0A] + D_GAPS + [58]
            if OPT["kvpair"] == 2:
                pos = [g for d in D_GAPS for g in (d - 5, d - 1, d)] + [58]
            for x, g in zip(kv_pair(t + 7, 0) if t % 2 else kv_pair(t + 6, 1), pos):
                gaps[g].append(x)
        for x, g in zip(ops, [G_M0A, D_GAPS[0], D_GAPS[1], G_INC, G_INC + 2, G_M0B, D_GAPS[2], D_GAPS[3]]):
            gaps[g].append(x)
        if t == 3 and OPT['lct'] == 1:
            gaps[65].append(CTOUCH)
        if (t == 6 and OPT['lwt']) or (t == 2 and OPT['lwt'] == 3):
            gaps[65].append(f"buffer_load_dword {v(V_DUM)}, {v(V_WT)}, {s(SRD_WO, 4)}, {s(S_T2)} offen")
            if OPT["lwt"] == 2:
                gaps[66].append(f"s_add_u32 {s(S_T2)}, {s(S_T2)}, {0x40000000 + 2560}")
                gaps[67].append(f"s_and_b32 {s(S_T2)}, {s(S_T2)}, 0x7fffffff")
            else:
                gaps[66].append(f"s_add_u32 {s(S_T2)}, {s(S_T2)}, {4096 if OPT['lwt'] == 1 else 2048}")
        if t == 7:
            gaps[G_CNT].append(f"s_sub_u32 {s(S_CNT)}, {s(S_CNT)}, 1")
            gaps[G_CMP].append(f"s_cmp_gt_u32 {s(S_CNT)}, 1")
    for e in range(32):
        gaps[EG[e] % NG].append(sm_exp(e))
    for e, g in CG.items():
        gaps[g % NG].append(sm_cvt(e, par if g < NG else 1 - par))
    cand = [g for g in range(NG) if len(gaps[g]) == 2 and gaps[g][0].startswith("ds_") and gaps[g][1].startswith(("v_cvt", "v_perm"))]
    k = min(OPT["adk"], len(cand))
    for i in range(k):
        gaps[cand[(i * len(cand)) // k]].reverse()
    for i in range(OPT["diagpace"]):
        gaps[(2 * i) % NG].append("s_nop 1")
    if OPT["nodma"]:
        gaps = [[x for x in g if not x.startswith("buffer")] for g in gaps]
    res = interleave(mf, gaps)
    if OPT["stamp"] == 4:
        sb = Block()
        sb(f"s_mov_b32 m0, {s(S_SI)}")
        stamp(sb, "m0", True)
        sb(f"s_add_u32 {s(S_SI)}, {s(S_SI)}, 1")
        if not last and t == 7:
            sb(f"s_cmp_gt_u32 {s(S_CNT)}, 1")
        res += sb.lines
    return res


def flat(lst):
    out = []
    for i, x in enumerate(lst):
        out.append(x)
        if " m0," in x and i + 1 < len(lst) and lst[i + 1].startswith("buffer"):
            out.append("s_nop 0")
    return out


def conv_q(qt, packed):
    out = []
    for st in range(4):
        acc = V_QACC + 4 * (8 * qt + 2 * st)
        if packed:
            out += [f"v_pk_mul_f32 {v(acc + 2 * i, 2)}, {v(acc + 2 * i, 2)}, {s(S_SCALE, 2)}" for i in range(4)]
        else:
            out += [f"v_mul_f32 {v(acc + i)}, {s(S_SCALE)}, {v(acc + i)}" for i in range(8)]
        out += [f"v_cvt_pk_bf16_f32 {v(V_Q + 16 * qt + 4 * st + i)}, {v(acc + 2 * i)}, {v(acc + 2 * i + 1)}" for i in range(4)]
    return out


def spread(gaps, dm, start, step):
    gi = start
    si = 0
    busy = set()
    for d in dm:
        if d.startswith("buffer"):
            gaps[gi].append(d)
            busy.add(gi)
            si = gi + 1
            gi += step
        else:
            g = min(si, gi - 1, len(gaps) - 1)
            gaps[g].append(d)
            si = g + 1
    return busy


def job(i):
    ld = [f"buffer_load_dwordx4 {v(V_JD + n)}, {s(SRD_J, 4)}, {{}} offen offset:{1024 * n}{' nt' if OPT['jnt'] else ''} lds" for n in range(4)]
    out = [f"s_mov_b32 m0, {s(S_JM + i % 4)}", f"s_add_u32 {s(S_J1)}, {s(S_J0)}, {s(S_JDG)}"]
    out += [x.format(s(S_J0)) for x in ld]
    out += [f"s_add_u32 m0, {s(S_JM + i % 4)}, 4096", f"s_add_u32 {s(S_J0)}, {s(S_J0)}, {s(S_JIA if i % 2 == 0 else S_JIB)}"]
    out += [ld[0].format(s(S_J1))]
    if i % 2 == 1:
        out += [f"s_cmp_ge_u32 {s(S_J0)}, {s(S_JLIM)}", f"s_cselect_b32 {s(S_T0)}, {s(S_JWRAP)}, 0",
                f"s_sub_u32 {s(S_J0)}, {s(S_J0)}, {s(S_T0)}"]
    out += [x.format(s(S_J1)) for x in ld[1:]]
    return out


def kv_half(i):
    u, isv, hf = i // 4, (i % 4) // 2, i % 2
    out = [f"s_mov_b32 m0, {(LDS_V if isv else 0) + unit(u) + 4096 * hf}", f"s_add_u32 {s(S_J0)}, {s(S_ROT)}, {u * 8192 + 4096 * hf}",
           f"s_and_b32 {s(S_J0)}, {s(S_J0)}, 0x7ffff"]
    if OPT["kvmap"]:
        out = out[:1]
    for n in range(4):
        if OPT["kvmap"] and n % 2 == 0:
            out.append(f"s_mov_b32 {s(S_J0)}, {(2 * hf + n // 2) * 131072 + u * 2048 - 1024 * n}")
        out.append(v_dma(n, s(S_J0)) if isv else k_dma(n, s(S_J0), n if OPT['kvpair'] else (n + 2) % 4))
    return out


def q_areads(j):
    base = A_QA + 32 * (j % 2)
    return [f"ds_read_b64_tr_b16 {a(base + 4 * (2 * st + e) + 2 * jj, 2)}, {v(V_WA + st)} offset:{(j % 4) * 8192 + 1024 * jj + 8 * e}"
            for st in range(4) for e in range(2) for jj in range(2)]


def q_breads(stg):
    base = A_QB + 32 * (stg % 2)
    return [f"ds_read_b128 {a(base + 16 * ks + 4 * qt, 4)}, {v(V_XA + 2 * (stg % 2) + ks)} offset:{2048 * qt}"
            for ks in range(2) for qt in range(4)]


def q_mfmas(j):
    ab = A_QA + 32 * (j % 2)
    bb = A_QB + 32 * ((j // 2) % 2) + 16 * (j % 2)
    out = []
    for qt in range(4):
        for dd in range(8):
            dtile = dd if qt % 2 == 0 else 7 - dd
            d = v(V_QACC + 4 * (8 * qt + dtile), 4)
            out.append(f"{MF} {d}, {a(ab + 4 * dtile, 4)}, {a(bb + 4 * qt, 4)}, {'0' if j == 0 else d}")
    return out


def q_step(b, j, dm, wait, zero):
    if wait is not None:
        b(f"s_waitcnt vmcnt({wait})")
    b("s_barrier")
    if j == 1:
        stamp(b, 1)
    if OPT["stamp"] == 3:
        stamp(b, 32 + j)
    rd = q_areads(j)
    if j % 2 == 0:
        br = q_breads(j // 2)
        rd = br[:4] + rd + br[4:]
    if j == 0:
        b.extend(rd)
        b.extend(flat(dm))
    else:
        gaps = [[] for _ in range(32)]
        nd = sum(x.startswith("buffer") for x in dm)
        busy = spread(gaps, dm, 2, 4 if nd > 6 else 5)
        fr = [g for g in range(30) if g not in busy]
        extra = len(rd) - len(fr)
        gi = 0
        for r in rd:
            lone = not gaps[fr[gi]]
            gaps[fr[gi]].append(r)
            if extra > 0 and sum(x.startswith("ds_") for x in gaps[fr[gi]]) == 1:
                extra -= 1
            else:
                if lone and zero:
                    gaps[fr[gi]].append(zero.pop(0))
                gi += 1
        b.extend(interleave(q_mfmas(j - 1), gaps))
    b("s_waitcnt lgkmcnt(0)")


WTOUCH = [f"buffer_load_dword v8, {v(V_WT)}, {s(SRD_WO, 4)}, {s(S_T2)} offen",
          f"s_add_u32 {s(S_T2)}, {s(S_T2)}, 8192",
          f"buffer_load_dword v9, {v(V_WT)}, {s(SRD_WO, 4)}, {s(S_T2)} offen",
          f"s_add_u32 {s(S_T2)}, {s(S_T2)}, 4096",
          f"buffer_load_dword v10, {v(V_WT)}, {s(SRD_WO, 4)}, {s(S_T2)} offen"]
JSPLIT = 18


def qproj_role(role3):
    b = Block()
    if role3 and OPT["swt"] == 1:
        b.extend(WTOUCH)
    zero = [f"v_accvgpr_write_b32 {a(A_O + i)}, 0" for i in range(128)]
    for j in range(JSPLIT):
        if role3:
            i0 = (j - OPT["kv3"]) * OPT["kvrate"]
            dm = [x for i in range(i0, i0 + OPT["kvrate"]) if 0 <= i < 16 for x in kv_half(i)]
            if OPT["swt"] >= 2 and j == OPT["swt"] - 2:
                dm = [x for x in WTOUCH if not x.startswith(";")] + dm
            wait = 48 if i0 >= 12 else None
        else:
            dm = job(j + 3) if j + 3 < 20 else []
            wait = 8 if j % 2 == 0 else None
        q_step(b, j, dm, wait, zero)
    assert not zero
    return b


def qproj_end():
    b = Block()
    k4 = [f"s_add_u32 m0, {s(S_W2048)}, {unit(4)}", f"s_add_u32 {s(S_KV)}, {s(S_ROT)}, {4 * 8192}",
          f"s_and_b32 {s(S_KV)}, {s(S_KV)}, 0x7ffff", f"s_add_u32 {s(S_KV)}, {s(S_KV)}, {s(S_W2048)}",
          k_dma(0, s(S_KV)), k_dma(1, s(S_KV))]
    if OPT["kvmap"]:
        k4 = [k4[0], f"s_lshl_b32 {s(S_KV)}, {s(S_WAVE)}, 17", f"s_add_u32 {s(S_KV)}, {s(S_KV)}, {4 * 2048}"] + k4[-2:]
    if OPT["kvpair"]:
        k4 = [f"s_add_u32 {s(S_KV)}, {s(S_W1024 if OPT['kvpair'] == 2 else S_W4096)}, {4 * 8192}"] + kv_pair(4, 0)
    q_step(b, 18, k4, 0, [])
    q_step(b, 19, kv_pair(4, 1) if OPT["kvpair"] else kv_group(4), None, [])
    gaps = [[] for _ in range(32)]
    kr = [k_read(0, kt, st, A_K0) for kt in range(2) for st in range(4)] + [k_read(1, kt, st) for kt in range(2) for st in range(4)]
    busy = spread(gaps, kv_pair(6, 0) if OPT['kvpair'] else kv_group(5), 2, 3)
    gi = 0
    for r in kr[:9]:
        while gi in busy:
            gi += 1
        gaps[gi].append(r)
        gi += 1
    cv = conv_q(0, False)
    kr = kr[9:]
    for g in range(13, 32):
        if kr:
            gaps[g] += [kr.pop(0), cv.pop(0)]
        else:
            gaps[g] += [cv.pop(0), cv.pop(0)]
    b.extend(interleave(q_mfmas(19), gaps))
    b.extend(cv)
    return b


def kernel():
    b = Block()
    b(KNAME + ":")
    b(f"""
    s_load_dwordx4 s[36:39], s[0:1], 0
    s_load_dwordx4 s[40:43], s[0:1], 16
    s_load_dwordx4 s[84:87], s[0:1], 32
    s_load_dwordx4 s[88:91], s[0:1], 48
    s_cmp_ge_u32 s2, 256
    s_cbranch_scc1 L1_end
    v_lshrrev_b32 v1, 6, v0
    v_and_b32 v0, 63, v0
    v_readfirstlane_b32 {s(S_WAVE)}, v1
    ; attention problem of this workgroup: b = 4*(j&1) + idx%4, h = 8*(j>>1) + idx/4  (j = id%8, idx = id/8)
    s_and_b32 {s(S_T0)}, s2, 7
    s_lshr_b32 {s(S_IDX)}, s2, 3
    s_and_b32 {s(S_B)}, {s(S_T0)}, 1
    s_lshl_b32 {s(S_B)}, {s(S_B)}, 2
    s_and_b32 {s(S_H)}, {s(S_IDX)}, 3
    s_add_u32 {s(S_B)}, {s(S_B)}, {s(S_H)}
    s_lshr_b32 {s(S_H)}, {s(S_T0)}, 1
    s_lshl_b32 {s(S_H)}, {s(S_H)}, 3
    s_lshr_b32 {s(S_T0)}, {s(S_IDX)}, 2
    s_add_u32 {s(S_H)}, {s(S_H)}, {s(S_T0)}
    s_lshl_b32 {s(S_W2048)}, {s(S_WAVE)}, 11
    ; instruction prefetch: every workgroup pulls one 8 KB chunk of this kernel's code into its L2 (16 lines per wave)
    s_getpc_b64 {s(SRD_CODE, 2)}
    L1_pc:
    s_sub_u32 {s(SRD_CODE)}, {s(SRD_CODE)}, L1_pc-{KNAME}
    s_subb_u32 {s(SRD_CODE + 1)}, {s(SRD_CODE + 1)}, 0
    s_mov_b32 {s(SRD_CODE + 2)}, L1_end-{KNAME}
    s_mov_b32 {s(SRD_CODE + 3)}, 0x20000
    s_and_b32 {s(S_T0)}, {s(S_IDX)}, 7
    s_lshl_b32 {s(S_T0)}, {s(S_T0)}, 13
    s_add_u32 {s(S_T0)}, {s(S_T0)}, {s(S_W2048)}
    ; lane fields: v1 = G = l/16, v2 = l%16, v3 = l/8, v4 = c = l%4, v5 = l%8, v7 = r = (l/4)%4
    v_and_b32 v2, 15, v0
    v_lshrrev_b32 v1, 4, v0
    v_lshl_add_u32 {v(V_CT)}, v2, 7, {s(S_T0)}
    v_lshrrev_b32 v3, 3, v0
    v_and_b32 v5, 7, v0
    {CTOUCH}
    ; job voffsets.  wq (wave 0): (4n + G)*8192 + ((l%16) ^ (G<<2))*16 - 1024n
    ;                x (waves 1, 2): (8n + l/8)*1280 + ((l%8) ^ (4(n&1) + G))*16 - 1024n
    v_lshlrev_b32 v9, 2, v1
    v_xor_b32 v9, v2, v9
    v_lshlrev_b32 v9, 4, v9
    v_lshl_add_u32 v9, v1, 13, v9
    v_xor_b32 v8, v5, v1
    v_lshlrev_b32 v8, 4, v8
    v_mul_u32_u24 v10, 1280, v3
    v_xor_b32 v11, 64, v8
    v_add_u32 v8, v10, v8
    v_add_u32 v11, v10, v11
    s_mov_b32 {s(S_T1)}, {8 * 1280 - 1024}
    s_cmp_eq_u32 {s(S_WAVE)}, 0
    s_cselect_b64 vcc, -1, 0
    s_cselect_b32 {s(S_T1)}, {4 * 8192 - 1024}, {s(S_T1)}
    s_lshl_b32 {s(S_T2)}, {s(S_T1)}, 1
    v_cndmask_b32 {v(V_JD)}, v8, v9, vcc
    v_cndmask_b32 v11, v11, v9, vcc
    v_add_u32 {v(V_JD + 1)}, {s(S_T1)}, v11
    v_add_u32 {v(V_JD + 2)}, {s(S_T2)}, {v(V_JD)}
    v_add_u32 {v(V_JD + 3)}, {s(S_T2)}, {v(V_JD + 1)}
    ; start stage of the k loop: (h%8 + 3*(b%4)) % 10, so that workgroups sharing x or wq fetch for each other
    s_and_b32 {s(S_T0)}, {s(S_IDX)}, 3
    s_mul_i32 {s(S_T0)}, {s(S_T0)}, {3 * OPT["qrot"]}
    s_lshr_b32 {s(S_T1)}, {s(S_IDX)}, 2
    s_mul_i32 {s(S_T1)}, {s(S_T1)}, {OPT["qrot"]}
    s_add_u32 {s(S_T0)}, {s(S_T0)}, {s(S_T1)}
    s_cmp_ge_u32 {s(S_T0)}, 10
    s_cselect_b32 {s(S_T1)}, 10, 0
    s_sub_u32 {s(S_T0)}, {s(S_T0)}, {s(S_T1)}
    s_sub_u32 {s(S_T1)}, {s(S_WAVE)}, 1
    s_mul_i32 {s(S_CNT)}, {s(S_T1)}, {128 * 1280}
    s_lshl_b32 {s(S_J0)}, {s(S_T0)}, 7
    s_add_u32 {s(S_J0)}, {s(S_J0)}, {s(S_CNT)}
    s_add_u32 {s(S_CNT)}, {s(S_CNT)}, 1280
    s_mov_b32 {s(S_KV)}, 1280
    s_mov_b32 {s(S_JDG)}, {32 * 1280}
    s_mov_b32 {s(S_JIA)}, {64 * 1280}
    s_mov_b32 {s(S_JIB)}, {128 - 64 * 1280}
    s_lshl_b32 {s(S_T1)}, {s(S_T1)}, 14
    s_add_u32 {s(S_JM)}, {s(S_T1)}, {XBUF[0]}
    s_add_u32 {s(S_JM + 1)}, {s(S_T1)}, {XBUF[0] + 8192}
    s_add_u32 {s(S_JM + 2)}, {s(S_T1)}, {XBUF[1]}
    s_add_u32 {s(S_JM + 3)}, {s(S_T1)}, {XBUF[1] + 8192}
    s_mul_i32 {s(S_T2)}, {s(S_B)}, 307200
    s_mov_b32 {s(SRD_J + 2)}, 307200
    s_mov_b32 {s(SRD_J + 3)}, 0x20000
    s_cmp_lg_u32 {s(S_WAVE)}, 0
    s_cbranch_scc1 L1_xjob
    s_lshl_b32 {s(S_J0)}, {s(S_T0)}, 19
    s_mov_b32 {s(S_CNT)}, {640 * 8192}
    s_mov_b32 {s(S_KV)}, {640 * 8192}
    s_mov_b32 {s(S_JDG)}, {16 * 8192}
    s_mov_b32 {s(S_JIA)}, {32 * 8192}
    s_mov_b32 {s(S_JIB)}, {32 * 8192}
    s_mov_b32 {s(S_JM)}, {LDS_WQ}
    s_mov_b32 {s(S_JM + 1)}, {LDS_WQ + 8192}
    s_mov_b32 {s(S_JM + 2)}, {LDS_WQ + 2 * 8192}
    s_mov_b32 {s(S_JM + 3)}, {LDS_WQ + 3 * 8192}
    s_lshl_b32 {s(S_T2)}, {s(S_H)}, 8
    s_sub_u32 {s(SRD_J + 2)}, {640 * 8192}, {s(S_T2)}
    L1_xjob:
    s_waitcnt lgkmcnt(0)
    s_mov_b32 {s(S_JLIM)}, {s(S_CNT)}
    s_mov_b32 {s(S_JWRAP)}, {s(S_KV)}
    s_cmp_eq_u32 {s(S_WAVE)}, 0
    s_cselect_b32 {s(SRD_J)}, s42, s36
    s_cselect_b32 {s(SRD_J + 1)}, s43, s37
    s_add_u32 {s(SRD_J)}, {s(SRD_J)}, {s(S_T2)}
    s_addc_u32 {s(SRD_J + 1)}, {s(SRD_J + 1)}, 0
    """)
    stamp(b, 0)
    b(f"""
    s_mov_b32 {s(SRD_WO)}, s84
    s_mov_b32 {s(SRD_WO + 1)}, s85
    s_mov_b32 {s(SRD_WO + 2)}, {4096 * 1280}
    s_mov_b32 {s(SRD_WO + 3)}, 0x20000
    s_cmp_eq_u32 {s(S_WAVE)}, 3
    s_cbranch_scc1 L1_w3
    """)
    jobs0 = Block()
    jobs0.extend(flat(job(0) + job(1) + job(2)))
    jobs0("s_branch L1_nojob")
    jobs0("L1_w3:")
    w3 = Block()
    if OPT["ewt"]:
        nl = (8 - OPT["ewh"]) * 20
        w3(f"""
        ; wave 3 pulls this workgroup's share of wo (heads {OPT["ewh"]}..7 of every group of 8) into the last-level cache
        s_lshr_b32 {s(S_T0)}, s2, 6
        s_mul_i32 {s(S_T2)}, {s(S_T0)}, {1024 * 1280}
        s_and_b32 {s(S_T0)}, s2, 63
        s_mul_i32 {s(S_T0)}, {s(S_T0)}, {nl * 128}
        s_add_u32 {s(S_T2)}, {s(S_T2)}, {s(S_T0)}
        s_add_u32 {s(S_T2)}, {s(S_T2)}, {OPT["ewh"] * 128 * 1280}
        v_lshlrev_b32 v8, 7, v0
        """)
        done_ = 0
        i_ = 0
        while done_ < nl:
            if nl - done_ < 64:
                w3(f"v_min_u32 v8, {(nl - done_ - 1) * 128}, v8")
            w3(f"buffer_load_dword {v(V_JD + i_)}, v8, {s(SRD_WO, 4)}, {s(S_T2)} offen")
            w3(f"s_add_u32 {s(S_T2)}, {s(S_T2)}, 8192")
            done_ += 64
            i_ += 1
    b2 = Block()
    b2("L1_nojob:")
    b2(f"""
    ; hand-off counters live in ws + 32 MB (256 B apart); wave 3 of workgroups 0..31 clears one each
    s_add_u32 {s(SRD_FL)}, s90, 0x2000000
    s_addc_u32 {s(SRD_FL + 1)}, s91, 0
    s_mov_b32 {s(SRD_FL + 2)}, 8192
    s_mov_b32 {s(SRD_FL + 3)}, 0x20000
    s_mov_b32 {s(SRD_DBG)}, s88
    s_mov_b32 {s(SRD_DBG + 1)}, s89
    s_mov_b32 {s(SRD_DBG + 2)}, 256
    s_mov_b32 {s(SRD_DBG + 3)}, 0x20000
    v_mov_b32 {v(V_Z)}, 0
    s_xor_b32 {s(S_T0)}, {s(S_WAVE)}, 3
    s_lshl_b32 {s(S_T0)}, {s(S_T0)}, 5
    s_add_u32 {s(S_INIT)}, {s(S_T0)}, s2
    s_cmp_ge_u32 {s(S_INIT)}, 32
    s_cbranch_scc1 L1_noclr
    s_lshl_b32 {s(S_T0)}, s2, 8
    s_mov_b64 exec, 1
    buffer_store_dword {v(V_Z)}, {v(V_Z)}, {s(SRD_FL, 4)}, {s(S_T0)} offen sc1 ; rare
    s_mov_b64 exec, -1
    L1_noclr:
    s_lshr_b32 {s(S_CB)}, {s(S_WAVE)}, 1
    s_lshl_b32 {s(S_CB)}, {s(S_CB)}, 16
    s_and_b32 {s(S_T0)}, {s(S_WAVE)}, 1
    s_lshl_b32 {s(S_T0)}, {s(S_T0)}, 12
    s_add_u32 {s(S_CB)}, {s(S_CB)}, {s(S_T0)}
    s_lshl_b32 {s(S_XC)}, {s(S_WAVE)}, 13
    v_and_b32 v4, 3, v0
    v_bfe_u32 v7, v0, 2, 2
    v_lshl_add_u32 v8, v1, 3, v7
    v_lshlrev_b32 v8, 8, v8
    v_lshl_add_u32 v8, v7, 6, v8
    v_lshl_add_u32 v8, v4, 4, v8
    v_add_u32 {v(V_WA)}, {LDS_WQ}, v8
    v_xor_b32 {v(V_WA + 1)}, 64, {v(V_WA)}
    v_xor_b32 {v(V_WA + 2)}, 0x80, {v(V_WA)}
    v_xor_b32 {v(V_WA + 3)}, 0xc0, {v(V_WA)}
    ; x read: buffer + w*8192 + (l%16)*128 + ((G ^ ((l%16)>>1))*16) ^ (ks*64)
    v_lshrrev_b32 v8, 1, v2
    v_xor_b32 v8, v1, v8
    v_lshlrev_b32 v8, 4, v8
    v_lshl_add_u32 v8, v2, 7, v8
    v_add_u32 v8, {s(S_XC)}, v8
    v_add_u32 {v(V_XA)}, {XBUF[0]}, v8
    v_xor_b32 {v(V_XA + 1)}, 64, {v(V_XA)}
    v_add_u32 {v(V_XA + 2)}, {XBUF[1]}, v8
    v_xor_b32 {v(V_XA + 3)}, 64, {v(V_XA + 2)}
    s_add_u32 {s(S_XC)}, {s(S_XC)}, {LDS_WQ}
    s_lshl_b32 {s(S_T0)}, {s(S_B)}, 5
    s_add_u32 {s(S_T0)}, {s(S_T0)}, {s(S_H)}
    s_lshl_b32 {s(S_T0)}, {s(S_T0)}, 19
    s_add_u32 {s(SRD_K)}, s38, {s(S_T0)}
    s_addc_u32 {s(SRD_K + 1)}, s39, 0
    s_mov_b32 {s(SRD_K + 2)}, 524288
    s_mov_b32 {s(SRD_K + 3)}, 0x20000
    s_add_u32 {s(SRD_V)}, s40, {s(S_T0)}
    s_addc_u32 {s(SRD_V + 1)}, s41, 0
    s_mov_b32 {s(SRD_V + 2)}, 524288
    s_mov_b32 {s(SRD_V + 3)}, 0x20000
    s_mul_i32 {s(S_ROT)}, s2, {OPT["kvrot"] * 8192}
    s_and_b32 {s(S_ROT)}, {s(S_ROT)}, 0x7ffff
    ; K DMA voffsets: G*256 + ((l%16) ^ (8(w&1) + 4n + G))*16 ; V: G*256 + ((l%16) ^ ((4n + G)<<1))*16
    s_and_b32 {s(S_T0)}, {s(S_WAVE)}, 1
    s_lshl_b32 {s(S_T0)}, {s(S_T0)}, 7
    {f"s_mov_b32 {s(S_T0)}, 0" if OPT["kvpair"] else ""}
    s_lshl_b32 {s(S_W4096)}, {s(S_WAVE)}, 12
    v_xor_b32 v8, v2, v1
    v_lshlrev_b32 v8, 4, v8
    v_lshl_add_u32 v9, v1, 8, v8
    v_xor_b32 {v(V_KD)}, {s(S_T0)}, v9
    v_xor_b32 {v(V_KD + 1)}, 64, {v(V_KD)}
    v_xor_b32 {v(V_KD + 2)}, 0x80, {v(V_KD)}
    v_xor_b32 {v(V_KD + 3)}, 0xc0, {v(V_KD)}
    v_lshlrev_b32 v9, 1, v1
    v_xor_b32 v9, v2, v9
    v_lshlrev_b32 v9, 4, v9
    v_lshl_add_u32 {v(V_VD)}, v1, 8, v9
    v_xor_b32 {v(V_VD + 1)}, 0x80, {v(V_VD)}
    s_lshl_b32 {s(S_W1024)}, {s(S_WAVE)}, 10
    s_lshl_b32 {s(S_T0)}, {s(S_WAVE)}, 6
    v_xor_b32 v252, {s(S_T0)}, {v(V_KD)}
    s_and_b32 {s(S_T0)}, {s(S_WAVE)}, 1
    s_lshl_b32 {s(S_T0)}, {s(S_T0)}, 7
    v_xor_b32 v253, {s(S_T0)}, {v(V_VD)}
    s_mul_i32 {s(S_T0)}, {s(S_B)}, {15 * 131072}
    s_add_u32 {s(SRD_O)}, s90, {s(S_T0)}
    s_addc_u32 {s(SRD_O + 1)}, s91, 0
    s_mov_b32 {s(SRD_O + 2)}, {15 * 131072}
    s_mov_b32 {s(SRD_O + 3)}, 0x20000
    ; K read: (l%16)*256 + ((G ^ (l%16))*16) ^ (s*64)
    v_lshl_add_u32 {v(V_KA)}, v2, 8, v8
    v_xor_b32 {v(V_KA + 1)}, 64, {v(V_KA)}
    v_xor_b32 {v(V_KA + 2)}, 0x80, {v(V_KA)}
    v_xor_b32 {v(V_KA + 3)}, 0xc0, {v(V_KA)}
    v_lshl_add_u32 v8, v1, 2, v7
    v_and_b32 v9, 7, v8
    v_lshlrev_b32 v8, 8, v8
    v_lshl_add_u32 v8, v9, 5, v8
    v_lshl_add_u32 v8, v4, 3, v8
    v_add_u32 {v(V_VA)}, {LDS_V}, v8
    """)
    for dt in range(1, 8):
        b2(f"v_xor_b32 {v(V_VA + dt)}, {32 * dt}, {v(V_VA)}")
    for i in range(4):
        b2(f"v_mov_b32 {v(V_ONE + i)}, 0x3f803f80")
    b2(f"""
    v_lshlrev_b32 {v(V_OD)}, 4, v0
    ; O store voffset: ((l%16)/4)*1024 + (4*(l%4) + G)*16
    v_lshl_add_u32 v8, v4, 2, v1
    v_lshlrev_b32 v8, 4, v8
    v_lshl_add_u32 {v(V_OS)}, v7, 10, v8
    s_mov_b32 {s(S_SEL)}, 0x07060302
    s_mov_b32 {s(S_SCALE)}, {f32(SCALE)}
    s_mov_b32 {s(S_SCALE + 1)}, {f32(SCALE)}
    ; ---- O-projection tile of this workgroup: batch 4*(1 - (j&1)) + (j>>1), row tile idx/10, column tile idx%10
    s_mul_i32 {s(S_T1)}, {s(S_IDX)}, 26
    s_lshr_b32 {s(S_T1)}, {s(S_T1)}, 8
    s_mul_i32 {s(S_T0)}, {s(S_T1)}, 10
    s_sub_u32 {s(S_CT)}, {s(S_IDX)}, {s(S_T0)}
    s_andn2_b32 {s(S_B2)}, 1, s2
    s_lshl_b32 {s(S_B2)}, {s(S_B2)}, 2
    s_bfe_u32 {s(S_T0)}, s2, 0x20001
    s_add_u32 {s(S_B2)}, {s(S_B2)}, {s(S_T0)}
    s_mul_i32 {s(S_T0)}, {s(S_B2)}, 15
    s_min_u32 {s(S_T1)}, {s(S_T1)}, 2
    s_mul_i32 {s(S_T1)}, {s(S_T1)}, 5
    s_add_u32 {s(S_T0)}, {s(S_T0)}, {s(S_T1)}
    s_lshl_b32 {s(S_T1)}, {s(S_T0)}, 17
    s_add_u32 {s(SRD_OO)}, s90, {s(S_T1)}
    s_addc_u32 {s(SRD_OO + 1)}, s91, 0
    s_mov_b32 {s(SRD_OO + 2)}, {5 * 131072}
    s_mov_b32 {s(SRD_OO + 3)}, 0x20000
    s_mul_i32 {s(S_T1)}, {s(S_T0)}, {16 * 1280}
    s_add_u32 {s(SRD_OUT)}, s86, {s(S_T1)}
    s_addc_u32 {s(SRD_OUT + 1)}, s87, 0
    s_mov_b32 {s(SRD_OUT + 2)}, {80 * 1280}
    s_mov_b32 {s(SRD_OUT + 3)}, 0x20000
    s_mul_i32 {s(S_WB)}, {s(S_WAVE)}, {1024 * 1280}
    s_lshl_b32 {s(S_T0)}, {s(S_CT)}, 7
    s_add_u32 {s(S_WB)}, {s(S_WB)}, {s(S_T0)}
    s_lshl_b32 {s(S_OB)}, {s(S_WAVE)}, 15
    s_mul_i32 {s(S_T2)}, s2, 20480
    s_lshl_b32 {s(S_T0)}, {s(S_WAVE)}, 10
    {f"v_lshl_add_u32 {v(V_WT)}, v5, 7, {s(S_T0)}" if OPT["lwt"] else f"v_lshlrev_b32 {v(V_WT)}, 7, v0"}
    """)
    if OPT["lwt"] in (2, 3):
        nl = 10 if OPT["lwt"] == 2 else 4
        b2(f"""
        s_mul_i32 {s(S_T0)}, {s(S_WAVE)}, {nl * 128}
        v_min_u32 {v(V_WT)}, {nl - 1}, v0
        v_lshl_add_u32 {v(V_WT)}, {v(V_WT)}, 7, {s(S_T0)}
        """)
    if OPT["cwt"]:
        b2(f"""
        ; share of wo (heads 3..7 of every group of 8) that this wave pulls into the last-level cache: 25 lines
        s_lshr_b32 {s(S_T0)}, s2, 6
        s_mul_i32 {s(S_T2)}, {s(S_T0)}, {1024 * 1280}
        s_and_b32 {s(S_T0)}, s2, 63
        s_lshl_b32 {s(S_T0)}, {s(S_T0)}, 2
        s_add_u32 {s(S_T0)}, {s(S_T0)}, {s(S_WAVE)}
        s_mul_i32 {s(S_T0)}, {s(S_T0)}, {25 * 128}
        s_add_u32 {s(S_T2)}, {s(S_T2)}, {s(S_T0)}
        s_add_u32 {s(S_T2)}, {s(S_T2)}, {384 * 1280}
        v_min_u32 {v(V_WT)}, 24, v0
        v_lshlrev_b32 {v(V_WT)}, 7, {v(V_WT)}
        """)
    b2(f"""
    s_lshl_b32 {s(S_POLL)}, {s(S_B2)}, 2
    s_add_u32 {s(S_POLL)}, {s(S_POLL)}, {s(S_WAVE)}
    s_lshl_b32 {s(S_POLL)}, {s(S_POLL)}, 8
    ; wo DMA voffset n: (64(n/2) + 2(n%2) + 16*((l/8)%4) + l/32)*1280 + (((l%8) ^ (G<<1))*16) - 1024n
    v_and_b32 v8, 3, v3
    v_lshlrev_b32 v8, 4, v8
    v_lshrrev_b32 v9, 5, v0
    v_add_u32 v8, v8, v9
    v_mul_u32_u24 v8, 1280, v8
    v_lshlrev_b32 v9, 1, v1
    v_xor_b32 v9, v5, v9
    v_lshl_add_u32 {v(V_WDD)}, v9, 4, v8
    v_add_u32 {v(V_WDD + 1)}, {2 * 1280 - 1024}, {v(V_WDD)}
    v_add_u32 {v(V_WDD + 2)}, {64 * 1280 - 2048}, {v(V_WDD)}
    v_add_u32 {v(V_WDD + 3)}, {66 * 1280 - 3072}, {v(V_WDD)}
    s_cmp_eq_u32 {s(S_WAVE)}, 3
    s_cbranch_scc1 L1_q3
    """)
    qa = qproj_role(False)
    qb = qproj_role(True)
    qe = qproj_end()
    stamp(qe, 2)

    mid = Block()
    mid(f"""
    s_waitcnt lgkmcnt(0)
    s_barrier
    s_cmp_ge_u32 {s(S_INIT)}, 32
    s_cbranch_scc1 L1_norep
    v_mov_b32 v8, 1
    s_mov_b64 exec, 1
    buffer_atomic_add v8, {v(V_Z)}, {s(SRD_DBG, 4)}, 0 offen offset:128 sc1 ; rare
    s_mov_b64 exec, -1
    L1_norep:
    ; wo tr-read addresses: (4G + r)*128 + ((nt ^ (2(G&1) + r/2))*32) + 8c + window base
    v_lshl_add_u32 v10, v1, 2, v7
    v_bfe_u32 v9, v10, 1, 2
    v_lshlrev_b32 v10, 7, v10
    v_lshl_add_u32 v10, v4, 3, v10
    v_lshl_add_u32 v10, v9, 5, v10
    v_add_u32 {v(V_AA)}, {s(S_CB)}, v10
    v_add_u32 {v(V_AA + 4)}, {s(S_XC)}, v10
    """)
    for wdw in range(2):
        for nt in range(1, 4):
            mid(f"v_xor_b32 {v(V_AA + 4 * wdw + nt)}, {32 * nt}, {v(V_AA + 4 * wdw)}")
    dm = kv_pair(6, 1) if OPT['kvpair'] else kv_group(6)
    cv = conv_q(1, True) + conv_q(2, True) + conv_q(3, True)
    pos = 0
    for x in dm:
        mid(x)
        n = 22 if x.startswith("buffer") else 2
        mid.extend(cv[pos:pos + n])
        pos += n
    mid.extend(cv[pos:])
    mid(f"s_cmp_eq_u32 {s(S_WAVE)}, 3")
    mid(f"s_cselect_b32 {s(S_T1)}, {f32(1e4)}, 0")

    def max_chain(qt):
        S = V_S + 8 * qt
        m = V_T + 2 * qt
        out = [f"v_max3_f32 {v(m)}, {v(S)}, {v(S + 1)}, {v(S + 2)}",
               f"v_max3_f32 {v(m + 1)}, {v(S + 3)}, {v(S + 4)}, {v(S + 5)}",
               f"v_max3_f32 {v(m)}, {v(m)}, {v(S + 6)}, {v(S + 7)}",
               f"v_max_f32 {v(m)}, {v(m)}, {v(m + 1)}",
               f"v_mov_b32 {v(m + 1)}, {v(m)}", "s_nop 1",
               f"v_permlane16_swap_b32 {v(m)}, {v(m + 1)}",
               f"v_max_f32 {v(m)}, {v(m)}, {v(m + 1)}",
               f"v_mov_b32 {v(m + 1)}, {v(m)}", "s_nop 1",
               f"v_permlane32_swap_b32 {v(m)}, {v(m + 1)}",
               f"v_max_f32 {v(m)}, {v(m)}, {v(m + 1)}"]
        if qt == 3:
            out.append(f"v_add_f32 {v(m)}, {s(S_T1)}, {v(m)}")
        out += [f"v_sub_f32 {v(V_NM + 4 * qt + i)}, 0, {v(m)}" for i in range(4)]
        out += [f"v_sub_f32 {v(S + i)}, {v(S + i)}, {v(m)}" for i in range(8)]
        for i in range(8):
            e = 8 * qt + i
            if EG[e] < NG:
                out.append(sm_exp(e))
        out.append("s_nop 0")
        for i in range(1, 8, 2):
            e = 8 * qt + i
            if CG[e] < NG:
                out.append(sm_cvt(e, 0))
        return out

    gaps = [[] for _ in range(32)]
    for i in range(8):
        gaps[i] += [f"v_mov_b32 {v(V_LM + 2 * i)}, 0", f"v_mov_b32 {v(V_LM + 2 * i + 1)}, 0"]
    work = max_chain(0) + max_chain(1) + max_chain(2) + max_chain(3)
    n0 = len(max_chain(0))
    done = 0
    for g in range(12, 32):
        avail = n0 * min(4, (g - 4) // 8)
        take = min(2, avail - done)
        gaps[g] += work[done:done + take]
        done += take
    mid.extend(interleave(qk_all(True, A_K0), gaps))
    rest = work[done:]
    pos = 0
    for x in ([] if OPT['kvpair'] else kv_group(7)):
        mid(x)
        n = 20 if x.startswith("buffer") else 2
        mid.extend(rest[pos:pos + n])
        pos += n
    mid.extend(rest[pos:])
    mid(f"s_mov_b32 {s(S_CNT)}, 7")
    if OPT["stamp"] == 4:
        mid(f"s_mov_b32 {s(S_SI)}, 1")
    stamp(mid, 3)
    mid("s_branch L1_it1")

    it0 = Block()
    it0.extend(subtile(0))
    body = Block()
    for t in range(1, 8):
        body.extend(subtile(t))
    if OPT["stamp"] in (2, 3):
        body(f"s_sub_u32 {s(S_T0)}, 22, {s(S_CNT)}")
        body(f"s_mov_b32 m0, {s(S_T0)}")
        stamp(body, "m0")
        body(f"s_cmp_gt_u32 {s(S_CNT)}, 1")
    body("s_cbranch_scc1 L1_loop")
    wo01 = Block()
    wo01(f"s_cmp_eq_u32 {s(S_CNT)}, 0")
    wo01("s_cbranch_scc1 L1_last")
    for i in range(2):
        wo01.extend([x + " ; rare" for x in [cell_m0(CELL0[i]), wo_off(i)] + [wo_dma(n) for n in range(4)]])
    if OPT["cwt"]:
        wo01(f"buffer_load_dword {v(V_DUM)}, {v(V_WT)}, {s(SRD_WO, 4)}, {s(S_T2)} offen ; rare")
    if OPT["lct"] == 2:
        wo01(CTOUCH + " ; rare")
    wo01("s_branch L1_loop ; rare")
    wo01("L1_last:")

    post = Block()
    vm = VM()
    for g in range(56, 63):
        vm.add(("kv", g), 4)
    if OPT["kvpair"]:
        vm = VM()
        for tag in [("K", 28), ("V", 28), ("K", 29), ("V", 29), ("K", 30), ("V", 30), ("K", 31)]:
            vm.add(tag, 4)
    for t in range(8):
        post.extend(subtile(t, vm, True))
    stamp(post, 23)
    for e in range(32):
        if EG[e] >= NG:
            post(sm_exp(e))
    post(f"s_mov_b32 {s(S_T2)}, {f32(2.0 ** 40)}")
    for e, g in CG.items():
        if g >= NG:
            post(sm_cvt(e, 1))
    post("s_nop 1")
    for qt in range(4):
        post(ones_mf(qt, 1))
    post("s_waitcnt lgkmcnt(0)")
    epi = Block()
    epi("L1_epi:")
    tail1, fast, tail2 = oproj_tail()
    epi.extend(tail1)
    n_slow = len(epi.instrs())
    epi.extend(fast)
    epi.extend(tail2)
    epi("L1_fin:")
    if OPT["stamp"]:
        epi("s_waitcnt vmcnt(0)")
        stamp(epi, 25)
        stamp_store(epi, "L1_end")
    epi("L1_end:")
    epi("s_endpgm")

    fb = Block()
    fb("L1_fallback:")
    fb(f"""
    s_waitcnt vmcnt(0) lgkmcnt(0)
    s_mov_b32 {s(S_T2)}, 0x7f800000
    s_sub_u32 {s(S_T0)}, {s(S_CB)}, {LDS_V - 16384}
    v_xor_b32 v8, v2, v1
    v_lshlrev_b32 v8, 4, v8
    v_lshl_add_u32 {v(V_KD)}, v1, 8, v8
    v_xor_b32 {v(V_KD + 1)}, 64, {v(V_KD)}
    v_xor_b32 {v(V_KD + 2)}, 0x80, {v(V_KD)}
    v_xor_b32 {v(V_KD + 3)}, 0xc0, {v(V_KD)}
    v_lshlrev_b32 v11, 4, v1
    s_nop 7
    """)
    for i in range(4):
        fb(f"v_add_u32 {v(V_KA + i)}, {s(S_CB)}, {v(V_KA + i)}")
    for i in range(8):
        fb(f"v_add_u32 {v(V_VA + i)}, {s(S_T0)}, {v(V_VA + i)}")
    for i in range(128):
        fb(f"v_accvgpr_write_b32 {a(A_O + i)}, 0")
    for i in range(16):
        fb(f"v_mov_b32 {v(V_LM + i)}, 0")
    for qt in range(4):
        fb(f"v_mov_b32 {v(V_M + qt)}, {f32(-3e38)}")
    fb(f"s_mov_b32 {s(S_KV)}, 0")
    fbl = Block()
    for q in range(2):
        fbl(f"s_add_u32 m0, {s(S_CB)}, {8192 * q}")
        fbl(f"s_add_u32 {s(S_T0)}, {s(S_KV)}, {4096 * q}")
        for n in range(4):
            fbl(k_dma(n, s(S_T0)))
        fbl(f"s_add_u32 m0, {s(S_CB)}, {16384 + 8192 * q}")
        fbl("s_nop 0")
        for n in range(4):
            fbl(v_dma(n, s(S_T0)))
    fbl("s_waitcnt vmcnt(0)")
    for kt in range(2):
        for st in range(4):
            fbl(f"ds_read_b128 {a(A_K + 16 * kt + 4 * st, 4)}, {v(V_KA + st)} offset:{kt * 8192}")
    for dt in range(8):
        for kt in range(2):
            fbl(f"ds_read_b64_tr_b16 {a(A_V + 4 * dt + 2 * kt, 2)}, {v(V_VA + dt)} offset:{kt * 8192}")
        if dt % 2:
            fbl("s_waitcnt lgkmcnt(0)")
    fbl.extend(qk_all(True))
    fbl("s_nop 7")
    for qt in range(4):
        S = V_S + 8 * qt
        m, m2, al, alt = V_T, V_T + 1, V_T + 2, V_T + 4
        M = V_M + qt
        fbl(f"v_max3_f32 {v(m)}, {v(S)}, {v(S + 1)}, {v(M)}")
        for i in range(2, 8, 2):
            fbl(f"v_max3_f32 {v(m)}, {v(m)}, {v(S + i)}, {v(S + i + 1)}")
        for swap in ("v_permlane16_swap_b32", "v_permlane32_swap_b32"):
            fbl(f"v_mov_b32 {v(m2)}, {v(m)}")
            fbl("s_nop 1")
            fbl(f"{swap} {v(m)}, {v(m2)}")
            fbl(f"v_max_f32 {v(m)}, {v(m)}, {v(m2)}")
        fbl(f"v_sub_f32 {v(al)}, {v(M)}, {v(m)}")
        fbl(f"v_exp_f32 {v(al)}, {v(al)}")
        fbl(f"v_mov_b32 {v(M)}, {v(m)}")
        for r in range(4):
            fbl(f"ds_bpermute_b32 {v(alt + r)}, v11, {v(al)} offset:{4 * r}")
        for e in range(8):
            fbl(f"v_sub_f32 {v(S + e)}, {v(S + e)}, {v(m)}")
        for e in range(8):
            fbl(sm_exp(8 * qt + e))
        fbl("s_waitcnt lgkmcnt(0)")
        for e in range(1, 8, 2):
            fbl(sm_cvt(8 * qt + e, 0))
        for r in range(4):
            fbl(f"v_mul_f32 {v(V_LM + 4 * qt + r)}, {v(V_LM + 4 * qt + r)}, {v(alt + r)}")
        for i in range(32):
            r = A_O + 32 * qt + i
            fbl(f"v_accvgpr_read_b32 {v(m2)}, {a(r)}")
            fbl(f"v_mul_f32 {v(m2)}, {v(m2)}, {v(alt + i % 4)}")
            fbl(f"v_accvgpr_write_b32 {a(r)}, {v(m2)}")
        fbl("s_nop 1")
        for dt in range(8):
            fbl(pv(qt, dt, 0))
        fbl(ones_mf(qt, 0))
    fbl("s_nop 7")
    fbl(f"s_add_u32 {s(S_KV)}, {s(S_KV)}, 8192")
    fbl(f"s_cmp_lt_u32 {s(S_KV)}, 524288")
    fbl("s_cbranch_scc1 L1_fbloop")
    fbe = Block()
    for i in range(16):
        fbe(f"v_mov_b32 {v(V_P + 16 + i)}, 0")
    for i in range(32):
        fbe(f"v_accvgpr_write_b32 {a(A_K + i)}, 0")
    for i in range(NREG0, NREG0 + 9):
        fbe(cell_m0(CELL0[i]))
        fbe(wo_off(i))
        for n in range(4):
            fbe(wo_dma(n))
    fbe("s_branch L1_epi")

    ep = epi.instrs()
    nf = len(fast.instrs())
    ep_slow = ep[:n_slow] + ep[n_slow + nf:]
    br = next(i for i, x in enumerate(ep) if "L1_ready" in x) + 1
    ep_fast = ep[:br] + ep[n_slow:]
    loop = body.instrs() + it0.instrs() + body.instrs()
    check_trace(b.instrs() + jobs0.instrs() + b2.instrs() + qa.instrs() + qe.instrs() + mid.instrs() + loop + post.instrs() + ep_slow, "main")
    check_trace(b.instrs() + w3.instrs() + b2.instrs() + qb.instrs() + qe.instrs() + mid.instrs() + body.instrs(), "wave3")
    check_trace(post.instrs() + ep_fast, "fast")
    cut = next(i for i, x in enumerate(ep) if "L1_fallback" in x) + 1
    check_trace(post.instrs() + ep[:cut] + fb.instrs() + fbl.instrs() * 2 + fbe.instrs() + ep_slow, "fallback")

    out = Block()
    out.extend(b)
    out.extend(jobs0)
    out.extend(w3)
    out.extend(b2)
    out.extend(qa)
    out("s_branch L1_qend")
    out("L1_q3:")
    out.extend(qb)
    out("L1_qend:")
    out.extend(qe)
    out.extend(mid)
    out(".p2align 6")
    out("L1_loop:")
    out.extend(it0)
    out("L1_it1:")
    out.extend(body)
    out.extend(wo01)
    out.extend(post)
    out.extend(epi)
    out.extend(fb)
    out("L1_fbloop:")
    out.extend(fbl)
    out.extend(fbe)
    return out


def oproj_tail():
    V_OA = 16
    V_OUT = 21
    V_PL = 22
    V_R = V_NM
    V_TMP = V_S
    NPRE = OPT["npre"]
    N0 = NREG0 + 9
    t1 = Block()
    vm = VM()
    for i in range(NREG0, N0):
        vm.add(("wo", i), 4)
    cellof = {i: CELL0[i] for i in range(N0)}
    freecells = []
    pool = [("a", 160 + 4 * i) for i in range(8)]
    pool += [("v", 48 + 4 * i) for i in range(16)]
    pool += [("a", 128 + 4 * i) for i in range(8)]
    pool += [("v", 144 + 4 * i) for i in range(8)]
    pool += [("v", 192 + 4 * i) for i in range(12)]
    late = [("a", 80 + 4 * i) for i in range(12)] + [("v", 112 + 4 * i) for i in range(8)] + [("v", 176 + 4 * i) for i in range(4)]
    areg = dict(AREG0)

    def a_reads(i):
        areg[i] = [pool.pop(0) for _ in range(4)]
        return wo_reads(areg[i], cellof[i])

    nd = [N0]

    def wo_grp():
        i = nd[0]
        nd[0] += 1
        cellof[i] = freecells.pop(0)
        vm.add(("wo", i), 4)
        return [cell_m0(cellof[i]), wo_off(i)] + [wo_dma(n) for n in range(4)]

    fin = [pv(qt, dt, 1, A_K) for qt in range(4) for dt in range(8)]
    m = V_T
    guard = [f"v_max3_f32 {v(m)}, {v(V_LM)}, {v(V_LM + 1)}, {v(V_LM + 2)}"]
    guard += [f"v_max3_f32 {v(m)}, {v(m)}, {v(V_LM + i)}, {v(V_LM + i + 1)}" for i in range(3, 15, 2)]
    guard += [f"v_max_f32 {v(m)}, {v(m)}, {v(V_LM + 15)}"]
    gaps = [[], [], []] + [guard[2 * i:2 * i + 2] for i in range(4)]
    gaps[0] = ["s_nop 1"]
    t1.extend(interleave(fin[:7], gaps))
    t1(f"v_cmp_gt_f32 vcc, {v(m)}, {s(S_T2)}")
    t1(fin[7])
    t1(f"s_lshl_b32 {s(S_T0)}, {s(S_WAVE)}, 19")
    t1("s_cbranch_vccnz L1_fallback")
    t1(f"s_lshl_b32 {s(S_T1)}, {s(S_H)}, 12")
    t1(f"s_add_u32 {s(S_T0)}, {s(S_T0)}, {s(S_T1)}")
    rcp = [f"v_rcp_f32 {v(V_R + i)}, {v(V_LM + i)}" for i in range(16)]

    def group(qt, r, packed):
        tb = V_TMP + 12 * ((4 * qt + r) % 2)
        out = [f"v_accvgpr_read_b32 {v(tb + i)}, {a(A_O + 32 * qt + 4 * i + r)}" for i in range(8)]
        if packed:
            sel = "op_sel_hi:[1,0]" if r % 2 == 0 else "op_sel:[0,1] op_sel_hi:[1,1]"
            out += [f"v_pk_mul_f32 {v(tb + 2 * i, 2)}, {v(tb + 2 * i, 2)}, {v(V_R + 4 * qt + (r & 2), 2)} {sel}" for i in range(4)]
        else:
            out += [f"v_mul_f32 {v(tb + i)}, {v(tb + i)}, {v(V_R + 4 * qt + r)}" for i in range(8)]
        out += [f"v_cvt_pk_bf16_f32 {v(tb + 8 + i)}, {v(tb + 2 * i)}, {v(tb + 2 * i + 1)}" for i in range(4)]
        out.append(f"buffer_store_dwordx4 {v(tb + 8, 4)}, {v(V_OS)}, {s(SRD_O, 4)}, {s(S_T0)} offen offset:{r * 256} sc1")
        return out

    gaps = [[] for _ in range(24)]
    for i in range(4):
        gaps[i].append(rcp[i])
    seq = group(0, 0, False) + group(0, 1, False)
    vm.add("st", 2)
    gi = 4
    while seq and gi < 24:
        gaps[gi].append(seq.pop(0))
        if seq and not seq[0].startswith("buffer") and not gaps[gi][0].startswith("buffer"):
            gaps[gi].append(seq.pop(0))
        gi += 1
    t1.extend(interleave(fin[8:], gaps))
    t1.extend(seq)
    t1.extend(rcp[4:])
    t1(f"""
    ; O load voffset: ((l%16)/4)*256 + G*64 + (l%4)*16 + mt*131072
    v_lshlrev_b32 v8, 8, v7
    v_lshl_add_u32 v8, v1, 6, v8
    v_lshl_add_u32 {v(V_OA)}, v4, 4, v8
    v_add_u32 {v(V_OA + 1)}, 0x20000, {v(V_OA)}
    v_add_u32 {v(V_OA + 2)}, 0x40000, {v(V_OA)}
    v_add_u32 {v(V_OA + 3)}, 0x60000, {v(V_OA)}
    v_add_u32 {v(V_OA + 4)}, 0x80000, {v(V_OA)}
    ; out voffset: (4*(l%4) + (l%16)/4)*1280 + G*8
    v_lshl_add_u32 v8, v4, 2, v7
    v_mul_u32_u24 v8, 1280, v8
    v_lshl_add_u32 {v(V_OUT)}, v1, 3, v8
    s_mov_b32 {s(S_CNT)}, 0x40000
    L1_chk:
    v_readfirstlane_b32 {s(S_T1)}, {v(V_IN)}
    s_sub_u32 {s(S_CNT)}, {s(S_CNT)}, 1
    s_cbranch_scc1 L1_clr
    s_cmp_ge_u32 {s(S_T1)}, 32
    s_cbranch_scc1 L1_clr
    buffer_load_dword {v(V_IN)}, {v(V_Z)}, {s(SRD_DBG, 4)}, 0 offen offset:128 sc1 ; rare
    s_waitcnt vmcnt(0) ; rare
    s_branch L1_chk ; rare
    L1_clr:
    s_mov_b32 {s(S_CNT)}, 0x40000
    """)
    stamp(t1, 4)
    POLL = f"buffer_load_dword {v(V_PL)}, {v(V_Z)}, {s(SRD_FL, 4)}, {s(S_POLL)} offen sc1"
    na = NREG0
    for idx in range(2, 16):
        qt, r = idx // 4, idx % 4
        if r == 0:
            t1(f"s_add_u32 {s(S_T0)}, {s(S_T0)}, 131072")
        t1.extend(group(qt, r, True))
        vm.add("st")
        if idx == OPT["pollat"]:
            t1(POLL)
            vm.add("poll")
        if na > NREG0 and nd[0] == na + 8:
            t1("s_waitcnt lgkmcnt(0)")
            freecells.append(cellof[na - 1])
            t1.extend(wo_grp())
        if na < NPRE:
            t1(f"s_waitcnt vmcnt({vm.cnt(('wo', na))})")
            t1.extend(a_reads(na))
            na += 1
    assert na == NPRE and nd[0] == NPRE + 9, (na, nd)
    stamp(t1, 5)
    pool.extend(late)
    freecells.append(CELL_U[7])

    breg = {}
    nb = [0]
    free = pool

    def b_loads():
        ks = nb[0]
        nb[0] += 1
        breg[ks] = [free.pop(0) for _ in range(5)]
        vm.add(("o", ks), 5)
        out = [f"s_add_u32 {s(S_OK)}, {s(S_OB)}, {(ks // 4) * 4096}"] if ks % 4 == 0 else []
        return out + [f"buffer_load_dwordx4 {quad(breg[ks][mt])}, {v(V_OA + mt)}, {s(SRD_OO, 4)}, {s(S_OK)} offen offset:{(ks % 4) * 1024} sc1"
                      for mt in range(5)]

    def signal(lbl):
        return f"""
        s_waitcnt vmcnt(0)
        s_barrier
        s_cmp_lg_u32 {s(S_WAVE)}, 0
        s_cbranch_scc1 {lbl}
        s_lshr_b32 {s(S_T0)}, {s(S_H)}, 3
        s_lshl_b32 {s(S_T1)}, {s(S_B)}, 2
        s_add_u32 {s(S_T0)}, {s(S_T0)}, {s(S_T1)}
        s_lshl_b32 {s(S_T0)}, {s(S_T0)}, 8
        v_mov_b32 v8, 1
        s_mov_b64 exec, 1
        buffer_atomic_add v8, {v(V_Z)}, {s(SRD_FL, 4)}, {s(S_T0)} offen sc1
        s_mov_b64 exec, -1
        {lbl}:
        """

    t1(f"s_waitcnt vmcnt({vm.cnt('poll')})")
    t1(f"""
    v_readfirstlane_b32 {s(S_T1)}, {v(V_PL)}
    s_cmp_ge_u32 {s(S_IDX)}, 30
    s_cselect_b32 {s(S_T1)}, 0, {s(S_T1)}
    s_cmp_ge_u32 {s(S_T1)}, 8
    s_cbranch_scc1 L1_ready
    """)
    first_b = []
    while len(free) >= 5 and nb[0] < OPT["bdepth"]:
        first_b += b_loads()
    t1("; publish (every wave's O stores have been drained, then one atomic per workgroup), poll, load")
    t1(signal("L1_nosig"))
    stamp(t1, 6)
    t1(f"""
    s_cmp_ge_u32 {s(S_IDX)}, 30
    s_cbranch_scc1 L1_fin
    L1_poll:
    {POLL}
    s_sub_u32 {s(S_CNT)}, {s(S_CNT)}, 1
    s_cbranch_scc1 L1_go
    s_waitcnt vmcnt(0)
    v_readfirstlane_b32 {s(S_T1)}, {v(V_PL)}
    s_nop 0
    s_cmp_lt_u32 {s(S_T1)}, 8
    s_cbranch_scc1 L1_poll
    L1_go:
    """)
    stamp(t1, 7)
    t1.extend(first_b)
    t1("s_branch L1_mm")
    t1("L1_ready:")
    fast = Block()
    fast.extend(first_b)
    fast(signal("L1_nosig2"))
    stamp(fast, 6)
    stamp(fast, 7)
    fast("L1_mm:")
    t2 = Block()
    LM_ = OPT["lastm"]
    nd0 = nd[0]
    for ks in range(32 - LM_):
        t2(f"s_waitcnt vmcnt({vm.cnt(('o', ks))})")
        if OPT["stamp"] == 3 and ks % 4 == 0:
            stamp(t2, 52 + ks // 4)
        mf = []
        for nt in range(4):
            for mm in range(5):
                mt = mm if nt % 2 == 0 else 4 - mm
                d = a(4 * (5 * nt + mt), 4)
                mf.append(f"{MF} {d}, {quad(areg[ks][nt])}, {quad(breg[ks][mt])}, {'0' if ks == 0 else d}")
        vmem = []
        dsr = []
        done = max(i for i, x in enumerate(vm.ops) if x == ("o", ks)) + 1
        can_dma = nd[0] < 32 and freecells and (nd[0] - nd0) * 25 <= ks * (32 - nd0)
        if na < nd[0] and len(free) >= 9 and (na - ks <= 3 + (LM_ if na > 27 else 0) or ("wo", na) not in vm.ops[done:]):
            if ("wo", na) in vm.ops[done:]:
                t2(f"s_waitcnt vmcnt({vm.cnt(('wo', na))})")
            dsr = a_reads(na)
            na += 1
        assert na > ks + 1 or na == 32, (ks, na)
        if nb[0] < 32:
            vmem += b_loads()
        if can_dma:
            vmem += wo_grp()
        gaps = [[] for _ in range(20)]
        nv = sum(x.startswith("buffer") for x in vmem)
        step = max(1, 20 // max(nv, 1))
        gi = 0
        busy = set()
        for x in vmem:
            gaps[min(gi, 19)].append(x)
            if x.startswith("buffer"):
                busy.add(gi)
                gi += min(step, 4)
        gi = 0
        for x in dsr:
            while gi in busy and gi < 19:
                gi += 1
            gaps[min(gi, 19)].append(x)
            gi += 1
        t2.extend(interleave(mf, gaps))
        if dsr:
            t2("s_waitcnt lgkmcnt(0)")
            freecells.append(cellof[na - 1])
        free.extend(areg[ks] + breg[ks])
    assert na == 32 and nb[0] == 32 and nd[0] == 32
    VB = 48
    t2(f"v_add_u32 v8, {s(S_CB)}, {v(V_OD)}")
    t2("s_waitcnt vmcnt(0)")
    tiles = [(nt, mt) for mt in range(5) for nt in range(4)]
    mf = []
    for nt, mt in tiles:
        d = a(4 * (5 * nt + mt), 4)
        for ks in range(32 - LM_, 32):
            mf.append(f"{MF} {d}, {quad(areg[ks][nt])}, {quad(breg[ks][mt])}, {d}")
    wr = [f"ds_write_b128 v8, {a(4 * (5 * nt + mt), 4)} offset:{mt * 8192 + nt * 1024}" for nt, mt in tiles]
    gaps = [[] for _ in mf]
    gaps[0] = [f"s_lshl_b32 {s(S_T0)}, {s(S_WAVE)}, 10", f"v_add_u32 v10, {s(S_T0)}, {v(V_OD)}"]
    gaps[1] = [f"s_lshl_b32 {s(S_T0)}, {s(S_CT)}, 7", "v_add_u32 v11, 0x10000, v10"]
    gaps[2] = [f"s_lshl_b32 {s(S_T1)}, {s(S_WAVE)}, 5"]
    gaps[3] = [f"s_add_u32 {s(S_T0)}, {s(S_T0)}, {s(S_T1)}"]
    rest = []
    for i, w_ in enumerate(wr):
        g = LM_ * (i + 1) - 1 + 7
        if g < len(mf):
            gaps[g].append(w_)
        else:
            rest.append(w_)
    t2.extend(interleave(mf, gaps))
    stamp(t2, 24)
    t2("s_nop 3")
    t2.extend(rest[:-1])
    t2("s_nop 1")
    t2(rest[-1])
    t2("s_waitcnt lgkmcnt(0)")
    t2("s_barrier")

    def red_reads(mt):
        return [f"ds_read_b128 {v(VB + 16 * mt + 4 * w, 4)}, v{10 + w // 2} offset:{(w % 2) * 4096 + mt * 8192}" for w in range(4)]

    for mt in range(3):
        t2.extend(red_reads(mt))
    for mt in range(5):
        t2(f"s_waitcnt lgkmcnt({min(8, 4 * (4 - mt))})")
        if mt + 3 < 5:
            t2.extend(red_reads(mt + 3))
        r = VB + 16 * mt
        for i in range(0, 4, 2):
            t2(f"v_pk_add_f32 {v(r + i, 2)}, {v(r + i, 2)}, {v(r + 4 + i, 2)}")
            t2(f"v_pk_add_f32 {v(r + 8 + i, 2)}, {v(r + 8 + i, 2)}, {v(r + 12 + i, 2)}")
        for i in range(0, 4, 2):
            t2(f"v_pk_add_f32 {v(r + i, 2)}, {v(r + i, 2)}, {v(r + 8 + i, 2)}")
        t2(f"v_cvt_pk_bf16_f32 {v(r + 4)}, {v(r)}, {v(r + 1)}")
        t2(f"v_cvt_pk_bf16_f32 {v(r + 5)}, {v(r + 2)}, {v(r + 3)}")
        t2(f"buffer_store_dwordx2 {v(r + 4, 2)}, {v(V_OUT)}, {s(SRD_OUT, 4)}, {s(S_T0)} offen")
        t2(f"s_add_u32 {s(S_T0)}, {s(S_T0)}, {16 * 1280}")
    return t1, fast, t2


HEADER = """; Fused MHA block: q = x@wq, softmax(q k^T / sqrt(128)) v, out = o@wo   (gfx950, generated by gen/gen.py)
; Kernarg: 0 x, 8 k_cache, 16 v_cache, 24 wq, 32 wo, 40 out, 48 debug, 56 ws
; @launch grid=(256,1,1) block=(256,1,1) lds=163840
.amdgcn_target "amdgcn-amd-amdhsa--gfx950"
.text
"""


def kd(name, vg, acc):
    return f""".p2align 6
.amdhsa_kernel {name}
  .amdhsa_next_free_vgpr {vg}
  .amdhsa_next_free_sgpr 102
  .amdhsa_accum_offset {acc}
  .amdhsa_group_segment_fixed_size 0
  .amdhsa_kernarg_size 64
  .amdhsa_user_sgpr_count 2
  .amdhsa_user_sgpr_kernarg_segment_ptr 1
  .amdhsa_system_sgpr_workgroup_id_x 1
.end_amdhsa_kernel
"""


def main():
    k1 = kernel()
    txt = HEADER
    txt += f".globl {KNAME}\n.p2align 8\n.type {KNAME},@function\n" + k1.text()
    txt += '.section .rodata,"a"\n' + kd(KNAME, 512, 256)
    open(sys.argv[1], "w").write(txt)


main()
```

```python
import math
import struct
import sys
from asmlib import *

OPT = dict(stamp=0, nodma=0, diagpace=0, adk=0, npre=15, pollat=10, bdepth=5, lastm=3, qrot=1, ewh=2, wmid=1)
for arg in sys.argv[2:]:
    k, val = arg.split("=")
    assert k in OPT, k
    OPT[k] = int(val)


def f32(x):
    return "0x%08x" % struct.unpack("<I", struct.pack("<f", x))[0]


SCALE = math.log2(math.e) / math.sqrt(128.0)
MF = "v_mfma_f32_16x16x32_bf16"
KNAME = "standalone__mha_block_cached__near_ridge_kernel"

S_JLIM, S_JWRAP = 0, 1
S_WAVE = 3
SRD_CODE = 4
SRD_J, SRD_K, SRD_V, SRD_O = 8, 16, 20, 24
S_JM = 12
S_J0, S_J1, S_JDG, S_JIA, S_JIB = 28, 29, 30, 31, 32
S_WOO, S_CT = 33, 35
S_OTAB = 36
S_OB, S_WB = 44, 45
S_IDX, S_XC, S_B2 = 46, 47, 48
S_W2048 = 49
S_KV = 50
S_CNT = 51
S_T0, S_T1, S_T2 = 52, 53, 54
S_OK = 55
S_SCALE = 56
S_POLL, S_INIT = 58, 59
S_STAMP = 60
SRD_WO, SRD_OO, SRD_OUT, SRD_FL, SRD_DBG = 64, 68, 72, 76, 80
S_B, S_H, S_SI, S_VV, S_W4096 = 92, 93, 94, 95, 96

V_CT, V_IN = 12, 14
V_KA = 16
V_VA = 20
V_KD = 28
V_VD = 32
V_JD = 34
V_WA = 38
V_XA = 42
V_AA = 34
V_Q = 48
V_S = 112
V_P = 144
V_NM = 208
V_LM = 224
V_QACC = 112
V_ST = 240
V_OD = 243
V_WDD = 244
V_ONE = 248
V_OS = 254
V_Z = 255

A_O = 0
A_K = 128
A_V = 160
A_K0 = 192
A_QA = 128
A_QB = 192

LDS_V = 65536
LDS_WQ = 131072
XBUF = [32768, LDS_V + 32768]


def unit(t):
    return (t % 8) * 8192


nstamp = [0]


def stamp(b, lane=None, force=False):
    if not OPT["stamp"]:
        return
    if OPT["stamp"] == 4 and not force and lane != 0:
        return
    b(f"s_memrealtime {s(S_STAMP, 2)}")
    b(f"s_memtime {s(S_STAMP + 2, 2)}")
    b("s_waitcnt lgkmcnt(0)")
    b(f"v_writelane_b32 {v(V_ST)}, {s(S_STAMP)}, {lane}")
    b(f"v_writelane_b32 {v(V_ST + 1)}, {s(S_STAMP + 2)}, {lane}")


def stamp_store(b, endlabel):
    b(f"""
    s_cmp_lg_u32 {s(S_WAVE)}, 0
    s_cbranch_scc1 {endlabel}
    s_add_u32 s8, s90, 0x4000000
    s_addc_u32 s9, s91, 0
    s_mov_b32 s10, 0x100000
    s_mov_b32 s11, 0x20000
    s_lshl_b32 s12, s2, 9
    v_lshlrev_b32 v1, 3, v0
    buffer_store_dwordx2 {v(V_ST, 2)}, v1, s[8:11], s12 offen
    """)


class VM:
    def __init__(self):
        self.ops = []

    def add(self, tag, n=1):
        self.ops += [tag] * n

    def cnt(self, *tags):
        last = max(i for i, x in enumerate(self.ops) if x in tags)
        return min(63, len(self.ops) - 1 - last)


def k_dma(n, soff):
    return f"buffer_load_dwordx4 {v(V_KD + n)}, {s(SRD_K, 4)}, {soff} offen offset:{1024 * n} nt lds"


def v_dma(n, soff):
    return f"buffer_load_dwordx4 {v(V_VD + n % 2)}, {s(SRD_V, 4)}, {soff} offen offset:{1024 * n} nt lds"


CTOUCH = f"buffer_load_dword v6, {v(V_CT)}, {s(SRD_CODE, 4)}, 0 offen"


def kv_pair(u, isv):
    r = S_VV if isv else S_KV
    return ([f"s_add_u32 m0, {s(S_W4096)}, {(LDS_V if isv else 0) + unit(u)}"]
            + [(v_dma if isv else k_dma)(n, s(r)) for n in range(4)] + [f"s_add_u32 {s(r)}, {s(r)}, 16384"])


def k_read(t, kt, st, base=A_K):
    return f"ds_read_b128 {a(base + 16 * kt + 4 * st, 4)}, {v(V_KA + st)} offset:{unit(t) + 4096 * kt}"


def v_reads(u, hf, base=A_V):
    return [f"ds_read_b64_tr_b16 {a(base + 8 * dd + 4 * sub + 2 * kt, 2)}, {v(V_VA + 4 * hf + dd)} offset:{unit(u + sub) + 4096 * kt}"
            for dd in range(4) for sub in range(2) for kt in range(2)]


def qk_all(zero=False, base=A_K):
    out = []
    for i, (qt, kt) in enumerate([(0, 0), (0, 1), (1, 1), (1, 0), (2, 0), (2, 1), (3, 1), (3, 0)]):
        d = v(V_S + 8 * qt + 4 * kt, 4)
        for n, st in enumerate([0, 1, 2, 3] if i % 2 == 0 else [3, 2, 1, 0]):
            c = d if n else ("0" if zero else v(V_NM + 4 * qt, 4))
            out.append(f"{MF} {d}, {a(base + 16 * kt + 4 * st, 4)}, {v(V_Q + 16 * qt + 4 * st, 4)}, {c}")
    return out


def preg(t, qt):
    return v(V_P + 16 * (t % 4) + 4 * qt, 4)


def pv(qt, dt, t, vreg):
    d = a(A_O + 32 * qt + 4 * dt, 4)
    return f"{MF} {d}, {preg(t, qt)}, {a(vreg, 4)}, {d}"


def ones_mf(qt, t):
    d = v(V_LM + 4 * qt, 4)
    return f"{MF} {d}, {preg(t, qt)}, {v(V_ONE, 4)}, {d}"


def pv_chains(order, u, base_of):
    out = []
    for i, (qt, dt) in enumerate(order):
        for sub in ((0, 1) if i % 2 == 0 else (1, 0)):
            out.append(pv(qt, dt, u + sub, base_of(dt) + 8 * (dt % 4) + 4 * sub))
    return out


def sm_exp(e):
    r = v(V_S + e)
    return f"v_exp_f32 {r}, {r}"


def sm_cvt(e, t):
    return f"v_cvt_pk_bf16_f32 {v(V_P + 16 * (t % 4) + e // 2)}, {v(V_S + e - 1)}, {v(V_S + e)}"


NG = 68
EG = [10 + 2 * e for e in range(32)]
V_GAPS = list(range(1, 32, 2))
D_GAPS = [39, 45, 51, 57]
K_GAPS = [41, 43, 47, 49, 53, 55, 59, 61]
G_VWAIT, G_WAIT, G_BAR, G_M0, G_INC, G_KWAIT = 30, 36, 37, 38, 58, 67
G_CNT, G_CMP = 62, 64
CG = {}
for e in range(1, 32, 2):
    g = EG[e] + 1
    while g % NG in D_GAPS:
        g += 2
    CG[e] = g
XD_GAPS = [6, 12, 18, 24]


def head_of(i):
    return (i // 4 + (7 if OPT["wmid"] else 0)) % 8


def wo_off(i):
    return f"s_add_u32 {s(S_WOO)}, {s(S_WB)}, {(head_of(i) * 128 + (i % 4) * 4) * 1280}"


def wo_dma(n):
    return f"buffer_load_dwordx4 {v(V_WDD + n)}, {s(SRD_WO, 4)}, {s(S_WOO)} offen offset:{1024 * n} lds"


CX = [(S_XC, 0), (S_XC, 4096)]
CK = [(S_W4096, 16384 * i) for i in range(4)]
CV = [(S_W4096, LDS_V + 16384 * i) for i in range(4)]
NREG0 = 4
CELL0 = [CX[0], CX[1], CX[0], CK[0], CX[1], CK[1], CV[0], CX[0], CK[2], CV[1], CK[0], CK[3], CV[2]]


def quad(q, off=0, n=4):
    kind, base = q
    return (a if kind == "a" else v)(base + off, n)


def wo_reads(quads, cell):
    wdw = 2 if cell[0] == S_XC else cell[1] // LDS_V
    return [f"ds_read_b64_tr_b16 {quad(quads[nt], 2 * e, 2)}, {v(V_AA + 4 * wdw + nt)} offset:{cell[1] % LDS_V + 2048 * e}"
            for nt in range(4) for e in range(2)]


AREG0 = {i: [("a", 192 + 16 * i + 4 * nt) for nt in range(4)] for i in range(NREG0)}


def cell_m0(c):
    return f"s_add_u32 m0, {s(c[0])}, {c[1]}"


def subtile(t, vm=None, last=False):
    hf = t % 2
    u = t - 2 - hf
    order = [(qq if dd % 2 == 0 else 3 - qq, 4 * hf + dd) for dd in range(4) for qq in range(4)]
    mf = qk_all() + pv_chains(order, u, lambda dt: A_V)
    mf += [ones_mf(2 * hf, u), ones_mf(2 * hf, u + 1), ones_mf(2 * hf + 1, u + 1), ones_mf(2 * hf + 1, u)]
    gaps = [[] for _ in range(NG)]
    for r, g in zip(v_reads(u, hf), V_GAPS):
        gaps[g].append(r)
    gaps[G_VWAIT].append("s_waitcnt lgkmcnt(2)")
    if last and t == 7:
        fg = [41, 43, 47, 49, 53, 55, 59, 61, 63, 65, 40, 44, 48, 52, 56, 60]
        for r, g in zip(v_reads(6, 0, A_K), sorted(fg)):
            gaps[g].append(r)
    else:
        for r, g in zip([k_read(t + 1, kt, st) for kt in range(2) for st in range(4)], K_GAPS):
            gaps[g].append(r)
        gaps[G_KWAIT].append("s_waitcnt lgkmcnt(0)")

    def wo_group(i, g_pre, dg):
        vm.add(("wo", i), 4)
        gaps[dg[0] - g_pre[0]].append(wo_off(i))
        gaps[dg[0] - g_pre[1]].append(cell_m0(CELL0[i]))
        for n in range(4):
            gaps[dg[n]].append(wo_dma(n))

    def kv_put(ops):
        for x, g in zip(ops, [G_M0] + D_GAPS + [G_INC]):
            gaps[g].append(x)

    n = 16 if hf else None
    if last:
        if t in (1, 2, 4, 5, 6):
            wo_group({1: 2, 2: 4, 4: 6, 5: 7, 6: 9}[t], [4, 2], XD_GAPS)
        if t == 0:
            gaps[8].append(f"buffer_load_dword {v(V_IN)}, {v(V_Z)}, {s(SRD_DBG, 4)}, 0 offen offset:128 sc1")
            vm.add("init")
        rd0 = {0: 0, 4: 2, 5: 3}.get(t)
        if rd0 is not None:
            fg = [40, 42, 44, 48, 52, 54, 63, 65] + [56, 58, 60, 62, 63, 64, 65, 66]
            rr = [x for i in ([0, 1] if rd0 == 0 else [rd0]) for x in wo_reads(AREG0[i], CELL0[i])]
            for r, g in zip(rr, sorted(fg[:len(rr)])):
                gaps[g].append(r)
        tags = ([("K", t + 57), ("V", t + 55)] if hf else []) + ([("wo", rd0)] if rd0 else [])
        n = vm.cnt(*tags) if tags else None
    gaps[G_WAIT].append("s_waitcnt lgkmcnt(0)" if n is None else f"s_waitcnt vmcnt({n}) lgkmcnt(0)")
    if hf:
        gaps[G_BAR].append("s_barrier")
    if last:
        if t in (0, 2):
            kv_put(kv_pair(t + 4, 1))
            vm.add(("V", t + 60), 4)
        elif t != 4:
            wo_group({1: 3, 3: 5, 5: 8, 6: 10, 7: 11}[t], [5, 1], D_GAPS)
    else:
        kv_put(kv_pair(t + 7, 0) if hf else kv_pair(t + 4, 1))
        if t == 3:
            gaps[65].append(CTOUCH)
        if t == 7:
            gaps[G_CNT].append(f"s_sub_u32 {s(S_CNT)}, {s(S_CNT)}, 1")
            gaps[G_CMP].append(f"s_cmp_gt_u32 {s(S_CNT)}, {0 if OPT['wmid'] else 1}")
    for e in range(32):
        gaps[EG[e] % NG].append(sm_exp(e))
    for e, g in CG.items():
        gaps[g % NG].append(sm_cvt(e, t if g < NG else t - 1))
    cand = [g for g in range(NG) if len(gaps[g]) == 2 and gaps[g][0].startswith("ds_") and gaps[g][1].startswith("v_cvt")]
    k = min(OPT["adk"], len(cand))
    for i in range(k):
        gaps[cand[(i * len(cand)) // k]].reverse()
    for i in range(OPT["diagpace"]):
        gaps[(2 * i) % NG].append("s_nop 1")
    if OPT["nodma"]:
        gaps = [[x for x in g if not x.startswith("buffer")] for g in gaps]
    res = interleave(mf, gaps)
    if OPT["stamp"] == 4:
        sb = Block()
        sb(f"s_mov_b32 m0, {s(S_SI)}")
        stamp(sb, "m0", True)
        sb(f"s_add_u32 {s(S_SI)}, {s(S_SI)}, 1")
        if not last and t == 7:
            sb(f"s_cmp_gt_u32 {s(S_CNT)}, {0 if OPT['wmid'] else 1}")
        res += sb.lines
    return res


def flat(lst):
    out = []
    for i, x in enumerate(lst):
        out.append(x)
        if " m0," in x and i + 1 < len(lst) and lst[i + 1].startswith("buffer"):
            out.append("s_nop 0")
    return out


def conv_q(qt, packed):
    out = []
    for st in range(4):
        acc = V_QACC + 4 * (8 * qt + 2 * st)
        if packed:
            out += [f"v_pk_mul_f32 {v(acc + 2 * i, 2)}, {v(acc + 2 * i, 2)}, {s(S_SCALE, 2)}" for i in range(4)]
        else:
            out += [f"v_mul_f32 {v(acc + i)}, {s(S_SCALE)}, {v(acc + i)}" for i in range(8)]
        out += [f"v_cvt_pk_bf16_f32 {v(V_Q + 16 * qt + 4 * st + i)}, {v(acc + 2 * i)}, {v(acc + 2 * i + 1)}" for i in range(4)]
    return out


def spread(gaps, dm, start, step):
    gi = start
    si = 0
    busy = set()
    for d in dm:
        if d.startswith("buffer"):
            gaps[gi].append(d)
            busy.add(gi)
            si = gi + 1
            gi += step
        else:
            g = min(si, gi - 1, len(gaps) - 1)
            gaps[g].append(d)
            si = g + 1
    return busy


def job(i):
    ld = [f"buffer_load_dwordx4 {v(V_JD + n)}, {s(SRD_J, 4)}, {{}} offen offset:{1024 * n} lds" for n in range(4)]
    out = [f"s_mov_b32 m0, {s(S_JM + i % 4)}", f"s_add_u32 {s(S_J1)}, {s(S_J0)}, {s(S_JDG)}"]
    out += [x.format(s(S_J0)) for x in ld]
    out += [f"s_add_u32 m0, {s(S_JM + i % 4)}, 4096", f"s_add_u32 {s(S_J0)}, {s(S_J0)}, {s(S_JIA if i % 2 == 0 else S_JIB)}"]
    out += [ld[0].format(s(S_J1))]
    if i % 2 == 1:
        out += [f"s_cmp_ge_u32 {s(S_J0)}, {s(S_JLIM)}", f"s_cselect_b32 {s(S_T0)}, {s(S_JWRAP)}, 0",
                f"s_sub_u32 {s(S_J0)}, {s(S_J0)}, {s(S_T0)}"]
    out += [x.format(s(S_J1)) for x in ld[1:]]
    return out


def kv_half(i):
    u, isv, hf = i // 4, (i % 4) // 2, i % 2
    out = [f"s_mov_b32 m0, {(LDS_V if isv else 0) + unit(u) + 4096 * hf}", f"s_mov_b32 {s(S_J0)}, {u * 8192 + 4096 * hf}"]
    return out + [(v_dma if isv else k_dma)(n, s(S_J0)) for n in range(4)]


def q_areads(j):
    base = A_QA + 32 * (j % 2)
    return [f"ds_read_b64_tr_b16 {a(base + 4 * (2 * st + e) + 2 * jj, 2)}, {v(V_WA + st)} offset:{(j % 4) * 8192 + 1024 * jj + 8 * e}"
            for st in range(4) for e in range(2) for jj in range(2)]


def q_breads(stg):
    base = A_QB + 32 * (stg % 2)
    return [f"ds_read_b128 {a(base + 16 * ks + 4 * qt, 4)}, {v(V_XA + 2 * (stg % 2) + ks)} offset:{2048 * qt}"
            for ks in range(2) for qt in range(4)]


def q_mfmas(j):
    ab = A_QA + 32 * (j % 2)
    bb = A_QB + 32 * ((j // 2) % 2) + 16 * (j % 2)
    out = []
    for qt in range(4):
        for dd in range(8):
            dtile = dd if qt % 2 == 0 else 7 - dd
            d = v(V_QACC + 4 * (8 * qt + dtile), 4)
            out.append(f"{MF} {d}, {a(ab + 4 * dtile, 4)}, {a(bb + 4 * qt, 4)}, {'0' if j == 0 else d}")
    return out


def q_step(b, j, dm, wait, zero):
    if wait is not None:
        b(f"s_waitcnt vmcnt({wait})")
    b("s_barrier")
    if j == 1:
        stamp(b, 1)
    if OPT["stamp"] == 3:
        stamp(b, 32 + j)
    rd = q_areads(j)
    if j % 2 == 0:
        br = q_breads(j // 2)
        rd = br[:4] + rd + br[4:]
    if j == 0:
        b.extend(rd)
        b.extend(flat(dm))
    else:
        gaps = [[] for _ in range(32)]
        nd = sum(x.startswith("buffer") for x in dm)
        busy = spread(gaps, dm, 2, 4 if nd > 6 else 5)
        fr = [g for g in range(30) if g not in busy]
        extra = len(rd) - len(fr)
        gi = 0
        for r in rd:
            lone = not gaps[fr[gi]]
            gaps[fr[gi]].append(r)
            if extra > 0 and sum(x.startswith("ds_") for x in gaps[fr[gi]]) == 1:
                extra -= 1
            else:
                if lone and zero:
                    gaps[fr[gi]].append(zero.pop(0))
                gi += 1
        b.extend(interleave(q_mfmas(j - 1), gaps))
    b("s_waitcnt lgkmcnt(0)")


JSPLIT = 18


def qproj_role(role3):
    b = Block()
    zero = [f"v_accvgpr_write_b32 {a(A_O + i)}, 0" for i in range(128)]
    for j in range(JSPLIT):
        if role3:
            dm = kv_half(j - 1) if 1 <= j <= 16 else []
            wait = 48 if j >= 13 else None
        else:
            dm = job(j + 3) if j + 3 < 20 else []
            wait = 8 if j % 2 == 0 else None
        q_step(b, j, dm, wait, zero)
    assert not zero
    return b


def qproj_end():
    b = Block()
    q_step(b, 18, kv_pair(4, 0), 0, [])
    q_step(b, 19, kv_pair(4, 1), None, [])
    gaps = [[] for _ in range(32)]
    kr = [k_read(0, kt, st, A_K0) for kt in range(2) for st in range(4)] + [k_read(2, kt, st) for kt in range(2) for st in range(4)]
    busy = spread(gaps, kv_pair(6, 0), 2, 3)
    gi = 0
    for r in kr[:9]:
        while gi in busy:
            gi += 1
        gaps[gi].append(r)
        gi += 1
    cv = conv_q(0, False)
    kr = kr[9:]
    for g in range(13, 32):
        if kr:
            gaps[g] += [kr.pop(0), cv.pop(0)]
        else:
            gaps[g] += [cv.pop(0), cv.pop(0)]
    b.extend(interleave(q_mfmas(19), gaps))
    for kt in range(2):
        for st in range(4):
            b(k_read(1, kt, st, A_K0 + 32))
    b.extend(cv)
    return b


def kernel():
    b = Block()
    b(KNAME + ":")
    b(f"""
    s_load_dwordx4 s[36:39], s[0:1], 0
    s_load_dwordx4 s[40:43], s[0:1], 16
    s_load_dwordx4 s[84:87], s[0:1], 32
    s_load_dwordx4 s[88:91], s[0:1], 48
    s_cmp_ge_u32 s2, 256
    s_cbranch_scc1 L1_end
    v_lshrrev_b32 v1, 6, v0
    v_and_b32 v0, 63, v0
    v_readfirstlane_b32 {s(S_WAVE)}, v1
    ; attention problem of this workgroup: b = 4*(j&1) + idx%4, h = 8*(j>>1) + idx/4  (j = id%8, idx = id/8)
    s_and_b32 {s(S_T0)}, s2, 7
    s_lshr_b32 {s(S_IDX)}, s2, 3
    s_and_b32 {s(S_B)}, {s(S_T0)}, 1
    s_lshl_b32 {s(S_B)}, {s(S_B)}, 2
    s_and_b32 {s(S_H)}, {s(S_IDX)}, 3
    s_add_u32 {s(S_B)}, {s(S_B)}, {s(S_H)}
    s_lshr_b32 {s(S_H)}, {s(S_T0)}, 1
    s_lshl_b32 {s(S_H)}, {s(S_H)}, 3
    s_lshr_b32 {s(S_T0)}, {s(S_IDX)}, 2
    s_add_u32 {s(S_H)}, {s(S_H)}, {s(S_T0)}
    s_lshl_b32 {s(S_W2048)}, {s(S_WAVE)}, 11
    ; instruction prefetch: every workgroup pulls one 8 KB chunk of this kernel's code into its L2 (16 lines per wave)
    s_getpc_b64 {s(SRD_CODE, 2)}
    L1_pc:
    s_sub_u32 {s(SRD_CODE)}, {s(SRD_CODE)}, L1_pc-{KNAME}
    s_subb_u32 {s(SRD_CODE + 1)}, {s(SRD_CODE + 1)}, 0
    s_mov_b32 {s(SRD_CODE + 2)}, L1_end-{KNAME}
    s_mov_b32 {s(SRD_CODE + 3)}, 0x20000
    s_and_b32 {s(S_T0)}, {s(S_IDX)}, 7
    s_lshl_b32 {s(S_T0)}, {s(S_T0)}, 13
    s_add_u32 {s(S_T0)}, {s(S_T0)}, {s(S_W2048)}
    ; lane fields: v1 = G = l/16, v2 = l%16, v3 = l/8, v4 = c = l%4, v5 = l%8, v7 = r = (l/4)%4
    v_and_b32 v2, 15, v0
    v_lshrrev_b32 v1, 4, v0
    v_lshl_add_u32 {v(V_CT)}, v2, 7, {s(S_T0)}
    v_lshrrev_b32 v3, 3, v0
    v_and_b32 v5, 7, v0
    {CTOUCH}
    ; job voffsets.  wq (wave 0): (4n + G)*8192 + ((l%16) ^ (G<<2))*16 - 1024n
    ;                x (waves 1, 2): (8n + l/8)*1280 + ((l%8) ^ (4(n&1) + G))*16 - 1024n
    v_lshlrev_b32 v9, 2, v1
    v_xor_b32 v9, v2, v9
    v_lshlrev_b32 v9, 4, v9
    v_lshl_add_u32 v9, v1, 13, v9
    v_xor_b32 v8, v5, v1
    v_lshlrev_b32 v8, 4, v8
    v_mul_u32_u24 v10, 1280, v3
    v_xor_b32 v11, 64, v8
    v_add_u32 v8, v10, v8
    v_add_u32 v11, v10, v11
    s_mov_b32 {s(S_T1)}, {8 * 1280 - 1024}
    s_cmp_eq_u32 {s(S_WAVE)}, 0
    s_cselect_b64 vcc, -1, 0
    s_cselect_b32 {s(S_T1)}, {4 * 8192 - 1024}, {s(S_T1)}
    s_lshl_b32 {s(S_T2)}, {s(S_T1)}, 1
    v_cndmask_b32 {v(V_JD)}, v8, v9, vcc
    v_cndmask_b32 v11, v11, v9, vcc
    v_add_u32 {v(V_JD + 1)}, {s(S_T1)}, v11
    v_add_u32 {v(V_JD + 2)}, {s(S_T2)}, {v(V_JD)}
    v_add_u32 {v(V_JD + 3)}, {s(S_T2)}, {v(V_JD + 1)}
    ; start stage of the k loop: (h%8 + 3*(b%4)) % 10, so that workgroups sharing x or wq fetch for each other
    s_and_b32 {s(S_T0)}, {s(S_IDX)}, 3
    s_mul_i32 {s(S_T0)}, {s(S_T0)}, {3 * OPT["qrot"]}
    s_lshr_b32 {s(S_T1)}, {s(S_IDX)}, 2
    s_mul_i32 {s(S_T1)}, {s(S_T1)}, {OPT["qrot"]}
    s_add_u32 {s(S_T0)}, {s(S_T0)}, {s(S_T1)}
    s_cmp_ge_u32 {s(S_T0)}, 10
    s_cselect_b32 {s(S_T1)}, 10, 0
    s_sub_u32 {s(S_T0)}, {s(S_T0)}, {s(S_T1)}
    s_sub_u32 {s(S_T1)}, {s(S_WAVE)}, 1
    s_mul_i32 {s(S_CNT)}, {s(S_T1)}, {128 * 1280}
    s_lshl_b32 {s(S_J0)}, {s(S_T0)}, 7
    s_add_u32 {s(S_J0)}, {s(S_J0)}, {s(S_CNT)}
    s_add_u32 {s(S_CNT)}, {s(S_CNT)}, 1280
    s_mov_b32 {s(S_KV)}, 1280
    s_mov_b32 {s(S_JDG)}, {32 * 1280}
    s_mov_b32 {s(S_JIA)}, {64 * 1280}
    s_mov_b32 {s(S_JIB)}, {128 - 64 * 1280}
    s_lshl_b32 {s(S_T1)}, {s(S_T1)}, 14
    s_add_u32 {s(S_JM)}, {s(S_T1)}, {XBUF[0]}
    s_add_u32 {s(S_JM + 1)}, {s(S_T1)}, {XBUF[0] + 8192}
    s_add_u32 {s(S_JM + 2)}, {s(S_T1)}, {XBUF[1]}
    s_add_u32 {s(S_JM + 3)}, {s(S_T1)}, {XBUF[1] + 8192}
    s_mul_i32 {s(S_T2)}, {s(S_B)}, 307200
    s_mov_b32 {s(SRD_J + 2)}, 307200
    s_mov_b32 {s(SRD_J + 3)}, 0x20000
    s_cmp_lg_u32 {s(S_WAVE)}, 0
    s_cbranch_scc1 L1_xjob
    s_lshl_b32 {s(S_J0)}, {s(S_T0)}, 19
    s_mov_b32 {s(S_CNT)}, {640 * 8192}
    s_mov_b32 {s(S_KV)}, {640 * 8192}
    s_mov_b32 {s(S_JDG)}, {16 * 8192}
    s_mov_b32 {s(S_JIA)}, {32 * 8192}
    s_mov_b32 {s(S_JIB)}, {32 * 8192}
    s_mov_b32 {s(S_JM)}, {LDS_WQ}
    s_mov_b32 {s(S_JM + 1)}, {LDS_WQ + 8192}
    s_mov_b32 {s(S_JM + 2)}, {LDS_WQ + 2 * 8192}
    s_mov_b32 {s(S_JM + 3)}, {LDS_WQ + 3 * 8192}
    s_lshl_b32 {s(S_T2)}, {s(S_H)}, 8
    s_sub_u32 {s(SRD_J + 2)}, {640 * 8192}, {s(S_T2)}
    L1_xjob:
    s_waitcnt lgkmcnt(0)
    s_mov_b32 {s(S_JLIM)}, {s(S_CNT)}
    s_mov_b32 {s(S_JWRAP)}, {s(S_KV)}
    s_cmp_eq_u32 {s(S_WAVE)}, 0
    s_cselect_b32 {s(SRD_J)}, s42, s36
    s_cselect_b32 {s(SRD_J + 1)}, s43, s37
    s_add_u32 {s(SRD_J)}, {s(SRD_J)}, {s(S_T2)}
    s_addc_u32 {s(SRD_J + 1)}, {s(SRD_J + 1)}, 0
    """)
    stamp(b, 0)
    b(f"""
    s_mov_b32 {s(SRD_WO)}, s84
    s_mov_b32 {s(SRD_WO + 1)}, s85
    s_mov_b32 {s(SRD_WO + 2)}, {4096 * 1280}
    s_mov_b32 {s(SRD_WO + 3)}, 0x20000
    s_cmp_eq_u32 {s(S_WAVE)}, 3
    s_cbranch_scc1 L1_w3
    """)
    jobs0 = Block()
    jobs0.extend(flat(job(0) + job(1) + job(2)))
    jobs0("s_branch L1_nojob")
    jobs0("L1_w3:")
    w3 = Block()
    if True:
        nl = (8 - OPT["ewh"]) * 20
        w3(f"""
        ; wave 3 pulls this workgroup's share of wo (heads {OPT["ewh"]}..7 of every group of 8) into the last-level cache
        s_lshr_b32 {s(S_T0)}, s2, 6
        s_mul_i32 {s(S_T2)}, {s(S_T0)}, {1024 * 1280}
        s_and_b32 {s(S_T0)}, s2, 63
        s_mul_i32 {s(S_T0)}, {s(S_T0)}, {nl * 128}
        s_add_u32 {s(S_T2)}, {s(S_T2)}, {s(S_T0)}
        s_add_u32 {s(S_T2)}, {s(S_T2)}, {OPT["ewh"] * 128 * 1280}
        v_lshlrev_b32 v8, 7, v0
        """)
        done_ = 0
        i_ = 0
        while done_ < nl:
            if nl - done_ < 64:
                w3(f"v_min_u32 v8, {(nl - done_ - 1) * 128}, v8")
            w3(f"buffer_load_dword {v(V_JD + i_)}, v8, {s(SRD_WO, 4)}, {s(S_T2)} offen")
            w3(f"s_add_u32 {s(S_T2)}, {s(S_T2)}, 8192")
            done_ += 64
            i_ += 1
    b2 = Block()
    b2("L1_nojob:")
    b2(f"""
    ; hand-off counters live in ws + 32 MB (256 B apart); wave 3 of workgroups 0..31 clears one each
    s_add_u32 {s(SRD_FL)}, s90, 0x2000000
    s_addc_u32 {s(SRD_FL + 1)}, s91, 0
    s_mov_b32 {s(SRD_FL + 2)}, 8192
    s_mov_b32 {s(SRD_FL + 3)}, 0x20000
    s_mov_b32 {s(SRD_DBG)}, s88
    s_mov_b32 {s(SRD_DBG + 1)}, s89
    s_mov_b32 {s(SRD_DBG + 2)}, 256
    s_mov_b32 {s(SRD_DBG + 3)}, 0x20000
    v_mov_b32 {v(V_Z)}, 0
    s_xor_b32 {s(S_T0)}, {s(S_WAVE)}, 3
    s_lshl_b32 {s(S_T0)}, {s(S_T0)}, 5
    s_add_u32 {s(S_INIT)}, {s(S_T0)}, s2
    s_cmp_ge_u32 {s(S_INIT)}, 32
    s_cbranch_scc1 L1_noclr
    s_lshl_b32 {s(S_T0)}, s2, 8
    s_mov_b64 exec, 1
    buffer_store_dword {v(V_Z)}, {v(V_Z)}, {s(SRD_FL, 4)}, {s(S_T0)} offen sc1 ; rare
    s_mov_b64 exec, -1
    L1_noclr:
    s_lshl_b32 {s(S_XC)}, {s(S_WAVE)}, 13
    v_and_b32 v4, 3, v0
    v_bfe_u32 v7, v0, 2, 2
    v_lshl_add_u32 v8, v1, 3, v7
    v_lshlrev_b32 v8, 8, v8
    v_lshl_add_u32 v8, v7, 6, v8
    v_lshl_add_u32 v8, v4, 4, v8
    v_add_u32 {v(V_WA)}, {LDS_WQ}, v8
    v_xor_b32 {v(V_WA + 1)}, 64, {v(V_WA)}
    v_xor_b32 {v(V_WA + 2)}, 0x80, {v(V_WA)}
    v_xor_b32 {v(V_WA + 3)}, 0xc0, {v(V_WA)}
    ; x read: buffer + w*8192 + (l%16)*128 + ((G ^ ((l%16)>>1))*16) ^ (ks*64)
    v_lshrrev_b32 v8, 1, v2
    v_xor_b32 v8, v1, v8
    v_lshlrev_b32 v8, 4, v8
    v_lshl_add_u32 v8, v2, 7, v8
    v_add_u32 v8, {s(S_XC)}, v8
    v_add_u32 {v(V_XA)}, {XBUF[0]}, v8
    v_xor_b32 {v(V_XA + 1)}, 64, {v(V_XA)}
    v_add_u32 {v(V_XA + 2)}, {XBUF[1]}, v8
    v_xor_b32 {v(V_XA + 3)}, 64, {v(V_XA + 2)}
    s_add_u32 {s(S_XC)}, {s(S_XC)}, {LDS_WQ}
    s_lshl_b32 {s(S_T0)}, {s(S_B)}, 5
    s_add_u32 {s(S_T0)}, {s(S_T0)}, {s(S_H)}
    s_lshl_b32 {s(S_T0)}, {s(S_T0)}, 19
    s_add_u32 {s(SRD_K)}, s38, {s(S_T0)}
    s_addc_u32 {s(SRD_K + 1)}, s39, 0
    s_mov_b32 {s(SRD_K + 2)}, 524288
    s_mov_b32 {s(SRD_K + 3)}, 0x20000
    s_add_u32 {s(SRD_V)}, s40, {s(S_T0)}
    s_addc_u32 {s(SRD_V + 1)}, s41, 0
    s_mov_b32 {s(SRD_V + 2)}, 524288
    s_mov_b32 {s(SRD_V + 3)}, 0x20000
    ; K DMA voffsets: G*256 + ((l%16) ^ (4n + G))*16 ; V: G*256 + ((l%16) ^ ((4(n&1) + G)<<1))*16
    s_lshl_b32 {s(S_W4096)}, {s(S_WAVE)}, 12
    s_add_u32 {s(S_KV)}, {s(S_W4096)}, {4 * 8192}
    s_mov_b32 {s(S_VV)}, {s(S_KV)}
    v_xor_b32 v8, v2, v1
    v_lshlrev_b32 v8, 4, v8
    v_lshl_add_u32 {v(V_KD)}, v1, 8, v8
    v_xor_b32 {v(V_KD + 1)}, 64, {v(V_KD)}
    v_xor_b32 {v(V_KD + 2)}, 0x80, {v(V_KD)}
    v_xor_b32 {v(V_KD + 3)}, 0xc0, {v(V_KD)}
    v_lshlrev_b32 v9, 1, v1
    v_xor_b32 v9, v2, v9
    v_lshlrev_b32 v9, 4, v9
    v_lshl_add_u32 {v(V_VD)}, v1, 8, v9
    v_xor_b32 {v(V_VD + 1)}, 0x80, {v(V_VD)}
    s_mul_i32 {s(S_T0)}, {s(S_B)}, {15 * 131072}
    s_add_u32 {s(SRD_O)}, s90, {s(S_T0)}
    s_addc_u32 {s(SRD_O + 1)}, s91, 0
    s_mov_b32 {s(SRD_O + 2)}, {15 * 131072}
    s_mov_b32 {s(SRD_O + 3)}, 0x20000
    ; K read: (l%16)*256 + ((G ^ (l%16))*16) ^ (s*64)
    v_lshl_add_u32 {v(V_KA)}, v2, 8, v8
    v_xor_b32 {v(V_KA + 1)}, 64, {v(V_KA)}
    v_xor_b32 {v(V_KA + 2)}, 0x80, {v(V_KA)}
    v_xor_b32 {v(V_KA + 3)}, 0xc0, {v(V_KA)}
    v_lshl_add_u32 v8, v1, 2, v7
    v_and_b32 v9, 7, v8
    v_lshlrev_b32 v8, 8, v8
    v_lshl_add_u32 v8, v9, 5, v8
    v_lshl_add_u32 v8, v4, 3, v8
    v_add_u32 {v(V_VA)}, {LDS_V}, v8
    """)
    for dt in range(1, 8):
        b2(f"v_xor_b32 {v(V_VA + dt)}, {32 * dt}, {v(V_VA)}")
    for i in range(4):
        b2(f"v_mov_b32 {v(V_ONE + i)}, 0x3f803f80")
    b2(f"""
    v_lshlrev_b32 {v(V_OD)}, 4, v0
    ; O store voffset: ((l%16)/4)*1024 + (4*(l%4) + G)*16
    v_lshl_add_u32 v8, v4, 2, v1
    v_lshlrev_b32 v8, 4, v8
    v_lshl_add_u32 {v(V_OS)}, v7, 10, v8
    s_mov_b32 {s(S_SCALE)}, {f32(SCALE)}
    s_mov_b32 {s(S_SCALE + 1)}, {f32(SCALE)}
    ; ---- O-projection tile of this workgroup: batch 4*(1 - (j&1)) + (j>>1), row tile idx/10, column tile idx%10
    s_mul_i32 {s(S_T1)}, {s(S_IDX)}, 26
    s_lshr_b32 {s(S_T1)}, {s(S_T1)}, 8
    s_mul_i32 {s(S_T0)}, {s(S_T1)}, 10
    s_sub_u32 {s(S_CT)}, {s(S_IDX)}, {s(S_T0)}
    s_andn2_b32 {s(S_B2)}, 1, s2
    s_lshl_b32 {s(S_B2)}, {s(S_B2)}, 2
    s_bfe_u32 {s(S_T0)}, s2, 0x20001
    s_add_u32 {s(S_B2)}, {s(S_B2)}, {s(S_T0)}
    s_mul_i32 {s(S_T0)}, {s(S_B2)}, 15
    s_min_u32 {s(S_T1)}, {s(S_T1)}, 2
    s_mul_i32 {s(S_T1)}, {s(S_T1)}, 5
    s_add_u32 {s(S_T0)}, {s(S_T0)}, {s(S_T1)}
    s_lshl_b32 {s(S_T1)}, {s(S_T0)}, 17
    s_add_u32 {s(SRD_OO)}, s90, {s(S_T1)}
    s_addc_u32 {s(SRD_OO + 1)}, s91, 0
    s_mov_b32 {s(SRD_OO + 2)}, {5 * 131072}
    s_mov_b32 {s(SRD_OO + 3)}, 0x20000
    s_mul_i32 {s(S_T1)}, {s(S_T0)}, {16 * 1280}
    s_add_u32 {s(SRD_OUT)}, s86, {s(S_T1)}
    s_addc_u32 {s(SRD_OUT + 1)}, s87, 0
    s_mov_b32 {s(SRD_OUT + 2)}, {80 * 1280}
    s_mov_b32 {s(SRD_OUT + 3)}, 0x20000
    s_mul_i32 {s(S_WB)}, {s(S_WAVE)}, {1024 * 1280}
    s_lshl_b32 {s(S_T0)}, {s(S_CT)}, 7
    s_add_u32 {s(S_WB)}, {s(S_WB)}, {s(S_T0)}
    s_lshl_b32 {s(S_OB)}, {s(S_WAVE)}, 15
    s_lshl_b32 {s(S_POLL)}, {s(S_B2)}, 2
    s_add_u32 {s(S_POLL)}, {s(S_POLL)}, {s(S_WAVE)}
    s_lshl_b32 {s(S_POLL)}, {s(S_POLL)}, 8
    ; wo DMA voffset n: (64(n/2) + 2(n%2) + 16*((l/8)%4) + l/32)*1280 + (((l%8) ^ (G<<1))*16) - 1024n
    v_and_b32 v8, 3, v3
    v_lshlrev_b32 v8, 4, v8
    v_lshrrev_b32 v9, 5, v0
    v_add_u32 v8, v8, v9
    v_mul_u32_u24 v8, 1280, v8
    v_lshlrev_b32 v9, 1, v1
    v_xor_b32 v9, v5, v9
    v_lshl_add_u32 {v(V_WDD)}, v9, 4, v8
    v_add_u32 {v(V_WDD + 1)}, {2 * 1280 - 1024}, {v(V_WDD)}
    v_add_u32 {v(V_WDD + 2)}, {64 * 1280 - 2048}, {v(V_WDD)}
    v_add_u32 {v(V_WDD + 3)}, {66 * 1280 - 3072}, {v(V_WDD)}
    s_cmp_eq_u32 {s(S_WAVE)}, 3
    s_cbranch_scc1 L1_q3
    """)
    qa = qproj_role(False)
    qb = qproj_role(True)
    qe = qproj_end()
    stamp(qe, 2)

    mid = Block()
    mid.extend(conv_q(1, True))
    mid(f"""
    s_waitcnt lgkmcnt(0)
    s_barrier
    s_cmp_ge_u32 {s(S_INIT)}, 32
    s_cbranch_scc1 L1_norep
    v_mov_b32 v8, 1
    s_mov_b64 exec, 1
    buffer_atomic_add v8, {v(V_Z)}, {s(SRD_DBG, 4)}, 0 offen offset:128 sc1 ; rare
    s_mov_b64 exec, -1
    L1_norep:
    """)
    cv = conv_q(2, True) + conv_q(3, True)
    pos = 0
    for x in kv_pair(8, 0):
        mid(x)
        n = 14 if x.startswith("buffer") else 2
        mid.extend(cv[pos:pos + n])
        pos += n
    mid.extend(cv[pos:])
    mid(f"s_cmp_eq_u32 {s(S_WAVE)}, 3")
    mid(f"s_cselect_b32 {s(S_T1)}, {f32(1e4)}, 0")

    def max_chain(qt):
        S = V_S + 8 * qt
        m = V_P + 32 + 2 * qt
        out = [f"v_max3_f32 {v(m)}, {v(S)}, {v(S + 1)}, {v(S + 2)}",
               f"v_max3_f32 {v(m + 1)}, {v(S + 3)}, {v(S + 4)}, {v(S + 5)}",
               f"v_max3_f32 {v(m)}, {v(m)}, {v(S + 6)}, {v(S + 7)}",
               f"v_max_f32 {v(m)}, {v(m)}, {v(m + 1)}",
               f"v_mov_b32 {v(m + 1)}, {v(m)}", "s_nop 1",
               f"v_permlane16_swap_b32 {v(m)}, {v(m + 1)}",
               f"v_max_f32 {v(m)}, {v(m)}, {v(m + 1)}",
               f"v_mov_b32 {v(m + 1)}, {v(m)}", "s_nop 1",
               f"v_permlane32_swap_b32 {v(m)}, {v(m + 1)}",
               f"v_max_f32 {v(m)}, {v(m)}, {v(m + 1)}"]
        if qt == 3:
            out.append(f"v_add_f32 {v(m)}, {s(S_T1)}, {v(m)}")
        out += [f"v_sub_f32 {v(V_NM + 4 * qt + i)}, 0, {v(m)}" for i in range(4)]
        out += [f"v_sub_f32 {v(S + i)}, {v(S + i)}, {v(m)}" for i in range(8)]
        out += [sm_exp(8 * qt + i) for i in range(8)]
        out += [sm_cvt(8 * qt + i, 0) for i in range(1, 8, 2)]
        return out

    def soft1(qt):
        out = [sm_exp(e) for e in range(8 * qt, 8 * qt + 8) if EG[e] < NG]
        return out + [sm_cvt(e, 1) for e in range(8 * qt + 1, 8 * qt + 8, 2) if CG[e] < NG]

    addr = [f"v_mov_b32 {v(V_LM + i)}, 0" for i in range(16)]
    addr += ["v_lshl_add_u32 v10, v1, 2, v7", "v_bfe_u32 v9, v10, 1, 2", "v_lshlrev_b32 v10, 7, v10",
             "v_lshl_add_u32 v10, v4, 3, v10", "v_lshl_add_u32 v10, v9, 5, v10",
             f"v_add_u32 {v(V_AA)}, {s(S_W4096)}, v10", f"v_add_u32 {v(V_AA + 4)}, {LDS_V}, {v(V_AA)}",
             f"v_add_u32 {v(V_AA + 8)}, {s(S_XC)}, v10"]
    addr += [f"v_xor_b32 {v(V_AA + 4 * wdw + nt)}, {32 * nt}, {v(V_AA + 4 * wdw)}" for wdw in range(3) for nt in range(1, 4)]
    mfs = qk_all(True, A_K0) + qk_all(False, A_K0 + 32)
    work = [(x, qt) for qt in range(4) for x in max_chain(qt)] + [(x, 4 + qt) for qt in range(4) for x in soft1(qt)]
    chain_end = {qt: max(i for i, (_, blk) in enumerate(work) if blk == qt) for qt in range(4)}
    seq = []
    mi = wi = 0
    fin_at = {}

    def ready():
        return wi < len(work) and work[wi][1] in fin_at and len(seq) - fin_at[work[wi][1]] > 8

    while mi < len(mfs) or wi < len(work):
        can_mf = mi < len(mfs) and (mi < 32 or wi > chain_end[(mi - 32) // 8])
        slots = 1
        if can_mf:
            seq.append(mfs[mi])
            if mi % 8 == 7:
                fin_at[mi // 8] = len(seq) - 1
            mi += 1
            slots = 2
        n0 = len(seq)
        while slots > 0:
            if ready():
                x = work[wi][0]
                wi += 1
            elif addr:
                x = addr.pop(0)
            else:
                break
            seq.append(x)
            slots -= 2 if x.startswith("v_exp") else 1
        if not can_mf and len(seq) == n0:
            seq.append("s_nop 0")
    seq += addr
    if OPT["wmid"]:
        wo01 = [x for i in range(2) for x in [cell_m0(CELL0[i]), wo_off(i)] + [wo_dma(n) for n in range(4)]]
        mpos = [i for i, x in enumerate(seq) if x.startswith("v_mfma")]
        at = 12
        ins = {}
        for x in wo01:
            ins[mpos[at]] = x
            at += 5 if x.startswith("buffer") else 1
        seq = [y for i, x in enumerate(seq) for y in ([x, ins[i]] if i in ins else [x])]
    mid("; wo tr-read addresses: (4G + r)*128 + ((nt ^ (2(G&1) + r/2))*32) + 8c + window base")
    mid.extend(seq)
    mid(f"s_mov_b32 {s(S_CNT)}, 7")
    if OPT["stamp"] == 4:
        mid(f"s_mov_b32 {s(S_SI)}, 2")
    stamp(mid, 3)
    mid("s_branch L1_it2")

    it0 = Block()
    it0.extend(subtile(0))
    it0.extend(subtile(1))
    body = Block()
    for t in range(2, 8):
        body.extend(subtile(t))
    if OPT["stamp"] in (2, 3):
        body(f"s_sub_u32 {s(S_T0)}, 22, {s(S_CNT)}")
        body(f"s_mov_b32 m0, {s(S_T0)}")
        stamp(body, "m0")
        body(f"s_cmp_gt_u32 {s(S_CNT)}, {0 if OPT['wmid'] else 1}")
    body("s_cbranch_scc1 L1_loop")
    wo01 = Block()
    wo01(f"s_cmp_eq_u32 {s(S_CNT)}, 0")
    wo01("s_cbranch_scc1 L1_last")
    for i in range(0 if OPT["wmid"] else 2):
        wo01.extend([x + " ; rare" for x in [cell_m0(CELL0[i]), wo_off(i)] + [wo_dma(n) for n in range(4)]])
    wo01("s_branch L1_loop ; rare")
    wo01("L1_last:")

    post = Block()
    vm = VM()
    for tag in [("K", 58), ("V", 56), ("K", 60), ("V", 58), ("K", 62)]:
        vm.add(tag, 4)
    for t in range(8):
        post.extend(subtile(t, vm, True))
    stamp(post, 23)
    vr = v_reads(6, 1)
    post.extend(vr[:4])
    for e in range(32):
        if EG[e] >= NG:
            post(sm_exp(e))
    post(f"s_mov_b32 {s(S_T2)}, {f32(2.0 ** 40)}")
    for e, g in CG.items():
        if g >= NG:
            post(sm_cvt(e, 63))
    post(wo_off(12))
    post(cell_m0(CELL0[12]))
    om = [ones_mf(qt, 62 + sub) for qt in range(4) for sub in ((0, 1) if qt % 2 == 0 else (1, 0))]
    post.extend(interleave(om, [vr[4:6], vr[6:8], vr[8:10], vr[10:12], vr[12:14], vr[14:16], [wo_dma(0)], [wo_dma(1)]]))
    post(wo_dma(2))
    post(wo_dma(3))
    post("s_waitcnt lgkmcnt(0)")
    epi = Block()
    epi("L1_epi:")
    tail1, fast, tail2 = oproj_tail()
    epi.extend(tail1)
    n_slow = len(epi.instrs())
    epi.extend(fast)
    epi.extend(tail2)
    epi("L1_fin:")
    if OPT["stamp"]:
        epi("s_waitcnt vmcnt(0)")
        stamp(epi, 25)
        stamp_store(epi, "L1_end")
    epi("L1_end:")
    epi("s_endpgm")

    V_M = V_P + 16
    V_T = V_P + 20
    fb = Block()
    fb("L1_fallback:")
    fb(f"""
    s_waitcnt vmcnt(0) lgkmcnt(0)
    s_mov_b32 {s(S_T2)}, 0x7f800000
    s_sub_u32 {s(S_T0)}, {s(S_W4096)}, {LDS_V - 32768}
    v_lshlrev_b32 v11, 4, v1
    s_nop 7
    """)
    for i in range(4):
        fb(f"v_add_u32 {v(V_KA + i)}, {s(S_W4096)}, {v(V_KA + i)}")
    for i in range(8):
        fb(f"v_add_u32 {v(V_VA + i)}, {s(S_T0)}, {v(V_VA + i)}")
    for i in range(128):
        fb(f"v_accvgpr_write_b32 {a(A_O + i)}, 0")
    for i in range(16):
        fb(f"v_mov_b32 {v(V_LM + i)}, 0")
    for qt in range(4):
        fb(f"v_mov_b32 {v(V_M + qt)}, {f32(-3e38)}")
    fb(f"s_mov_b32 {s(S_KV)}, 0")
    fbl = Block()
    for q in range(2):
        fbl(f"s_add_u32 m0, {s(S_W4096)}, {16384 * q}")
        fbl(f"s_add_u32 {s(S_T0)}, {s(S_KV)}, {4096 * q}")
        for n in range(4):
            fbl(k_dma(n, s(S_T0)))
        fbl(f"s_add_u32 m0, {s(S_W4096)}, {32768 + 16384 * q}")
        fbl("s_nop 0")
        for n in range(4):
            fbl(v_dma(n, s(S_T0)))
    fbl("s_waitcnt vmcnt(0)")
    for kt in range(2):
        for st in range(4):
            fbl(f"ds_read_b128 {a(A_K + 16 * kt + 4 * st, 4)}, {v(V_KA + st)} offset:{kt * 16384}")
    for dt in range(8):
        for kt in range(2):
            fbl(f"ds_read_b64_tr_b16 {a(A_V + 4 * dt + 2 * kt, 2)}, {v(V_VA + dt)} offset:{kt * 16384}")
        if dt % 2:
            fbl("s_waitcnt lgkmcnt(0)")
    fbl.extend(qk_all(True))
    fbl("s_nop 7")
    for qt in range(4):
        S = V_S + 8 * qt
        m, m2, al, alt = V_T, V_T + 1, V_T + 2, V_T + 4
        M = V_M + qt
        fbl(f"v_max3_f32 {v(m)}, {v(S)}, {v(S + 1)}, {v(M)}")
        for i in range(2, 8, 2):
            fbl(f"v_max3_f32 {v(m)}, {v(m)}, {v(S + i)}, {v(S + i + 1)}")
        for swap in ("v_permlane16_swap_b32", "v_permlane32_swap_b32"):
            fbl(f"v_mov_b32 {v(m2)}, {v(m)}")
            fbl("s_nop 1")
            fbl(f"{swap} {v(m)}, {v(m2)}")
            fbl(f"v_max_f32 {v(m)}, {v(m)}, {v(m2)}")
        fbl(f"v_sub_f32 {v(al)}, {v(M)}, {v(m)}")
        fbl(f"v_exp_f32 {v(al)}, {v(al)}")
        fbl(f"v_mov_b32 {v(M)}, {v(m)}")
        for r in range(4):
            fbl(f"ds_bpermute_b32 {v(alt + r)}, v11, {v(al)} offset:{4 * r}")
        for e in range(8):
            fbl(f"v_sub_f32 {v(S + e)}, {v(S + e)}, {v(m)}")
        for e in range(8):
            fbl(sm_exp(8 * qt + e))
        fbl("s_waitcnt lgkmcnt(0)")
        for e in range(1, 8, 2):
            fbl(sm_cvt(8 * qt + e, 0))
        for r in range(4):
            fbl(f"v_mul_f32 {v(V_LM + 4 * qt + r)}, {v(V_LM + 4 * qt + r)}, {v(alt + r)}")
        for i in range(32):
            r = A_O + 32 * qt + i
            fbl(f"v_accvgpr_read_b32 {v(m2)}, {a(r)}")
            fbl(f"v_mul_f32 {v(m2)}, {v(m2)}, {v(alt + i % 4)}")
            fbl(f"v_accvgpr_write_b32 {a(r)}, {v(m2)}")
        fbl("s_nop 1")
        for dt in range(8):
            fbl(pv(qt, dt, 0, A_V + 4 * dt))
        fbl(ones_mf(qt, 0))
    fbl("s_nop 7")
    fbl(f"s_add_u32 {s(S_KV)}, {s(S_KV)}, 8192")
    fbl(f"s_cmp_lt_u32 {s(S_KV)}, 524288")
    fbl("s_cbranch_scc1 L1_fbloop")
    fbe = Block()
    for i in range(32):
        fbe(f"v_mov_b32 {v(V_P + 32 + i)}, 0")
    for i in range(64):
        fbe(f"v_accvgpr_write_b32 {a(A_K + i)}, 0")
    for i in range(NREG0, NREG0 + 9):
        fbe(cell_m0(CELL0[i]))
        fbe(wo_off(i))
        for n in range(4):
            fbe(wo_dma(n))
    fbe("s_branch L1_epi")

    ep = epi.instrs()
    nf = len(fast.instrs())
    ep_slow = ep[:n_slow] + ep[n_slow + nf:]
    br = next(i for i, x in enumerate(ep) if "L1_ready" in x) + 1
    ep_fast = ep[:br] + ep[n_slow:]
    loop = body.instrs() + it0.instrs() + body.instrs()
    check_trace(b.instrs() + jobs0.instrs() + b2.instrs() + qa.instrs() + qe.instrs() + mid.instrs() + loop + post.instrs() + ep_slow, "main")
    check_trace(b.instrs() + w3.instrs() + b2.instrs() + qb.instrs() + qe.instrs() + mid.instrs() + body.instrs(), "wave3")
    check_trace(post.instrs() + ep_fast, "fast")
    cut = next(i for i, x in enumerate(ep) if "L1_fallback" in x) + 1
    check_trace(post.instrs() + ep[:cut] + fb.instrs() + fbl.instrs() * 2 + fbe.instrs() + ep_slow, "fallback")

    out = Block()
    out.extend(b)
    out.extend(jobs0)
    out.extend(w3)
    out.extend(b2)
    out.extend(qa)
    out("s_branch L1_qend")
    out("L1_q3:")
    out.extend(qb)
    out("L1_qend:")
    out.extend(qe)
    out.extend(mid)
    out(".p2align 6")
    out("L1_loop:")
    out.extend(it0)
    out("L1_it2:")
    out.extend(body)
    if not OPT["wmid"]:
        out.extend(wo01)
    out.extend(post)
    out.extend(epi)
    out.extend(fb)
    out("L1_fbloop:")
    out.extend(fbl)
    out.extend(fbe)
    return out


def oproj_tail():
    V_OA = 16
    V_OUT = 21
    V_PL = 22
    V_R = V_NM
    V_TMP = V_S
    NPRE = OPT["npre"]
    N0 = NREG0 + 9
    t1 = Block()
    vm = VM()
    for i in range(NREG0, N0):
        vm.add(("wo", i), 4)
    cellof = {i: CELL0[i] for i in range(N0)}
    freecells = []
    pool = [("v", 48 + 4 * i) for i in range(16)]
    pool += [("a", 128 + 4 * i) for i in range(16)]
    pool += [("v", 144 + 4 * i) for i in range(16)]
    pool += [("v", V_LM + 4 * i) for i in range(4)]
    late = [("a", 80 + 4 * i) for i in range(12)] + [("v", 112 + 4 * i) for i in range(8)] + [("v", V_NM + 4 * i) for i in range(4)]
    areg = dict(AREG0)

    def a_reads(i):
        areg[i] = [pool.pop(0) for _ in range(4)]
        return wo_reads(areg[i], cellof[i])

    nd = [N0]

    def wo_grp():
        i = nd[0]
        nd[0] += 1
        cellof[i] = freecells.pop(0)
        vm.add(("wo", i), 4)
        return [cell_m0(cellof[i]), wo_off(i)] + [wo_dma(n) for n in range(4)]

    fin = pv_chains([(qt, dd if qt % 2 == 0 else 7 - dd) for qt in range(4) for dd in range(8)], 62,
                    lambda dt: A_K if dt < 4 else A_V)
    m = 8
    guard = [f"v_max3_f32 {v(m)}, {v(V_LM)}, {v(V_LM + 1)}, {v(V_LM + 2)}"]
    guard += [f"v_max3_f32 {v(m)}, {v(m)}, {v(V_LM + i)}, {v(V_LM + i + 1)}" for i in range(3, 15, 2)]
    guard += [f"v_max_f32 {v(m)}, {v(m)}, {v(V_LM + 15)}"]
    gaps = [[], [], []] + [guard[2 * i:2 * i + 2] for i in range(4)]
    gaps[0] = ["s_nop 1"]
    t1.extend(interleave(fin[:7], gaps))
    t1(f"v_cmp_gt_f32 vcc, {v(m)}, {s(S_T2)}")
    t1(fin[7])
    t1(f"s_lshl_b32 {s(S_T0)}, {s(S_WAVE)}, 19")
    t1("s_cbranch_vccnz L1_fallback")
    t1(f"s_lshl_b32 {s(S_T1)}, {s(S_H)}, 12")
    t1(f"s_add_u32 {s(S_T0)}, {s(S_T0)}, {s(S_T1)}")
    rcp = [f"v_rcp_f32 {v(V_R + i)}, {v(V_LM + i)}" for i in range(16)]

    def group(qt, r, packed):
        tb = V_TMP + 12 * ((4 * qt + r) % 2)
        out = [f"v_accvgpr_read_b32 {v(tb + i)}, {a(A_O + 32 * qt + 4 * i + r)}" for i in range(8)]
        if packed:
            sel = "op_sel_hi:[1,0]" if r % 2 == 0 else "op_sel:[0,1] op_sel_hi:[1,1]"
            out += [f"v_pk_mul_f32 {v(tb + 2 * i, 2)}, {v(tb + 2 * i, 2)}, {v(V_R + 4 * qt + (r & 2), 2)} {sel}" for i in range(4)]
        else:
            out += [f"v_mul_f32 {v(tb + i)}, {v(tb + i)}, {v(V_R + 4 * qt + r)}" for i in range(8)]
        out += [f"v_cvt_pk_bf16_f32 {v(tb + 8 + i)}, {v(tb + 2 * i)}, {v(tb + 2 * i + 1)}" for i in range(4)]
        out.append(f"buffer_store_dwordx4 {v(tb + 8, 4)}, {v(V_OS)}, {s(SRD_O, 4)}, {s(S_T0)} offen offset:{r * 256} sc1")
        return out

    NEARLY = 4
    gaps = [[] for _ in range(56)]
    for i in range(12):
        gaps[i].append(rcp[i])
    seq = [x for r in range(NEARLY) for x in group(0, r, False)]
    vm.add("st", NEARLY)
    gi = 12
    while seq and gi < 56:
        gaps[gi].append(seq.pop(0))
        if seq and not seq[0].startswith("buffer") and not gaps[gi][0].startswith("buffer"):
            gaps[gi].append(seq.pop(0))
        gi += 1
    t1.extend(interleave(fin[8:], gaps))
    t1.extend(seq)
    t1.extend(rcp[12:])
    t1(f"""
    ; O load voffset: ((l%16)/4)*256 + G*64 + (l%4)*16 + mt*131072
    v_lshlrev_b32 v8, 8, v7
    v_lshl_add_u32 v8, v1, 6, v8
    v_lshl_add_u32 {v(V_OA)}, v4, 4, v8
    v_add_u32 {v(V_OA + 1)}, 0x20000, {v(V_OA)}
    v_add_u32 {v(V_OA + 2)}, 0x40000, {v(V_OA)}
    v_add_u32 {v(V_OA + 3)}, 0x60000, {v(V_OA)}
    v_add_u32 {v(V_OA + 4)}, 0x80000, {v(V_OA)}
    ; out voffset: (4*(l%4) + (l%16)/4)*1280 + G*8
    v_lshl_add_u32 v8, v4, 2, v7
    v_mul_u32_u24 v8, 1280, v8
    v_lshl_add_u32 {v(V_OUT)}, v1, 3, v8
    s_mov_b32 {s(S_CNT)}, 0x40000
    L1_chk:
    v_readfirstlane_b32 {s(S_T1)}, {v(V_IN)}
    s_sub_u32 {s(S_CNT)}, {s(S_CNT)}, 1
    s_cbranch_scc1 L1_clr
    s_cmp_ge_u32 {s(S_T1)}, 32
    s_cbranch_scc1 L1_clr
    buffer_load_dword {v(V_IN)}, {v(V_Z)}, {s(SRD_DBG, 4)}, 0 offen offset:128 sc1 ; rare
    s_waitcnt vmcnt(0) ; rare
    s_branch L1_chk ; rare
    L1_clr:
    s_mov_b32 {s(S_CNT)}, 0x40000
    """)
    stamp(t1, 4)
    POLL = f"buffer_load_dword {v(V_PL)}, {v(V_Z)}, {s(SRD_FL, 4)}, {s(S_POLL)} offen sc1"
    na = NREG0
    for idx in range(NEARLY, 16):
        qt, r = idx // 4, idx % 4
        if r == 0:
            t1(f"s_add_u32 {s(S_T0)}, {s(S_T0)}, 131072")
        t1.extend(group(qt, r, True))
        vm.add("st")
        if idx == OPT["pollat"]:
            t1(POLL)
            vm.add("poll")
        if na > NREG0 and nd[0] == na + 8:
            t1("s_waitcnt lgkmcnt(0)")
            freecells.append(cellof[na - 1])
            t1.extend(wo_grp())
        if na < NPRE:
            t1(f"s_waitcnt vmcnt({vm.cnt(('wo', na))})")
            t1.extend(a_reads(na))
            na += 1
    assert na == NPRE and nd[0] == NPRE + 9, (na, nd)
    stamp(t1, 5)
    pool.extend(late)
    freecells.append(CV[3])

    breg = {}
    nb = [0]
    free = pool

    def b_loads():
        ks = nb[0]
        nb[0] += 1
        breg[ks] = [free.pop(0) for _ in range(5)]
        vm.add(("o", ks), 5)
        out = [f"s_add_u32 {s(S_OK)}, {s(S_OB)}, {head_of(ks) * 4096}"] if ks % 4 == 0 else []
        return out + [f"buffer_load_dwordx4 {quad(breg[ks][mt])}, {v(V_OA + mt)}, {s(SRD_OO, 4)}, {s(S_OK)} offen offset:{(ks % 4) * 1024} sc1"
                      for mt in range(5)]

    def signal(lbl):
        return f"""
        s_waitcnt vmcnt(0)
        s_barrier
        s_cmp_lg_u32 {s(S_WAVE)}, 0
        s_cbranch_scc1 {lbl}
        s_lshr_b32 {s(S_T0)}, {s(S_H)}, 3
        s_lshl_b32 {s(S_T1)}, {s(S_B)}, 2
        s_add_u32 {s(S_T0)}, {s(S_T0)}, {s(S_T1)}
        s_lshl_b32 {s(S_T0)}, {s(S_T0)}, 8
        v_mov_b32 v8, 1
        s_mov_b64 exec, 1
        buffer_atomic_add v8, {v(V_Z)}, {s(SRD_FL, 4)}, {s(S_T0)} offen sc1
        s_mov_b64 exec, -1
        {lbl}:
        """

    t1(f"s_waitcnt vmcnt({vm.cnt('poll')})")
    t1(f"""
    v_readfirstlane_b32 {s(S_T1)}, {v(V_PL)}
    s_cmp_ge_u32 {s(S_IDX)}, 30
    s_cselect_b32 {s(S_T1)}, 0, {s(S_T1)}
    s_cmp_ge_u32 {s(S_T1)}, 8
    s_cbranch_scc1 L1_ready
    """)
    first_b = []
    while len(free) >= 5 and nb[0] < OPT["bdepth"]:
        first_b += b_loads()
    t1("; publish (every wave's O stores have been drained, then one atomic per workgroup), poll, load")
    t1(signal("L1_nosig"))
    stamp(t1, 6)
    t1(f"""
    s_cmp_ge_u32 {s(S_IDX)}, 30
    s_cbranch_scc1 L1_fin
    L1_poll:
    {POLL}
    s_sub_u32 {s(S_CNT)}, {s(S_CNT)}, 1
    s_cbranch_scc1 L1_go
    s_waitcnt vmcnt(0)
    v_readfirstlane_b32 {s(S_T1)}, {v(V_PL)}
    s_nop 0
    s_cmp_lt_u32 {s(S_T1)}, 8
    s_cbranch_scc1 L1_poll
    L1_go:
    """)
    stamp(t1, 7)
    t1.extend(first_b)
    t1("s_branch L1_mm")
    t1("L1_ready:")
    fast = Block()
    fast.extend(first_b)
    fast(signal("L1_nosig2"))
    stamp(fast, 6)
    stamp(fast, 7)
    fast("L1_mm:")
    t2 = Block()
    LM_ = OPT["lastm"]
    nd0 = nd[0]
    for ks in range(32 - LM_):
        t2(f"s_waitcnt vmcnt({vm.cnt(('o', ks))})")
        if OPT["stamp"] == 3 and ks % 4 == 0:
            stamp(t2, 52 + ks // 4)
        mf = []
        for nt in range(4):
            for mm in range(5):
                mt = mm if nt % 2 == 0 else 4 - mm
                d = a(4 * (5 * nt + mt), 4)
                mf.append(f"{MF} {d}, {quad(areg[ks][nt])}, {quad(breg[ks][mt])}, {'0' if ks == 0 else d}")
        vmem = []
        dsr = []
        done = max(i for i, x in enumerate(vm.ops) if x == ("o", ks)) + 1
        can_dma = nd[0] < 32 and freecells and (nd[0] - nd0) * 25 <= ks * (32 - nd0)
        if na < nd[0] and len(free) >= 9 and (na - ks <= 3 + (LM_ if na > 27 else 0) or ("wo", na) not in vm.ops[done:]):
            if ("wo", na) in vm.ops[done:]:
                t2(f"s_waitcnt vmcnt({vm.cnt(('wo', na))})")
            dsr = a_reads(na)
            na += 1
        assert na > ks + 1 or na == 32, (ks, na)
        if nb[0] < 32:
            vmem += b_loads()
        if can_dma:
            vmem += wo_grp()
        gaps = [[] for _ in range(20)]
        nv = sum(x.startswith("buffer") for x in vmem)
        step = max(1, 20 // max(nv, 1))
        gi = 0
        busy = set()
        for x in vmem:
            gaps[min(gi, 19)].append(x)
            if x.startswith("buffer"):
                busy.add(gi)
                gi += min(step, 4)
        gi = 0
        for x in dsr:
            while gi in busy and gi < 19:
                gi += 1
            gaps[min(gi, 19)].append(x)
            gi += 1
        t2.extend(interleave(mf, gaps))
        if dsr:
            t2("s_waitcnt lgkmcnt(0)")
            freecells.append(cellof[na - 1])
        free.extend(areg[ks] + breg[ks])
    assert na == 32 and nb[0] == 32 and nd[0] == 32
    VB = 48
    t2(f"v_add_u32 v8, {s(S_W4096)}, {v(V_OD)}")
    t2("v_add_u32 v9, 0x10000, v8")
    t2("s_waitcnt vmcnt(0)")
    tiles = [(nt, mt) for mt in range(5) for nt in range(4)]
    mf = []
    for nt, mt in tiles:
        d = a(4 * (5 * nt + mt), 4)
        for ks in range(32 - LM_, 32):
            mf.append(f"{MF} {d}, {quad(areg[ks][nt])}, {quad(breg[ks][mt])}, {d}")
    wr = [f"ds_write_b128 v{8 + mt // 4}, {a(4 * (5 * nt + mt), 4)} offset:{(mt % 4) * 16384 + nt * 1024}" for nt, mt in tiles]
    gaps = [[] for _ in mf]
    gaps[0] = [f"s_lshl_b32 {s(S_T0)}, {s(S_WAVE)}, 10", f"v_add_u32 v10, {s(S_T0)}, {v(V_OD)}"]
    gaps[1] = [f"s_lshl_b32 {s(S_T0)}, {s(S_CT)}, 7", "v_add_u32 v11, 0x10000, v10"]
    gaps[2] = [f"s_lshl_b32 {s(S_T1)}, {s(S_WAVE)}, 5"]
    gaps[3] = [f"s_add_u32 {s(S_T0)}, {s(S_T0)}, {s(S_T1)}"]
    rest = []
    for i, w_ in enumerate(wr):
        g = LM_ * (i + 1) - 1 + 7
        if g < len(mf):
            gaps[g].append(w_)
        else:
            rest.append(w_)
    t2.extend(interleave(mf, gaps))
    stamp(t2, 24)
    t2("s_nop 3")
    t2.extend(rest[:-1])
    t2("s_nop 1")
    t2(rest[-1])
    t2("s_waitcnt lgkmcnt(0)")
    t2("s_barrier")

    def red_reads(mt):
        return [f"ds_read_b128 {v(VB + 16 * mt + 4 * w, 4)}, v{10 + mt // 4} offset:{w * 4096 + (mt % 4) * 16384}" for w in range(4)]

    for mt in range(3):
        t2.extend(red_reads(mt))
    for mt in range(5):
        t2(f"s_waitcnt lgkmcnt({min(8, 4 * (4 - mt))})")
        if mt + 3 < 5:
            t2.extend(red_reads(mt + 3))
        r = VB + 16 * mt
        for i in range(0, 4, 2):
            t2(f"v_pk_add_f32 {v(r + i, 2)}, {v(r + i, 2)}, {v(r + 4 + i, 2)}")
            t2(f"v_pk_add_f32 {v(r + 8 + i, 2)}, {v(r + 8 + i, 2)}, {v(r + 12 + i, 2)}")
        for i in range(0, 4, 2):
            t2(f"v_pk_add_f32 {v(r + i, 2)}, {v(r + i, 2)}, {v(r + 8 + i, 2)}")
        t2(f"v_cvt_pk_bf16_f32 {v(r + 4)}, {v(r)}, {v(r + 1)}")
        t2(f"v_cvt_pk_bf16_f32 {v(r + 5)}, {v(r + 2)}, {v(r + 3)}")
        t2(f"buffer_store_dwordx2 {v(r + 4, 2)}, {v(V_OUT)}, {s(SRD_OUT, 4)}, {s(S_T0)} offen")
        t2(f"s_add_u32 {s(S_T0)}, {s(S_T0)}, {16 * 1280}")
    return t1, fast, t2


HEADER = """; Fused MHA block: q = x@wq, softmax(q k^T / sqrt(128)) v, out = o@wo   (gfx950, generated by gen/gen.py)
; Kernarg: 0 x, 8 k_cache, 16 v_cache, 24 wq, 32 wo, 40 out, 48 debug, 56 ws
; @launch grid=(256,1,1) block=(256,1,1) lds=163840
.amdgcn_target "amdgcn-amd-amdhsa--gfx950"
.text
"""


def kd(name, vg, acc):
    return f""".p2align 6
.amdhsa_kernel {name}
  .amdhsa_next_free_vgpr {vg}
  .amdhsa_next_free_sgpr 102
  .amdhsa_accum_offset {acc}
  .amdhsa_group_segment_fixed_size 0
  .amdhsa_kernarg_size 64
  .amdhsa_user_sgpr_count 2
  .amdhsa_user_sgpr_kernarg_segment_ptr 1
  .amdhsa_system_sgpr_workgroup_id_x 1
.end_amdhsa_kernel
"""


def main():
    k1 = kernel()
    txt = HEADER
    txt += f".globl {KNAME}\n.p2align 8\n.type {KNAME},@function\n" + k1.text()
    txt += '.section .rodata,"a"\n' + kd(KNAME, 512, 256)
    open(sys.argv[1], "w").write(txt)


main()
```

```python
import math
import struct
import sys
from asmlib import *

OPT = dict(stamp=0, nodma=0, diagpace=0, adk=0, npre=15, pollat=10, bdepth=5, lastm=3, qrot=1, ewh=2, wmid=1, ewt=1, wlast=1, hrot=7, kv3=0)
for arg in sys.argv[2:]:
    k, val = arg.split("=")
    assert k in OPT, k
    OPT[k] = int(val)


def f32(x):
    return "0x%08x" % struct.unpack("<I", struct.pack("<f", x))[0]


SCALE = math.log2(math.e) / math.sqrt(128.0)
MF = "v_mfma_f32_16x16x32_bf16"
KNAME = "standalone__mha_block_cached__near_ridge_kernel"

S_JLIM, S_JWRAP = 0, 1
S_WAVE = 3
SRD_CODE = 4
SRD_J, SRD_K, SRD_V, SRD_O = 8, 16, 20, 24
S_JM = 12
S_J0, S_J1, S_JDG, S_JIA, S_JIB = 28, 29, 30, 31, 32
S_JMD = 34
S_WOO, S_CT = 33, 35
S_OTAB = 36
S_OB, S_WB = 44, 45
S_IDX, S_XC, S_B2 = 46, 47, 48
S_W2048 = 49
S_KV = 50
S_CNT = 51
S_T0, S_T1, S_T2 = 52, 53, 54
S_OK = 55
S_SCALE = 56
S_POLL, S_INIT = 58, 59
S_STAMP = 60
SRD_WO, SRD_OO, SRD_OUT, SRD_FL, SRD_DBG = 64, 68, 72, 76, 80
S_B, S_H, S_SI, S_VV, S_W4096 = 92, 93, 94, 95, 96

V_CT, V_IN = 12, 14
V_KA = 16
V_VA = 20
V_KD = 28
V_VD = 32
V_JD = 34
V_WA = 38
V_XA = 42
V_AA = 34
V_Q = 48
V_S = 112
V_P = 144
V_NM = 208
V_LM = 224
V_QACC = 112
V_ST = 240
V_OD = 243
V_WDD = 244
V_ONE = 248
V_OS = 254
V_Z = 255

A_O = 0
A_K = 128
A_V = 160
A_K0 = 192
A_QA = 128
A_QB = 192

LDS_V = 65536
LDS_WQ = 131072
XBUF = [32768, LDS_V + 32768]


def unit(t):
    return (t % 8) * 8192


nstamp = [0]


def stamp(b, lane=None, force=False):
    if not OPT["stamp"]:
        return
    if OPT["stamp"] == 4 and not force and lane != 0:
        return
    b(f"s_memrealtime {s(S_STAMP, 2)}")
    b(f"s_memtime {s(S_STAMP + 2, 2)}")
    b("s_waitcnt lgkmcnt(0)")
    b(f"v_writelane_b32 {v(V_ST)}, {s(S_STAMP)}, {lane}")
    b(f"v_writelane_b32 {v(V_ST + 1)}, {s(S_STAMP + 2)}, {lane}")


def stamp_store(b, endlabel):
    b(f"""
    s_cmp_lg_u32 {s(S_WAVE)}, 0
    s_cbranch_scc1 {endlabel}
    s_add_u32 s8, s90, 0x4000000
    s_addc_u32 s9, s91, 0
    s_mov_b32 s10, 0x100000
    s_mov_b32 s11, 0x20000
    s_lshl_b32 s12, s2, 9
    v_lshlrev_b32 v1, 3, v0
    buffer_store_dwordx2 {v(V_ST, 2)}, v1, s[8:11], s12 offen
    """)


class VM:
    def __init__(self):
        self.ops = []

    def add(self, tag, n=1):
        self.ops += [tag] * n

    def cnt(self, *tags):
        last = max(i for i, x in enumerate(self.ops) if x in tags)
        return min(63, len(self.ops) - 1 - last)


def k_dma(n, soff):
    return f"buffer_load_dwordx4 {v(V_KD + n)}, {s(SRD_K, 4)}, {soff} offen offset:{1024 * n} nt lds"


def v_dma(n, soff):
    return f"buffer_load_dwordx4 {v(V_VD + n % 2)}, {s(SRD_V, 4)}, {soff} offen offset:{1024 * n} nt lds"


CTOUCH = f"buffer_load_dword v6, {v(V_CT)}, {s(SRD_CODE, 4)}, 0 offen"


def kv_pair(u, isv):
    r = S_VV if isv else S_KV
    return ([f"s_add_u32 m0, {s(S_W4096)}, {(LDS_V if isv else 0) + unit(u)}"]
            + [(v_dma if isv else k_dma)(n, s(r)) for n in range(4)] + [f"s_add_u32 {s(r)}, {s(r)}, 16384"])


def k_read(t, kt, st, base=A_K):
    return f"ds_read_b128 {a(base + 16 * kt + 4 * st, 4)}, {v(V_KA + st)} offset:{unit(t) + 4096 * kt}"


def v_reads(u, hf, base=A_V):
    return [f"ds_read_b64_tr_b16 {a(base + 8 * dd + 4 * sub + 2 * kt, 2)}, {v(V_VA + 4 * hf + dd)} offset:{unit(u + sub) + 4096 * kt}"
            for dd in range(4) for sub in range(2) for kt in range(2)]


def qk_all(zero=False, base=A_K):
    out = []
    for i, (qt, kt) in enumerate([(0, 0), (0, 1), (1, 1), (1, 0), (2, 0), (2, 1), (3, 1), (3, 0)]):
        d = v(V_S + 8 * qt + 4 * kt, 4)
        for n, st in enumerate([0, 1, 2, 3] if i % 2 == 0 else [3, 2, 1, 0]):
            c = d if n else ("0" if zero else v(V_NM + 4 * qt, 4))
            out.append(f"{MF} {d}, {a(base + 16 * kt + 4 * st, 4)}, {v(V_Q + 16 * qt + 4 * st, 4)}, {c}")
    return out


def preg(t, qt):
    return v(V_P + 16 * (t % 4) + 4 * qt, 4)


def pv(qt, dt, t, vreg):
    d = a(A_O + 32 * qt + 4 * dt, 4)
    return f"{MF} {d}, {preg(t, qt)}, {a(vreg, 4)}, {d}"


def ones_mf(qt, t):
    d = v(V_LM + 4 * qt, 4)
    return f"{MF} {d}, {preg(t, qt)}, {v(V_ONE, 4)}, {d}"


def pv_chains(order, u, base_of):
    out = []
    for i, (qt, dt) in enumerate(order):
        for sub in ((0, 1) if i % 2 == 0 else (1, 0)):
            out.append(pv(qt, dt, u + sub, base_of(dt) + 8 * (dt % 4) + 4 * sub))
    return out


def sm_exp(e):
    r = v(V_S + e)
    return f"v_exp_f32 {r}, {r}"


def sm_cvt(e, t):
    return f"v_cvt_pk_bf16_f32 {v(V_P + 16 * (t % 4) + e // 2)}, {v(V_S + e - 1)}, {v(V_S + e)}"


NG = 68
EG = [10 + 2 * e for e in range(32)]
V_GAPS = list(range(1, 32, 2))
D_GAPS = [39, 45, 51, 57]
K_GAPS = [41, 43, 47, 49, 53, 55, 59, 61]
G_VWAIT, G_WAIT, G_BAR, G_M0, G_INC, G_KWAIT = 30, 36, 37, 38, 58, 67
G_CNT, G_CMP = 62, 64
CG = {}
for e in range(1, 32, 2):
    g = EG[e] + 1
    while g % NG in D_GAPS:
        g += 2
    CG[e] = g
XD_GAPS = [6, 12, 18, 24]


def head_of(i):
    return (i // 4 + OPT["hrot"]) % 8


def wo_off(i):
    return f"s_add_u32 {s(S_WOO)}, {s(S_WB)}, {(head_of(i) * 128 + (i % 4) * 4) * 1280}"


def wo_dma(n):
    return f"buffer_load_dwordx4 {v(V_WDD + n)}, {s(SRD_WO, 4)}, {s(S_WOO)} offen offset:{1024 * n} lds"


CX = [(S_XC, 0), (S_XC, 4096)]
CK = [(S_W4096, 16384 * i) for i in range(4)]
CV = [(S_W4096, LDS_V + 16384 * i) for i in range(4)]
NREG0 = 4
CELL0 = [CX[0], CX[1], CX[0], CK[0], CX[1], CK[1], CV[0], CX[0], CK[2], CV[1], CK[0], CK[3], CV[2]]


XSCHED = {1: 2, 2: 4, 4: 6, 5: 7, 6: 9}
DSCHED = {1: 3, 3: 5, 5: 8, 6: 10, 7: 11}
RSCHED = {0: [0, 1], 4: [2], 5: [3]}
if OPT["wlast"]:
    CELL0 = [CX[0], CX[1], CK[0], CK[1], CX[0], CV[0], CX[1], CK[2], CK[0], CV[1], CK[1], CK[3], CV[2]]
    XSCHED = {0: 0, 1: 1, 4: 4, 5: 6, 6: 8, 7: 10}
    DSCHED = {1: 2, 3: 3, 4: 5, 5: 7, 6: 9, 7: 11}
    RSCHED = {3: [0], 4: [1], 5: [2], 6: [3]}


def quad(q, off=0, n=4):
    kind, base = q
    return (a if kind == "a" else v)(base + off, n)


def wo_reads(quads, cell):
    wdw = 2 if cell[0] == S_XC else cell[1] // LDS_V
    return [f"ds_read_b64_tr_b16 {quad(quads[nt], 2 * e, 2)}, {v(V_AA + 4 * wdw + nt)} offset:{cell[1] % LDS_V + 2048 * e}"
            for nt in range(4) for e in range(2)]


AREG0 = {i: [("a", 192 + 16 * i + 4 * nt) for nt in range(4)] for i in range(NREG0)}


def cell_m0(c):
    return f"s_add_u32 m0, {s(c[0])}, {c[1]}"


def subtile(t, vm=None, last=False):
    hf = t % 2
    u = t - 2 - hf
    order = [(qq if dd % 2 == 0 else 3 - qq, 4 * hf + dd) for dd in range(4) for qq in range(4)]
    mf = qk_all() + pv_chains(order, u, lambda dt: A_V)
    mf += [ones_mf(2 * hf, u), ones_mf(2 * hf, u + 1), ones_mf(2 * hf + 1, u + 1), ones_mf(2 * hf + 1, u)]
    gaps = [[] for _ in range(NG)]
    for r, g in zip(v_reads(u, hf), V_GAPS):
        gaps[g].append(r)
    gaps[G_VWAIT].append("s_waitcnt lgkmcnt(2)")
    if last and t == 7:
        fg = [41, 43, 47, 49, 53, 55, 59, 61, 63, 65, 40, 44, 48, 52, 56, 60]
        for r, g in zip(v_reads(6, 0, A_K), sorted(fg)):
            gaps[g].append(r)
    else:
        for r, g in zip([k_read(t + 1, kt, st) for kt in range(2) for st in range(4)], K_GAPS):
            gaps[g].append(r)
        gaps[G_KWAIT].append("s_waitcnt lgkmcnt(0)")

    def wo_group(i, g_pre, dg):
        vm.add(("wo", i), 4)
        gaps[dg[0] - g_pre[0]].append(wo_off(i))
        gaps[dg[0] - g_pre[1]].append(cell_m0(CELL0[i]))
        for n in range(4):
            gaps[dg[n]].append(wo_dma(n))

    def kv_put(ops):
        for x, g in zip(ops, [G_M0] + D_GAPS + [G_INC]):
            gaps[g].append(x)

    n = 16 if hf else None
    if last:
        if t in XSCHED:
            wo_group(XSCHED[t], [4, 2], XD_GAPS)
        if t == 0:
            gaps[28].append(f"buffer_load_dword {v(V_IN)}, {v(V_Z)}, {s(SRD_DBG, 4)}, 0 offen offset:128 sc1")
            vm.add("init")
        rd0 = RSCHED.get(t)
        if rd0 is not None:
            fg = [40, 42, 44, 48, 52, 54, 63, 65] + [56, 58, 60, 62, 63, 64, 65, 66]
            rr = [x for i in rd0 for x in wo_reads(AREG0[i], CELL0[i])]
            for r, g in zip(rr, sorted(fg[:len(rr)])):
                gaps[g].append(r)
        tags = ([("K", t + 57), ("V", t + 55)] if hf else []) + [("wo", i) for i in (rd0 or []) if ("wo", i) in vm.ops]
        n = vm.cnt(*tags) if tags else None
    gaps[G_WAIT].append("s_waitcnt lgkmcnt(0)" if n is None else f"s_waitcnt vmcnt({n}) lgkmcnt(0)")
    if hf:
        gaps[G_BAR].append("s_barrier")
    if last:
        if t in (0, 2):
            kv_put(kv_pair(t + 4, 1))
            vm.add(("V", t + 60), 4)
        elif t in DSCHED:
            wo_group(DSCHED[t], [5, 1], D_GAPS)
    else:
        kv_put(kv_pair(t + 7, 0) if hf else kv_pair(t + 4, 1))
        if t == 3:
            gaps[65].append(CTOUCH)
        if t == 7:
            gaps[G_CNT].append(f"s_sub_u32 {s(S_CNT)}, {s(S_CNT)}, 1")
            gaps[G_CMP].append(f"s_cmp_gt_u32 {s(S_CNT)}, {0 if OPT['wmid'] else 1}")
    for e in range(32):
        gaps[EG[e] % NG].append(sm_exp(e))
    for e, g in CG.items():
        gaps[g % NG].append(sm_cvt(e, t if g < NG else t - 1))
    cand = [g for g in range(NG) if len(gaps[g]) == 2 and gaps[g][0].startswith("ds_") and gaps[g][1].startswith("v_cvt")]
    k = min(OPT["adk"], len(cand))
    for i in range(k):
        gaps[cand[(i * len(cand)) // k]].reverse()
    for i in range(OPT["diagpace"]):
        gaps[(2 * i) % NG].append("s_nop 1")
    if OPT["nodma"]:
        gaps = [[x for x in g if not x.startswith("buffer")] for g in gaps]
    res = interleave(mf, gaps)
    if OPT["stamp"] == 4:
        sb = Block()
        sb(f"s_mov_b32 m0, {s(S_SI)}")
        stamp(sb, "m0", True)
        sb(f"s_add_u32 {s(S_SI)}, {s(S_SI)}, 1")
        if not last and t == 7:
            sb(f"s_cmp_gt_u32 {s(S_CNT)}, {0 if OPT['wmid'] else 1}")
        res += sb.lines
    return res


def flat(lst):
    out = []
    for i, x in enumerate(lst):
        out.append(x)
        if " m0," in x and i + 1 < len(lst) and lst[i + 1].startswith("buffer"):
            out.append("s_nop 0")
    return out


def conv_q(qt, packed):
    out = []
    for st in range(4):
        acc = V_QACC + 4 * (8 * qt + 2 * st)
        if packed:
            out += [f"v_pk_mul_f32 {v(acc + 2 * i, 2)}, {v(acc + 2 * i, 2)}, {s(S_SCALE, 2)}" for i in range(4)]
        else:
            out += [f"v_mul_f32 {v(acc + i)}, {s(S_SCALE)}, {v(acc + i)}" for i in range(8)]
        out += [f"v_cvt_pk_bf16_f32 {v(V_Q + 16 * qt + 4 * st + i)}, {v(acc + 2 * i)}, {v(acc + 2 * i + 1)}" for i in range(4)]
    return out


def spread(gaps, dm, start, step):
    gi = start
    si = 0
    busy = set()
    for d in dm:
        if d.startswith("buffer"):
            gaps[gi].append(d)
            busy.add(gi)
            si = gi + 1
            gi += step
        else:
            g = min(si, gi - 1, len(gaps) - 1)
            gaps[g].append(d)
            si = g + 1
    return busy


def job(i):
    ld = [f"buffer_load_dwordx4 {v(V_JD + n)}, {s(SRD_J, 4)}, {{}} offen offset:{1024 * n} lds" for n in range(4)]
    out = [f"s_mov_b32 m0, {s(S_JM + i % 4)}", f"s_add_u32 {s(S_J1)}, {s(S_J0)}, {s(S_JDG)}"]
    out += [x.format(s(S_J0)) for x in ld]
    out += [f"s_add_u32 m0, {s(S_JM + i % 4)}, {s(S_JMD)}", f"s_add_u32 {s(S_J0)}, {s(S_J0)}, {s(S_JIA if i % 2 == 0 else S_JIB)}"]
    out += [ld[0].format(s(S_J1))]
    if i % 2 == 1:
        out += [f"s_cmp_ge_u32 {s(S_J0)}, {s(S_JLIM)}", f"s_cselect_b32 {s(S_T0)}, {s(S_JWRAP)}, 0",
                f"s_sub_u32 {s(S_J0)}, {s(S_J0)}, {s(S_T0)}"]
    out += [x.format(s(S_J1)) for x in ld[1:]]
    return out


def kv_half(i):
    u, isv, hf = i // 4, (i % 4) // 2, i % 2
    out = [f"s_mov_b32 m0, {(LDS_V if isv else 0) + unit(u) + 4096 * hf}", f"s_mov_b32 {s(S_J0)}, {u * 8192 + 4096 * hf}"]
    return out + [(v_dma if isv else k_dma)(n, s(S_J0)) for n in range(4)]


def q_areads(j):
    base = A_QA + 32 * (j % 2)
    return [f"ds_read_b64_tr_b16 {a(base + 4 * (2 * st + e) + 2 * jj, 2)}, {v(V_WA + st)} offset:{(j % 4) * 8192 + 1024 * jj + 8 * e}"
            for st in range(4) for e in range(2) for jj in range(2)]


def q_breads(j):
    stg = j // 2
    base = A_QB + 32 * (stg % 2)
    return [f"ds_read_b128 {a(base + 16 * ks + 4 * qt, 4)}, {v(V_XA + 2 * (stg % 2) + ks)} offset:{2048 * qt}"
            for ks in range(2) for qt in (2 * (j % 2), 2 * (j % 2) + 1)]


def q_mfmas(j):
    ab = A_QA + 32 * (j % 2)
    bb = A_QB + 32 * ((j // 2) % 2) + 16 * (j % 2)
    out = []
    for qt in range(4):
        for dd in range(8):
            dtile = dd if qt % 2 == 0 else 7 - dd
            d = v(V_QACC + 4 * (8 * qt + dtile), 4)
            out.append(f"{MF} {d}, {a(ab + 4 * dtile, 4)}, {a(bb + 4 * qt, 4)}, {'0' if j == 0 else d}")
    return out


def q_step(b, j, dm, wait, zero):
    if wait is not None:
        b(f"s_waitcnt vmcnt({wait})")
    b("s_barrier")
    if j == 1:
        stamp(b, 1)
    if OPT["stamp"] == 3:
        stamp(b, 32 + j)
    rd = q_breads(j) + q_areads(j)
    if j == 0:
        b.extend(rd)
        b.extend(flat(dm))
    else:
        gaps = [[] for _ in range(32)]
        nd = sum(x.startswith("buffer") for x in dm)
        busy = spread(gaps, dm, 2, 4 if nd > 6 else 5)
        fr = [g for g in range(30) if g not in busy]
        extra = len(rd) - len(fr)
        gi = 0
        for r in rd:
            lone = not gaps[fr[gi]]
            gaps[fr[gi]].append(r)
            if extra > 0 and sum(x.startswith("ds_") for x in gaps[fr[gi]]) == 1:
                extra -= 1
            else:
                if lone and zero:
                    gaps[fr[gi]].append(zero.pop(0))
                gi += 1
        if j % 2 == 1:
            nds = sum(x.startswith("ds_") for g in gaps[:15] for x in g)
            gaps[15].insert(0, f"s_waitcnt lgkmcnt({nds - 2})")
        b.extend(interleave(q_mfmas(j - 1), gaps))
    b("s_waitcnt lgkmcnt(0)")


JSPLIT = 19


def qproj_role(role3):
    b = Block()
    zero = [f"v_accvgpr_write_b32 {a(A_O + i)}, 0" for i in range(128)]
    for j in range(JSPLIT):
        if role3:
            dm = kv_half(j - OPT["kv3"]) if 0 <= j - OPT["kv3"] < 16 else []
            wait = 0 if j == 18 else (48 if j >= 12 else None)
        else:
            dm = job(j + 3) if j + 3 < 20 else []
            wait = 16 if j < 18 else 8
        if j == 18:
            dm = kv_pair(4, 0)
        q_step(b, j, dm, wait, zero)
    assert not zero
    return b


def qproj_end():
    b = Block()
    q_step(b, 19, kv_pair(6, 0), 4, [])
    gaps = [[] for _ in range(32)]
    kr = [k_read(0, kt, st, A_K0) for kt in range(2) for st in range(4)] + [k_read(2, kt, st) for kt in range(2) for st in range(4)]
    busy = set()
    gi = 0
    for r in kr[:13]:
        while gi in busy:
            gi += 1
        gaps[gi].append(r)
        gi += 1
    cv = conv_q(0, False)
    kr = kr[13:]
    for g in range(13, 32):
        if kr:
            gaps[g] += [kr.pop(0), cv.pop(0)]
        else:
            gaps[g] += [cv.pop(0), cv.pop(0)]
    b.extend(interleave(q_mfmas(19), gaps))
    for kt in range(2):
        for st in range(4):
            b(k_read(1, kt, st, A_K0 + 32))
    b.extend(cv)
    return b


def kernel():
    b = Block()
    b(KNAME + ":")
    b(f"""
    s_load_dwordx4 s[36:39], s[0:1], 0
    s_load_dwordx4 s[40:43], s[0:1], 16
    s_load_dwordx4 s[84:87], s[0:1], 32
    s_load_dwordx4 s[88:91], s[0:1], 48
    s_cmp_ge_u32 s2, 256
    s_cbranch_scc1 L1_end
    v_lshrrev_b32 v1, 6, v0
    v_and_b32 v0, 63, v0
    v_readfirstlane_b32 {s(S_WAVE)}, v1
    ; attention problem of this workgroup: b = 4*(j&1) + idx%4, h = 8*(j>>1) + idx/4  (j = id%8, idx = id/8)
    s_and_b32 {s(S_T0)}, s2, 7
    s_lshr_b32 {s(S_IDX)}, s2, 3
    s_and_b32 {s(S_B)}, {s(S_T0)}, 1
    s_lshl_b32 {s(S_B)}, {s(S_B)}, 2
    s_and_b32 {s(S_H)}, {s(S_IDX)}, 3
    s_add_u32 {s(S_B)}, {s(S_B)}, {s(S_H)}
    s_lshr_b32 {s(S_H)}, {s(S_T0)}, 1
    s_lshl_b32 {s(S_H)}, {s(S_H)}, 3
    s_lshr_b32 {s(S_T0)}, {s(S_IDX)}, 2
    s_add_u32 {s(S_H)}, {s(S_H)}, {s(S_T0)}
    s_lshl_b32 {s(S_W2048)}, {s(S_WAVE)}, 11
    ; instruction prefetch: every workgroup pulls one 8 KB chunk of this kernel's code into its L2 (16 lines per wave)
    s_getpc_b64 {s(SRD_CODE, 2)}
    L1_pc:
    s_sub_u32 {s(SRD_CODE)}, {s(SRD_CODE)}, L1_pc-{KNAME}
    s_subb_u32 {s(SRD_CODE + 1)}, {s(SRD_CODE + 1)}, 0
    s_mov_b32 {s(SRD_CODE + 2)}, L1_end-{KNAME}
    s_mov_b32 {s(SRD_CODE + 3)}, 0x20000
    s_and_b32 {s(S_T0)}, {s(S_IDX)}, 7
    s_lshl_b32 {s(S_T0)}, {s(S_T0)}, 13
    s_add_u32 {s(S_T0)}, {s(S_T0)}, {s(S_W2048)}
    ; lane fields: v1 = G = l/16, v2 = l%16, v3 = l/8, v4 = c = l%4, v5 = l%8, v7 = r = (l/4)%4
    v_and_b32 v2, 15, v0
    v_lshrrev_b32 v1, 4, v0
    v_lshl_add_u32 {v(V_CT)}, v2, 7, {s(S_T0)}
    v_lshrrev_b32 v3, 3, v0
    v_and_b32 v5, 7, v0
    {CTOUCH}
    ; job voffsets.  wq (wave 0): (4n + G)*8192 + ((l%16) ^ (G<<2))*16 - 1024n
    ;                x (waves 1, 2): (8n + l/8)*1280 + ((l%8) ^ (4(n&1) + G))*16 - 1024n
    v_lshlrev_b32 v9, 2, v1
    v_xor_b32 v9, v2, v9
    v_lshlrev_b32 v9, 4, v9
    v_lshl_add_u32 v9, v1, 13, v9
    v_xor_b32 v8, v5, v1
    v_lshlrev_b32 v8, 4, v8
    v_mul_u32_u24 v10, 1280, v3
    v_xor_b32 v11, 64, v8
    v_add_u32 v8, v10, v8
    v_add_u32 v11, v10, v11
    s_mov_b32 {s(S_T1)}, {8 * 1280 - 1024}
    s_cmp_eq_u32 {s(S_WAVE)}, 0
    s_cselect_b64 vcc, -1, 0
    s_cselect_b32 {s(S_T1)}, {4 * 8192 - 1024}, {s(S_T1)}
    s_lshl_b32 {s(S_T2)}, {s(S_T1)}, 1
    v_cndmask_b32 {v(V_JD)}, v8, v9, vcc
    v_cndmask_b32 v11, v11, v9, vcc
    v_add_u32 {v(V_JD + 1)}, {s(S_T1)}, v11
    v_add_u32 {v(V_JD + 2)}, {s(S_T2)}, {v(V_JD)}
    v_add_u32 {v(V_JD + 3)}, {s(S_T2)}, {v(V_JD + 1)}
    ; start stage of the k loop: (h%8 + 3*(b%4)) % 10, so that workgroups sharing x or wq fetch for each other
    s_and_b32 {s(S_T0)}, {s(S_IDX)}, 3
    s_mul_i32 {s(S_T0)}, {s(S_T0)}, {3 * OPT["qrot"]}
    s_lshr_b32 {s(S_T1)}, {s(S_IDX)}, 2
    s_mul_i32 {s(S_T1)}, {s(S_T1)}, {OPT["qrot"]}
    s_add_u32 {s(S_T0)}, {s(S_T0)}, {s(S_T1)}
    s_cmp_ge_u32 {s(S_T0)}, 10
    s_cselect_b32 {s(S_T1)}, 10, 0
    s_sub_u32 {s(S_T0)}, {s(S_T0)}, {s(S_T1)}
    s_sub_u32 {s(S_T1)}, {s(S_WAVE)}, 1
    s_mul_i32 {s(S_CNT)}, {s(S_T1)}, {128 * 1280}
    s_lshl_b32 {s(S_J0)}, {s(S_T0)}, 7
    s_add_u32 {s(S_J0)}, {s(S_J0)}, {s(S_CNT)}
    s_add_u32 {s(S_CNT)}, {s(S_CNT)}, 1280
    s_mov_b32 {s(S_KV)}, 1280
    s_mov_b32 {s(S_JDG)}, {64 * 1280}
    s_mov_b32 {s(S_JIA)}, {32 * 1280}
    s_mov_b32 {s(S_JIB)}, {128 - 32 * 1280}
    s_mov_b32 {s(S_JMD)}, 8192
    s_lshl_b32 {s(S_T1)}, {s(S_T1)}, 14
    s_add_u32 {s(S_JM)}, {s(S_T1)}, {XBUF[0]}
    s_add_u32 {s(S_JM + 1)}, {s(S_T1)}, {XBUF[0] + 4096}
    s_add_u32 {s(S_JM + 2)}, {s(S_T1)}, {XBUF[1]}
    s_add_u32 {s(S_JM + 3)}, {s(S_T1)}, {XBUF[1] + 4096}
    s_mul_i32 {s(S_T2)}, {s(S_B)}, 307200
    s_mov_b32 {s(SRD_J + 2)}, 307200
    s_mov_b32 {s(SRD_J + 3)}, 0x20000
    s_cmp_lg_u32 {s(S_WAVE)}, 0
    s_cbranch_scc1 L1_xjob
    s_lshl_b32 {s(S_J0)}, {s(S_T0)}, 19
    s_mov_b32 {s(S_CNT)}, {640 * 8192}
    s_mov_b32 {s(S_KV)}, {640 * 8192}
    s_mov_b32 {s(S_JDG)}, {16 * 8192}
    s_mov_b32 {s(S_JIA)}, {32 * 8192}
    s_mov_b32 {s(S_JIB)}, {32 * 8192}
    s_mov_b32 {s(S_JMD)}, 4096
    s_mov_b32 {s(S_JM)}, {LDS_WQ}
    s_mov_b32 {s(S_JM + 1)}, {LDS_WQ + 8192}
    s_mov_b32 {s(S_JM + 2)}, {LDS_WQ + 2 * 8192}
    s_mov_b32 {s(S_JM + 3)}, {LDS_WQ + 3 * 8192}
    s_lshl_b32 {s(S_T2)}, {s(S_H)}, 8
    s_sub_u32 {s(SRD_J + 2)}, {640 * 8192}, {s(S_T2)}
    L1_xjob:
    s_waitcnt lgkmcnt(0)
    s_mov_b32 {s(S_JLIM)}, {s(S_CNT)}
    s_mov_b32 {s(S_JWRAP)}, {s(S_KV)}
    s_cmp_eq_u32 {s(S_WAVE)}, 0
    s_cselect_b32 {s(SRD_J)}, s42, s36
    s_cselect_b32 {s(SRD_J + 1)}, s43, s37
    s_add_u32 {s(SRD_J)}, {s(SRD_J)}, {s(S_T2)}
    s_addc_u32 {s(SRD_J + 1)}, {s(SRD_J + 1)}, 0
    """)
    stamp(b, 0)
    b(f"""
    s_mov_b32 {s(SRD_WO)}, s84
    s_mov_b32 {s(SRD_WO + 1)}, s85
    s_mov_b32 {s(SRD_WO + 2)}, {4096 * 1280}
    s_mov_b32 {s(SRD_WO + 3)}, 0x20000
    s_cmp_eq_u32 {s(S_WAVE)}, 3
    s_cbranch_scc1 L1_w3
    """)
    jobs0 = Block()
    jobs0.extend(flat(job(0) + job(1) + job(2)))
    jobs0("s_branch L1_nojob")
    jobs0("L1_w3:")
    w3 = Block()
    if OPT["ewt"] == 1:
        nl = (8 - OPT["ewh"]) * 20
        w3(f"""
        ; wave 3 pulls this workgroup's share of wo (heads {OPT["ewh"]}..7 of every group of 8) into the last-level cache
        s_lshr_b32 {s(S_T0)}, s2, 6
        s_mul_i32 {s(S_T2)}, {s(S_T0)}, {1024 * 1280}
        s_and_b32 {s(S_T0)}, s2, 63
        s_mul_i32 {s(S_T0)}, {s(S_T0)}, {nl * 128}
        s_add_u32 {s(S_T2)}, {s(S_T2)}, {s(S_T0)}
        s_add_u32 {s(S_T2)}, {s(S_T2)}, {OPT["ewh"] * 128 * 1280}
        v_lshlrev_b32 v8, 7, v0
        """)
        done_ = 0
        i_ = 0
        while done_ < nl:
            if nl - done_ < 64:
                w3(f"v_min_u32 v8, {(nl - done_ - 1) * 128}, v8")
            w3(f"buffer_load_dword {v(V_JD + i_)}, v8, {s(SRD_WO, 4)}, {s(S_T2)} offen")
            w3(f"s_add_u32 {s(S_T2)}, {s(S_T2)}, 8192")
            done_ += 64
            i_ += 1
    b2 = Block()
    b2("L1_nojob:")
    b2(f"""
    ; hand-off counters live in ws + 32 MB (256 B apart); wave 3 of workgroups 0..31 clears one each
    s_add_u32 {s(SRD_FL)}, s90, 0x2000000
    s_addc_u32 {s(SRD_FL + 1)}, s91, 0
    s_mov_b32 {s(SRD_FL + 2)}, 8192
    s_mov_b32 {s(SRD_FL + 3)}, 0x20000
    s_mov_b32 {s(SRD_DBG)}, s88
    s_mov_b32 {s(SRD_DBG + 1)}, s89
    s_mov_b32 {s(SRD_DBG + 2)}, 256
    s_mov_b32 {s(SRD_DBG + 3)}, 0x20000
    v_mov_b32 {v(V_Z)}, 0
    s_xor_b32 {s(S_T0)}, {s(S_WAVE)}, 3
    s_lshl_b32 {s(S_T0)}, {s(S_T0)}, 5
    s_add_u32 {s(S_INIT)}, {s(S_T0)}, s2
    s_cmp_ge_u32 {s(S_INIT)}, 32
    s_cbranch_scc1 L1_noclr
    s_lshl_b32 {s(S_T0)}, s2, 8
    s_mov_b64 exec, 1
    buffer_store_dword {v(V_Z)}, {v(V_Z)}, {s(SRD_FL, 4)}, {s(S_T0)} offen sc1 ; rare
    s_mov_b64 exec, -1
    L1_noclr:
    s_lshl_b32 {s(S_XC)}, {s(S_WAVE)}, 13
    v_and_b32 v4, 3, v0
    v_bfe_u32 v7, v0, 2, 2
    v_lshl_add_u32 v8, v1, 3, v7
    v_lshlrev_b32 v8, 8, v8
    v_lshl_add_u32 v8, v7, 6, v8
    v_lshl_add_u32 v8, v4, 4, v8
    v_add_u32 {v(V_WA)}, {LDS_WQ}, v8
    v_xor_b32 {v(V_WA + 1)}, 64, {v(V_WA)}
    v_xor_b32 {v(V_WA + 2)}, 0x80, {v(V_WA)}
    v_xor_b32 {v(V_WA + 3)}, 0xc0, {v(V_WA)}
    ; x read: buffer + w*8192 + (l%16)*128 + ((G ^ ((l%16)>>1))*16) ^ (ks*64)
    v_lshrrev_b32 v8, 1, v2
    v_xor_b32 v8, v1, v8
    v_lshlrev_b32 v8, 4, v8
    v_lshl_add_u32 v8, v2, 7, v8
    v_add_u32 v8, {s(S_XC)}, v8
    v_add_u32 {v(V_XA)}, {XBUF[0]}, v8
    v_xor_b32 {v(V_XA + 1)}, 64, {v(V_XA)}
    v_add_u32 {v(V_XA + 2)}, {XBUF[1]}, v8
    v_xor_b32 {v(V_XA + 3)}, 64, {v(V_XA + 2)}
    s_add_u32 {s(S_XC)}, {s(S_XC)}, {LDS_WQ}
    s_lshl_b32 {s(S_T0)}, {s(S_B)}, 5
    s_add_u32 {s(S_T0)}, {s(S_T0)}, {s(S_H)}
    s_lshl_b32 {s(S_T0)}, {s(S_T0)}, 19
    s_add_u32 {s(SRD_K)}, s38, {s(S_T0)}
    s_addc_u32 {s(SRD_K + 1)}, s39, 0
    s_mov_b32 {s(SRD_K + 2)}, 524288
    s_mov_b32 {s(SRD_K + 3)}, 0x20000
    s_add_u32 {s(SRD_V)}, s40, {s(S_T0)}
    s_addc_u32 {s(SRD_V + 1)}, s41, 0
    s_mov_b32 {s(SRD_V + 2)}, 524288
    s_mov_b32 {s(SRD_V + 3)}, 0x20000
    ; K DMA voffsets: G*256 + ((l%16) ^ (4n + G))*16 ; V: G*256 + ((l%16) ^ ((4(n&1) + G)<<1))*16
    s_lshl_b32 {s(S_W4096)}, {s(S_WAVE)}, 12
    s_add_u32 {s(S_KV)}, {s(S_W4096)}, {4 * 8192}
    s_mov_b32 {s(S_VV)}, {s(S_KV)}
    v_xor_b32 v8, v2, v1
    v_lshlrev_b32 v8, 4, v8
    v_lshl_add_u32 {v(V_KD)}, v1, 8, v8
    v_xor_b32 {v(V_KD + 1)}, 64, {v(V_KD)}
    v_xor_b32 {v(V_KD + 2)}, 0x80, {v(V_KD)}
    v_xor_b32 {v(V_KD + 3)}, 0xc0, {v(V_KD)}
    v_lshlrev_b32 v9, 1, v1
    v_xor_b32 v9, v2, v9
    v_lshlrev_b32 v9, 4, v9
    v_lshl_add_u32 {v(V_VD)}, v1, 8, v9
    v_xor_b32 {v(V_VD + 1)}, 0x80, {v(V_VD)}
    s_mul_i32 {s(S_T0)}, {s(S_B)}, {15 * 131072}
    s_add_u32 {s(SRD_O)}, s90, {s(S_T0)}
    s_addc_u32 {s(SRD_O + 1)}, s91, 0
    s_mov_b32 {s(SRD_O + 2)}, {15 * 131072}
    s_mov_b32 {s(SRD_O + 3)}, 0x20000
    ; K read: (l%16)*256 + ((G ^ (l%16))*16) ^ (s*64)
    v_lshl_add_u32 {v(V_KA)}, v2, 8, v8
    v_xor_b32 {v(V_KA + 1)}, 64, {v(V_KA)}
    v_xor_b32 {v(V_KA + 2)}, 0x80, {v(V_KA)}
    v_xor_b32 {v(V_KA + 3)}, 0xc0, {v(V_KA)}
    v_lshl_add_u32 v8, v1, 2, v7
    v_and_b32 v9, 7, v8
    v_lshlrev_b32 v8, 8, v8
    v_lshl_add_u32 v8, v9, 5, v8
    v_lshl_add_u32 v8, v4, 3, v8
    v_add_u32 {v(V_VA)}, {LDS_V}, v8
    """)
    for dt in range(1, 8):
        b2(f"v_xor_b32 {v(V_VA + dt)}, {32 * dt}, {v(V_VA)}")
    for i in range(4):
        b2(f"v_mov_b32 {v(V_ONE + i)}, 0x3f803f80")
    b2(f"""
    v_lshlrev_b32 {v(V_OD)}, 4, v0
    ; O store voffset: ((l%16)/4)*1024 + (4*(l%4) + G)*16
    v_lshl_add_u32 v8, v4, 2, v1
    v_lshlrev_b32 v8, 4, v8
    v_lshl_add_u32 {v(V_OS)}, v7, 10, v8
    s_mov_b32 {s(S_SCALE)}, {f32(SCALE)}
    s_mov_b32 {s(S_SCALE + 1)}, {f32(SCALE)}
    ; ---- O-projection tile of this workgroup: batch 4*(1 - (j&1)) + (j>>1), row tile idx/10, column tile idx%10
    s_mul_i32 {s(S_T1)}, {s(S_IDX)}, 26
    s_lshr_b32 {s(S_T1)}, {s(S_T1)}, 8
    s_mul_i32 {s(S_T0)}, {s(S_T1)}, 10
    s_sub_u32 {s(S_CT)}, {s(S_IDX)}, {s(S_T0)}
    s_andn2_b32 {s(S_B2)}, 1, s2
    s_lshl_b32 {s(S_B2)}, {s(S_B2)}, 2
    s_bfe_u32 {s(S_T0)}, s2, 0x20001
    s_add_u32 {s(S_B2)}, {s(S_B2)}, {s(S_T0)}
    s_mul_i32 {s(S_T0)}, {s(S_B2)}, 15
    s_min_u32 {s(S_T1)}, {s(S_T1)}, 2
    s_mul_i32 {s(S_T1)}, {s(S_T1)}, 5
    s_add_u32 {s(S_T0)}, {s(S_T0)}, {s(S_T1)}
    s_lshl_b32 {s(S_T1)}, {s(S_T0)}, 17
    s_add_u32 {s(SRD_OO)}, s90, {s(S_T1)}
    s_addc_u32 {s(SRD_OO + 1)}, s91, 0
    s_mov_b32 {s(SRD_OO + 2)}, {5 * 131072}
    s_mov_b32 {s(SRD_OO + 3)}, 0x20000
    s_mul_i32 {s(S_T1)}, {s(S_T0)}, {16 * 1280}
    s_add_u32 {s(SRD_OUT)}, s86, {s(S_T1)}
    s_addc_u32 {s(SRD_OUT + 1)}, s87, 0
    s_mov_b32 {s(SRD_OUT + 2)}, {80 * 1280}
    s_mov_b32 {s(SRD_OUT + 3)}, 0x20000
    s_mul_i32 {s(S_WB)}, {s(S_WAVE)}, {1024 * 1280}
    s_lshl_b32 {s(S_T0)}, {s(S_CT)}, 7
    s_add_u32 {s(S_WB)}, {s(S_WB)}, {s(S_T0)}
    s_lshl_b32 {s(S_OB)}, {s(S_WAVE)}, 15
    ; share of wo (heads {OPT["ewh"]}..7 of every group of 8) that this wave pulls into the last-level cache
    s_lshr_b32 {s(S_T0)}, s2, 6
    s_mul_i32 {s(S_T2)}, {s(S_T0)}, {1024 * 1280}
    s_and_b32 {s(S_T0)}, s2, 63
    s_lshl_b32 {s(S_T0)}, {s(S_T0)}, 2
    s_add_u32 {s(S_T0)}, {s(S_T0)}, {s(S_WAVE)}
    s_mul_i32 {s(S_T0)}, {s(S_T0)}, {(8 - OPT["ewh"]) * 5 * 128}
    s_add_u32 {s(S_T2)}, {s(S_T2)}, {s(S_T0)}
    s_add_u32 {s(S_T2)}, {s(S_T2)}, {OPT["ewh"] * 128 * 1280}
    v_min_u32 v15, {(8 - OPT["ewh"]) * 5 - 1}, v0
    v_lshlrev_b32 v15, 7, v15
    s_lshl_b32 {s(S_POLL)}, {s(S_B2)}, 2
    s_add_u32 {s(S_POLL)}, {s(S_POLL)}, {s(S_WAVE)}
    s_lshl_b32 {s(S_POLL)}, {s(S_POLL)}, 8
    ; wo DMA voffset n: (64(n/2) + 2(n%2) + 16*((l/8)%4) + l/32)*1280 + (((l%8) ^ (G<<1))*16) - 1024n
    v_and_b32 v8, 3, v3
    v_lshlrev_b32 v8, 4, v8
    v_lshrrev_b32 v9, 5, v0
    v_add_u32 v8, v8, v9
    v_mul_u32_u24 v8, 1280, v8
    v_lshlrev_b32 v9, 1, v1
    v_xor_b32 v9, v5, v9
    v_lshl_add_u32 {v(V_WDD)}, v9, 4, v8
    v_add_u32 {v(V_WDD + 1)}, {2 * 1280 - 1024}, {v(V_WDD)}
    v_add_u32 {v(V_WDD + 2)}, {64 * 1280 - 2048}, {v(V_WDD)}
    v_add_u32 {v(V_WDD + 3)}, {66 * 1280 - 3072}, {v(V_WDD)}
    s_cmp_eq_u32 {s(S_WAVE)}, 3
    s_cbranch_scc1 L1_q3
    """)
    qa = qproj_role(False)
    qb = qproj_role(True)
    qe = qproj_end()
    stamp(qe, 2)

    mid = Block()
    mid.extend(conv_q(1, True))
    mid(f"""
    s_waitcnt lgkmcnt(0)
    s_barrier
    s_cmp_ge_u32 {s(S_INIT)}, 32
    s_cbranch_scc1 L1_norep
    v_mov_b32 v8, 1
    s_mov_b64 exec, 1
    buffer_atomic_add v8, {v(V_Z)}, {s(SRD_DBG, 4)}, 0 offen offset:128 sc1 ; rare
    s_mov_b64 exec, -1
    L1_norep:
    """)
    cv = conv_q(2, True) + conv_q(3, True)
    pos = 0
    for x in kv_pair(4, 1):
        mid(x)
        n = 14 if x.startswith("buffer") else 2
        mid.extend(cv[pos:pos + n])
        pos += n
    mid.extend(cv[pos:])
    mid(f"s_cmp_eq_u32 {s(S_WAVE)}, 3")
    mid(f"s_cselect_b32 {s(S_T1)}, {f32(1e4)}, 0")

    def max_chain(qt):
        S = V_S + 8 * qt
        m = V_P + 32 + 2 * qt
        out = [f"v_max3_f32 {v(m)}, {v(S)}, {v(S + 1)}, {v(S + 2)}",
               f"v_max3_f32 {v(m + 1)}, {v(S + 3)}, {v(S + 4)}, {v(S + 5)}",
               f"v_max3_f32 {v(m)}, {v(m)}, {v(S + 6)}, {v(S + 7)}",
               f"v_max_f32 {v(m)}, {v(m)}, {v(m + 1)}",
               f"v_mov_b32 {v(m + 1)}, {v(m)}", "s_nop 1",
               f"v_permlane16_swap_b32 {v(m)}, {v(m + 1)}",
               f"v_max_f32 {v(m)}, {v(m)}, {v(m + 1)}",
               f"v_mov_b32 {v(m + 1)}, {v(m)}", "s_nop 1",
               f"v_permlane32_swap_b32 {v(m)}, {v(m + 1)}",
               f"v_max_f32 {v(m)}, {v(m)}, {v(m + 1)}"]
        if qt == 3:
            out.append(f"v_add_f32 {v(m)}, {s(S_T1)}, {v(m)}")
        out += [f"v_sub_f32 {v(V_NM + 4 * qt + i)}, 0, {v(m)}" for i in range(4)]
        out += [f"v_sub_f32 {v(S + i)}, {v(S + i)}, {v(m)}" for i in range(8)]
        out += [sm_exp(8 * qt + i) for i in range(8)]
        out += [sm_cvt(8 * qt + i, 0) for i in range(1, 8, 2)]
        return out

    def soft1(qt):
        out = [sm_exp(e) for e in range(8 * qt, 8 * qt + 8) if EG[e] < NG]
        return out + [sm_cvt(e, 1) for e in range(8 * qt + 1, 8 * qt + 8, 2) if CG[e] < NG]

    addr = [f"v_mov_b32 {v(V_LM + i)}, 0" for i in range(16)]
    addr += ["v_lshl_add_u32 v10, v1, 2, v7", "v_bfe_u32 v9, v10, 1, 2", "v_lshlrev_b32 v10, 7, v10",
             "v_lshl_add_u32 v10, v4, 3, v10", "v_lshl_add_u32 v10, v9, 5, v10",
             f"v_add_u32 {v(V_AA)}, {s(S_W4096)}, v10", f"v_add_u32 {v(V_AA + 4)}, {LDS_V}, {v(V_AA)}",
             f"v_add_u32 {v(V_AA + 8)}, {s(S_XC)}, v10"]
    addr += [f"v_xor_b32 {v(V_AA + 4 * wdw + nt)}, {32 * nt}, {v(V_AA + 4 * wdw)}" for wdw in range(3) for nt in range(1, 4)]
    mfs = qk_all(True, A_K0) + qk_all(False, A_K0 + 32)
    work = [(x, qt) for qt in range(4) for x in max_chain(qt)] + [(x, 4 + qt) for qt in range(4) for x in soft1(qt)]
    chain_end = {qt: max(i for i, (_, blk) in enumerate(work) if blk == qt) for qt in range(4)}
    seq = []
    mi = wi = 0
    fin_at = {}

    def ready():
        return wi < len(work) and work[wi][1] in fin_at and len(seq) - fin_at[work[wi][1]] > 8

    while mi < len(mfs) or wi < len(work):
        can_mf = mi < len(mfs) and (mi < 32 or wi > chain_end[(mi - 32) // 8])
        slots = 1
        if can_mf:
            seq.append(mfs[mi])
            if mi % 8 == 7:
                fin_at[mi // 8] = len(seq) - 1
            mi += 1
            slots = 2
        n0 = len(seq)
        while slots > 0:
            if ready():
                x = work[wi][0]
                wi += 1
            elif addr:
                x = addr.pop(0)
            else:
                break
            seq.append(x)
            slots -= 2 if x.startswith("v_exp") else 1
        if not can_mf and len(seq) == n0:
            seq.append("s_nop 0")
    seq += addr
    if True:
        wo01 = kv_pair(8, 0)
        mpos = [i for i, x in enumerate(seq) if x.startswith("v_mfma")]
        at = 12
        ins = {}
        for x in wo01:
            ins[mpos[at]] = x
            at += 8 if x.startswith("buffer") else 1
        seq = [y for i, x in enumerate(seq) for y in ([x, ins[i]] if i in ins else [x])]
    mid("; wo tr-read addresses: (4G + r)*128 + ((nt ^ (2(G&1) + r/2))*32) + 8c + window base")
    mid.extend(seq)
    mid(f"s_mov_b32 {s(S_CNT)}, 7")
    if OPT["stamp"] == 4:
        mid(f"s_mov_b32 {s(S_SI)}, 2")
    stamp(mid, 3)
    mid("s_branch L1_it2")

    it0 = Block()
    it0.extend(subtile(0))
    it0.extend(subtile(1))
    body = Block()
    for t in range(2, 8):
        body.extend(subtile(t))
    if OPT["stamp"] in (2, 3):
        body(f"s_sub_u32 {s(S_T0)}, 22, {s(S_CNT)}")
        body(f"s_mov_b32 m0, {s(S_T0)}")
        stamp(body, "m0")
        body(f"s_cmp_gt_u32 {s(S_CNT)}, {0 if OPT['wmid'] else 1}")
    body("s_cbranch_scc1 L1_loop")
    wo01 = Block()
    wo01(f"s_cmp_eq_u32 {s(S_CNT)}, 0")
    wo01("s_cbranch_scc1 L1_last")
    for i in range(0 if OPT["wmid"] else 2):
        wo01.extend([x + " ; rare" for x in [cell_m0(CELL0[i]), wo_off(i)] + [wo_dma(n) for n in range(4)]])
    wo01("s_branch L1_loop ; rare")
    wo01("L1_last:")

    post = Block()
    vm = VM()
    for tag in [("K", 58), ("V", 56), ("K", 60), ("V", 58), ("K", 62)]:
        vm.add(tag, 4)
    for t in range(8):
        post.extend(subtile(t, vm, True))
    stamp(post, 23)
    vr = v_reads(6, 1)
    post.extend(vr[:4])
    for e in range(32):
        if EG[e] >= NG:
            post(sm_exp(e))
    post(f"s_mov_b32 {s(S_T2)}, {f32(2.0 ** 40)}")
    for e, g in CG.items():
        if g >= NG:
            post(sm_cvt(e, 63))
    post(wo_off(12))
    post(cell_m0(CELL0[12]))
    om = [ones_mf(qt, 62 + sub) for qt in range(4) for sub in ((0, 1) if qt % 2 == 0 else (1, 0))]
    post.extend(interleave(om, [vr[4:6], vr[6:8], vr[8:10], vr[10:12], vr[12:14], vr[14:16], [wo_dma(0)], [wo_dma(1)]]))
    post(wo_dma(2))
    post(wo_dma(3))
    post("s_waitcnt lgkmcnt(0)")
    epi = Block()
    epi("L1_epi:")
    tail1, fast, tail2 = oproj_tail()
    epi.extend(tail1)
    n_slow = len(epi.instrs())
    epi.extend(fast)
    epi.extend(tail2)
    epi("L1_fin:")
    if OPT["stamp"]:
        epi("s_waitcnt vmcnt(0)")
        stamp(epi, 25)
        stamp_store(epi, "L1_end")
    epi("L1_end:")
    epi("s_endpgm")

    V_M = V_P + 16
    V_T = V_P + 20
    fb = Block()
    fb("L1_fallback:")
    fb(f"""
    s_waitcnt vmcnt(0) lgkmcnt(0)
    s_mov_b32 {s(S_T2)}, 0x7f800000
    s_sub_u32 {s(S_T0)}, {s(S_W4096)}, {LDS_V - 32768}
    v_lshlrev_b32 v11, 4, v1
    s_nop 7
    """)
    for i in range(4):
        fb(f"v_add_u32 {v(V_KA + i)}, {s(S_W4096)}, {v(V_KA + i)}")
    for i in range(8):
        fb(f"v_add_u32 {v(V_VA + i)}, {s(S_T0)}, {v(V_VA + i)}")
    for i in range(128):
        fb(f"v_accvgpr_write_b32 {a(A_O + i)}, 0")
    for i in range(16):
        fb(f"v_mov_b32 {v(V_LM + i)}, 0")
    for qt in range(4):
        fb(f"v_mov_b32 {v(V_M + qt)}, {f32(-3e38)}")
    fb(f"s_mov_b32 {s(S_KV)}, 0")
    fbl = Block()
    for q in range(2):
        fbl(f"s_add_u32 m0, {s(S_W4096)}, {16384 * q}")
        fbl(f"s_add_u32 {s(S_T0)}, {s(S_KV)}, {4096 * q}")
        for n in range(4):
            fbl(k_dma(n, s(S_T0)))
        fbl(f"s_add_u32 m0, {s(S_W4096)}, {32768 + 16384 * q}")
        fbl("s_nop 0")
        for n in range(4):
            fbl(v_dma(n, s(S_T0)))
    fbl("s_waitcnt vmcnt(0)")
    for kt in range(2):
        for st in range(4):
            fbl(f"ds_read_b128 {a(A_K + 16 * kt + 4 * st, 4)}, {v(V_KA + st)} offset:{kt * 16384}")
    for dt in range(8):
        for kt in range(2):
            fbl(f"ds_read_b64_tr_b16 {a(A_V + 4 * dt + 2 * kt, 2)}, {v(V_VA + dt)} offset:{kt * 16384}")
        if dt % 2:
            fbl("s_waitcnt lgkmcnt(0)")
    fbl.extend(qk_all(True))
    fbl("s_nop 7")
    for qt in range(4):
        S = V_S + 8 * qt
        m, m2, al, alt = V_T, V_T + 1, V_T + 2, V_T + 4
        M = V_M + qt
        fbl(f"v_max3_f32 {v(m)}, {v(S)}, {v(S + 1)}, {v(M)}")
        for i in range(2, 8, 2):
            fbl(f"v_max3_f32 {v(m)}, {v(m)}, {v(S + i)}, {v(S + i + 1)}")
        for swap in ("v_permlane16_swap_b32", "v_permlane32_swap_b32"):
            fbl(f"v_mov_b32 {v(m2)}, {v(m)}")
            fbl("s_nop 1")
            fbl(f"{swap} {v(m)}, {v(m2)}")
            fbl(f"v_max_f32 {v(m)}, {v(m)}, {v(m2)}")
        fbl(f"v_sub_f32 {v(al)}, {v(M)}, {v(m)}")
        fbl(f"v_exp_f32 {v(al)}, {v(al)}")
        fbl(f"v_mov_b32 {v(M)}, {v(m)}")
        for r in range(4):
            fbl(f"ds_bpermute_b32 {v(alt + r)}, v11, {v(al)} offset:{4 * r}")
        for e in range(8):
            fbl(f"v_sub_f32 {v(S + e)}, {v(S + e)}, {v(m)}")
        for e in range(8):
            fbl(sm_exp(8 * qt + e))
        fbl("s_waitcnt lgkmcnt(0)")
        for e in range(1, 8, 2):
            fbl(sm_cvt(8 * qt + e, 0))
        for r in range(4):
            fbl(f"v_mul_f32 {v(V_LM + 4 * qt + r)}, {v(V_LM + 4 * qt + r)}, {v(alt + r)}")
        for i in range(32):
            r = A_O + 32 * qt + i
            fbl(f"v_accvgpr_read_b32 {v(m2)}, {a(r)}")
            fbl(f"v_mul_f32 {v(m2)}, {v(m2)}, {v(alt + i % 4)}")
            fbl(f"v_accvgpr_write_b32 {a(r)}, {v(m2)}")
        fbl("s_nop 1")
        for dt in range(8):
            fbl(pv(qt, dt, 0, A_V + 4 * dt))
        fbl(ones_mf(qt, 0))
    fbl("s_nop 7")
    fbl(f"s_add_u32 {s(S_KV)}, {s(S_KV)}, 8192")
    fbl(f"s_cmp_lt_u32 {s(S_KV)}, 524288")
    fbl("s_cbranch_scc1 L1_fbloop")
    fbe = Block()
    for i in range(32):
        fbe(f"v_mov_b32 {v(V_P + 32 + i)}, 0")
    for i in range(64):
        fbe(f"v_accvgpr_write_b32 {a(A_K + i)}, 0")
    for i in range(NREG0, NREG0 + 9):
        fbe(cell_m0(CELL0[i]))
        fbe(wo_off(i))
        for n in range(4):
            fbe(wo_dma(n))
    fbe("s_branch L1_epi")

    ep = epi.instrs()
    nf = len(fast.instrs())
    ep_slow = ep[:n_slow] + ep[n_slow + nf:]
    br = next(i for i, x in enumerate(ep) if "L1_ready" in x) + 1
    ep_fast = ep[:br] + ep[n_slow:]
    loop = body.instrs() + it0.instrs() + body.instrs()
    check_trace(b.instrs() + jobs0.instrs() + b2.instrs() + qa.instrs() + qe.instrs() + mid.instrs() + loop + post.instrs() + ep_slow, "main")
    check_trace(b.instrs() + w3.instrs() + b2.instrs() + qb.instrs() + qe.instrs() + mid.instrs() + body.instrs(), "wave3")
    check_trace(post.instrs() + ep_fast, "fast")
    cut = next(i for i, x in enumerate(ep) if "L1_fallback" in x) + 1
    check_trace(post.instrs() + ep[:cut] + fb.instrs() + fbl.instrs() * 2 + fbe.instrs() + ep_slow, "fallback")

    out = Block()
    out.extend(b)
    out.extend(jobs0)
    out.extend(w3)
    out.extend(b2)
    out.extend(qa)
    out("s_branch L1_qend")
    out("L1_q3:")
    out.extend(qb)
    out("L1_qend:")
    out.extend(qe)
    out.extend(mid)
    out(".p2align 6")
    out("L1_loop:")
    out.extend(it0)
    out("L1_it2:")
    out.extend(body)
    if not OPT["wmid"]:
        out.extend(wo01)
    out.extend(post)
    out.extend(epi)
    out.extend(fb)
    out("L1_fbloop:")
    out.extend(fbl)
    out.extend(fbe)
    return out


def oproj_tail():
    V_OA = 16
    V_OUT = 21
    V_PL = 22
    V_R = V_NM
    V_TMP = V_S
    NPRE = OPT["npre"]
    N0 = NREG0 + 9
    t1 = Block()
    vm = VM()
    for i in range(NREG0, N0):
        vm.add(("wo", i), 4)
    cellof = {i: CELL0[i] for i in range(N0)}
    freecells = []
    pool = [("v", 48 + 4 * i) for i in range(16)]
    pool += [("a", 128 + 4 * i) for i in range(16)]
    pool += [("v", 144 + 4 * i) for i in range(16)]
    pool += [("v", V_LM + 4 * i) for i in range(4)]
    late = [("a", 80 + 4 * i) for i in range(12)] + [("v", 112 + 4 * i) for i in range(8)] + [("v", V_NM + 4 * i) for i in range(4)]
    areg = dict(AREG0)

    def a_reads(i):
        areg[i] = [pool.pop(0) for _ in range(4)]
        return wo_reads(areg[i], cellof[i])

    nd = [N0]

    def wo_grp():
        i = nd[0]
        nd[0] += 1
        cellof[i] = freecells.pop(0)
        vm.add(("wo", i), 4)
        return [cell_m0(cellof[i]), wo_off(i)] + [wo_dma(n) for n in range(4)]

    fin = pv_chains([(qt, dd if qt % 2 == 0 else 7 - dd) for qt in range(4) for dd in range(8)], 62,
                    lambda dt: A_K if dt < 4 else A_V)
    m = 8
    guard = [f"v_max3_f32 {v(m)}, {v(V_LM)}, {v(V_LM + 1)}, {v(V_LM + 2)}"]
    guard += [f"v_max3_f32 {v(m)}, {v(m)}, {v(V_LM + i)}, {v(V_LM + i + 1)}" for i in range(3, 15, 2)]
    guard += [f"v_max_f32 {v(m)}, {v(m)}, {v(V_LM + 15)}"]
    gaps = [[], [], []] + [guard[2 * i:2 * i + 2] for i in range(4)]
    gaps[0] = ["s_nop 1"]
    t1.extend(interleave(fin[:7], gaps))
    t1(f"v_cmp_gt_f32 vcc, {v(m)}, {s(S_T2)}")
    t1(fin[7])
    t1(f"s_lshl_b32 {s(S_T0)}, {s(S_WAVE)}, 19")
    t1("s_cbranch_vccnz L1_fallback")
    t1(f"s_lshl_b32 {s(S_T1)}, {s(S_H)}, 12")
    t1(f"s_add_u32 {s(S_T0)}, {s(S_T0)}, {s(S_T1)}")
    rcp = [f"v_rcp_f32 {v(V_R + i)}, {v(V_LM + i)}" for i in range(16)]

    def group(qt, r, packed):
        tb = V_TMP + 12 * ((4 * qt + r) % 2)
        out = [f"v_accvgpr_read_b32 {v(tb + i)}, {a(A_O + 32 * qt + 4 * i + r)}" for i in range(8)]
        if packed:
            sel = "op_sel_hi:[1,0]" if r % 2 == 0 else "op_sel:[0,1] op_sel_hi:[1,1]"
            out += [f"v_pk_mul_f32 {v(tb + 2 * i, 2)}, {v(tb + 2 * i, 2)}, {v(V_R + 4 * qt + (r & 2), 2)} {sel}" for i in range(4)]
        else:
            out += [f"v_mul_f32 {v(tb + i)}, {v(tb + i)}, {v(V_R + 4 * qt + r)}" for i in range(8)]
        out += [f"v_cvt_pk_bf16_f32 {v(tb + 8 + i)}, {v(tb + 2 * i)}, {v(tb + 2 * i + 1)}" for i in range(4)]
        out.append(f"buffer_store_dwordx4 {v(tb + 8, 4)}, {v(V_OS)}, {s(SRD_O, 4)}, {s(S_T0)} offen offset:{r * 256} sc1")
        return out

    NEARLY = 4
    gaps = [[] for _ in range(56)]
    for i in range(12):
        gaps[i].append(rcp[i])
    seq = [x for r in range(NEARLY) for x in group(0, r, False)]
    vm.add("st", NEARLY)
    gi = 12
    while seq and gi < 56:
        gaps[gi].append(seq.pop(0))
        if seq and not seq[0].startswith("buffer") and not gaps[gi][0].startswith("buffer"):
            gaps[gi].append(seq.pop(0))
        gi += 1
    t1.extend(interleave(fin[8:], gaps))
    t1.extend(seq)
    t1.extend(rcp[12:])
    t1(f"""
    ; O load voffset: ((l%16)/4)*256 + G*64 + (l%4)*16 + mt*131072
    v_lshlrev_b32 v8, 8, v7
    v_lshl_add_u32 v8, v1, 6, v8
    v_lshl_add_u32 {v(V_OA)}, v4, 4, v8
    v_add_u32 {v(V_OA + 1)}, 0x20000, {v(V_OA)}
    v_add_u32 {v(V_OA + 2)}, 0x40000, {v(V_OA)}
    v_add_u32 {v(V_OA + 3)}, 0x60000, {v(V_OA)}
    v_add_u32 {v(V_OA + 4)}, 0x80000, {v(V_OA)}
    ; out voffset: (4*(l%4) + (l%16)/4)*1280 + G*8
    v_lshl_add_u32 v8, v4, 2, v7
    v_mul_u32_u24 v8, 1280, v8
    v_lshl_add_u32 {v(V_OUT)}, v1, 3, v8
    s_mov_b32 {s(S_CNT)}, 0x40000
    L1_chk:
    v_readfirstlane_b32 {s(S_T1)}, {v(V_IN)}
    s_sub_u32 {s(S_CNT)}, {s(S_CNT)}, 1
    s_cbranch_scc1 L1_clr
    s_cmp_ge_u32 {s(S_T1)}, 32
    s_cbranch_scc1 L1_clr
    buffer_load_dword {v(V_IN)}, {v(V_Z)}, {s(SRD_DBG, 4)}, 0 offen offset:128 sc1 ; rare
    s_waitcnt vmcnt(0) ; rare
    s_branch L1_chk ; rare
    L1_clr:
    s_mov_b32 {s(S_CNT)}, 0x40000
    """)
    stamp(t1, 4)
    POLL = f"buffer_load_dword {v(V_PL)}, {v(V_Z)}, {s(SRD_FL, 4)}, {s(S_POLL)} offen sc1"
    na = NREG0
    for idx in range(NEARLY, 16):
        qt, r = idx // 4, idx % 4
        if r == 0:
            t1(f"s_add_u32 {s(S_T0)}, {s(S_T0)}, 131072")
        t1.extend(group(qt, r, True))
        vm.add("st")
        if idx == OPT["pollat"]:
            t1(POLL)
            vm.add("poll")
        if na > NREG0 and nd[0] == na + 8:
            t1("s_waitcnt lgkmcnt(0)")
            freecells.append(cellof[na - 1])
            t1.extend(wo_grp())
        if na < NPRE:
            t1(f"s_waitcnt vmcnt({vm.cnt(('wo', na))})")
            t1.extend(a_reads(na))
            na += 1
    assert na == NPRE and nd[0] == NPRE + 9, (na, nd)
    stamp(t1, 5)
    pool.extend(late)
    freecells.append(CV[3])

    breg = {}
    nb = [0]
    free = pool

    def b_loads():
        ks = nb[0]
        nb[0] += 1
        breg[ks] = [free.pop(0) for _ in range(5)]
        vm.add(("o", ks), 5)
        out = [f"s_add_u32 {s(S_OK)}, {s(S_OB)}, {head_of(ks) * 4096}"] if ks % 4 == 0 else []
        return out + [f"buffer_load_dwordx4 {quad(breg[ks][mt])}, {v(V_OA + mt)}, {s(SRD_OO, 4)}, {s(S_OK)} offen offset:{(ks % 4) * 1024} sc1"
                      for mt in range(5)]

    def signal(lbl):
        return f"""
        s_waitcnt vmcnt(0)
        s_barrier
        s_cmp_lg_u32 {s(S_WAVE)}, 0
        s_cbranch_scc1 {lbl}
        s_lshr_b32 {s(S_T0)}, {s(S_H)}, 3
        s_lshl_b32 {s(S_T1)}, {s(S_B)}, 2
        s_add_u32 {s(S_T0)}, {s(S_T0)}, {s(S_T1)}
        s_lshl_b32 {s(S_T0)}, {s(S_T0)}, 8
        v_mov_b32 v8, 1
        s_mov_b64 exec, 1
        buffer_atomic_add v8, {v(V_Z)}, {s(SRD_FL, 4)}, {s(S_T0)} offen sc1
        s_mov_b64 exec, -1
        {lbl}:
        """

    t1(f"s_waitcnt vmcnt({vm.cnt('poll')})")
    t1(f"""
    v_readfirstlane_b32 {s(S_T1)}, {v(V_PL)}
    s_cmp_ge_u32 {s(S_IDX)}, 30
    s_cselect_b32 {s(S_T1)}, 0, {s(S_T1)}
    s_cmp_ge_u32 {s(S_T1)}, 8
    s_cbranch_scc1 L1_ready
    """)
    first_b = []
    while len(free) >= 5 and nb[0] < OPT["bdepth"]:
        first_b += b_loads()
    t1("; publish (every wave's O stores have been drained, then one atomic per workgroup), poll, load")
    t1(signal("L1_nosig"))
    stamp(t1, 6)
    t1(f"""
    s_cmp_ge_u32 {s(S_IDX)}, 30
    s_cbranch_scc1 L1_fin
    L1_poll:
    {POLL}
    s_sub_u32 {s(S_CNT)}, {s(S_CNT)}, 1
    s_cbranch_scc1 L1_go
    s_waitcnt vmcnt(0)
    v_readfirstlane_b32 {s(S_T1)}, {v(V_PL)}
    s_nop 0
    s_cmp_lt_u32 {s(S_T1)}, 8
    s_cbranch_scc1 L1_poll
    L1_go:
    """)
    stamp(t1, 7)
    t1.extend(first_b)
    t1("s_branch L1_mm")
    t1("L1_ready:")
    fast = Block()
    fast.extend(first_b)
    fast(signal("L1_nosig2"))
    stamp(fast, 6)
    stamp(fast, 7)
    fast("L1_mm:")
    t2 = Block()
    LM_ = OPT["lastm"]
    nd0 = nd[0]
    for ks in range(32 - LM_):
        t2(f"s_waitcnt vmcnt({vm.cnt(('o', ks))})")
        if OPT["stamp"] == 3 and ks % 4 == 0:
            stamp(t2, 52 + ks // 4)
        mf = []
        for nt in range(4):
            for mm in range(5):
                mt = mm if nt % 2 == 0 else 4 - mm
                d = a(4 * (5 * nt + mt), 4)
                mf.append(f"{MF} {d}, {quad(areg[ks][nt])}, {quad(breg[ks][mt])}, {'0' if ks == 0 else d}")
        vmem = []
        dsr = []
        done = max(i for i, x in enumerate(vm.ops) if x == ("o", ks)) + 1
        can_dma = nd[0] < 32 and freecells and (nd[0] - nd0) * 25 <= ks * (32 - nd0)
        if na < nd[0] and len(free) >= 9 and (na - ks <= 3 + (LM_ if na > 27 else 0) or ("wo", na) not in vm.ops[done:]):
            if ("wo", na) in vm.ops[done:]:
                t2(f"s_waitcnt vmcnt({vm.cnt(('wo', na))})")
            dsr = a_reads(na)
            na += 1
        assert na > ks + 1 or na == 32, (ks, na)
        if nb[0] < 32:
            vmem += b_loads()
        if can_dma:
            vmem += wo_grp()
        gaps = [[] for _ in range(20)]
        nv = sum(x.startswith("buffer") for x in vmem)
        step = max(1, 20 // max(nv, 1))
        gi = 0
        busy = set()
        for x in vmem:
            gaps[min(gi, 19)].append(x)
            if x.startswith("buffer"):
                busy.add(gi)
                gi += min(step, 4)
        gi = 0
        for x in dsr:
            while gi in busy and gi < 19:
                gi += 1
            gaps[min(gi, 19)].append(x)
            gi += 1
        t2.extend(interleave(mf, gaps))
        if dsr:
            t2("s_waitcnt lgkmcnt(0)")
            freecells.append(cellof[na - 1])
        free.extend(areg[ks] + breg[ks])
    assert na == 32 and nb[0] == 32 and nd[0] == 32
    VB = 48
    t2(f"v_add_u32 v8, {s(S_W4096)}, {v(V_OD)}")
    t2("v_add_u32 v9, 0x10000, v8")
    t2("s_waitcnt vmcnt(0)")
    tiles = [(nt, mt) for mt in range(5) for nt in range(4)]
    mf = []
    for nt, mt in tiles:
        d = a(4 * (5 * nt + mt), 4)
        for ks in range(32 - LM_, 32):
            mf.append(f"{MF} {d}, {quad(areg[ks][nt])}, {quad(breg[ks][mt])}, {d}")
    wr = [f"ds_write_b128 v{8 + mt // 4}, {a(4 * (5 * nt + mt), 4)} offset:{(mt % 4) * 16384 + nt * 1024}" for nt, mt in tiles]
    gaps = [[] for _ in mf]
    gaps[0] = [f"s_lshl_b32 {s(S_T0)}, {s(S_WAVE)}, 10", f"v_add_u32 v10, {s(S_T0)}, {v(V_OD)}"]
    gaps[1] = [f"s_lshl_b32 {s(S_T0)}, {s(S_CT)}, 7", "v_add_u32 v11, 0x10000, v10"]
    gaps[2] = [f"s_lshl_b32 {s(S_T1)}, {s(S_WAVE)}, 5"]
    gaps[3] = [f"s_add_u32 {s(S_T0)}, {s(S_T0)}, {s(S_T1)}"]
    rest = []
    for i, w_ in enumerate(wr):
        g = LM_ * (i + 1) - 1 + 7
        if g < len(mf):
            gaps[g].append(w_)
        else:
            rest.append(w_)
    t2.extend(interleave(mf, gaps))
    stamp(t2, 24)
    t2("s_nop 3")
    t2.extend(rest[:-1])
    t2("s_nop 1")
    t2(rest[-1])
    t2("s_waitcnt lgkmcnt(0)")
    t2("s_barrier")

    def red_reads(mt):
        return [f"ds_read_b128 {v(VB + 16 * mt + 4 * w, 4)}, v{10 + mt // 4} offset:{w * 4096 + (mt % 4) * 16384}" for w in range(4)]

    for mt in range(3):
        t2.extend(red_reads(mt))
    for mt in range(5):
        t2(f"s_waitcnt lgkmcnt({min(8, 4 * (4 - mt))})")
        if mt + 3 < 5:
            t2.extend(red_reads(mt + 3))
        r = VB + 16 * mt
        for i in range(0, 4, 2):
            t2(f"v_pk_add_f32 {v(r + i, 2)}, {v(r + i, 2)}, {v(r + 4 + i, 2)}")
            t2(f"v_pk_add_f32 {v(r + 8 + i, 2)}, {v(r + 8 + i, 2)}, {v(r + 12 + i, 2)}")
        for i in range(0, 4, 2):
            t2(f"v_pk_add_f32 {v(r + i, 2)}, {v(r + i, 2)}, {v(r + 8 + i, 2)}")
        t2(f"v_cvt_pk_bf16_f32 {v(r + 4)}, {v(r)}, {v(r + 1)}")
        t2(f"v_cvt_pk_bf16_f32 {v(r + 5)}, {v(r + 2)}, {v(r + 3)}")
        t2(f"buffer_store_dwordx2 {v(r + 4, 2)}, {v(V_OUT)}, {s(SRD_OUT, 4)}, {s(S_T0)} offen")
        t2(f"s_add_u32 {s(S_T0)}, {s(S_T0)}, {16 * 1280}")
    return t1, fast, t2


HEADER = """; Fused MHA block  out = softmax((x wq) k^T / sqrt(128)) v wo   for gfx950 (written with the generator gen/gen.py)
; Kernarg: 0 x, 8 k_cache, 16 v_cache, 24 wq, 32 wo, 40 out, 48 debug, 56 ws
; One workgroup (4 waves, 512 registers each) per (batch, head); all matrix work uses v_mfma_f32_16x16x32_bf16.
;     is checked (< 2^40) and a wave that fails redoes its rows with the exact running maximum (L1_fallback).
;  3. O is normalised, written through to ws, announced with one atomic per workgroup (counters in ws, cleared in
;     this launch, guarded by a count in d_debug), and 240 workgroups compute 80x64 tiles of O wo.
; @launch grid=(256,1,1) block=(256,1,1) lds=163840
.amdgcn_target "amdgcn-amd-amdhsa--gfx950"
.text
"""


def kd(name, vg, acc):
    return f""".p2align 6
.amdhsa_kernel {name}
  .amdhsa_next_free_vgpr {vg}
  .amdhsa_next_free_sgpr 102
  .amdhsa_accum_offset {acc}
  .amdhsa_group_segment_fixed_size 0
  .amdhsa_kernarg_size 64
  .amdhsa_user_sgpr_count 2
  .amdhsa_user_sgpr_kernarg_segment_ptr 1
  .amdhsa_system_sgpr_workgroup_id_x 1
.end_amdhsa_kernel
"""


def main():
    k1 = kernel()
    txt = HEADER
    txt += f".globl {KNAME}\n.p2align 8\n.type {KNAME},@function\n" + k1.text()
    txt += '.section .rodata,"a"\n' + kd(KNAME, 512, 256)
    open(sys.argv[1], "w").write(txt)


main()
```

```python
import math
import struct
import sys
from asmlib import *

OPT = dict(stamp=0, nodma=0, diagpace=0, adk=0, npre=15, pollat=10, bdepth=5, lastm=3, qrot=1, ewh=2, wmid=1, ewt=1, wlast=1, hrot=7, kv3=0, cap=16, drc=2, nearly=3, drop=0, ew0=5, ews=2)
for arg in sys.argv[2:]:
    k, val = arg.split("=")
    assert k in OPT, k
    OPT[k] = int(val)


def f32(x):
    return "0x%08x" % struct.unpack("<I", struct.pack("<f", x))[0]


SCALE = math.log2(math.e) / math.sqrt(128.0)
MF = "v_mfma_f32_16x16x32_bf16"
KNAME = "standalone__mha_block_cached__near_ridge_kernel"

S_JLIM, S_JWRAP = 0, 1
S_WAVE = 3
SRD_CODE = 4
SRD_J, SRD_K, SRD_V, SRD_O = 8, 16, 20, 24
S_JM = 12
S_J0, S_J1, S_JDG, S_JIA, S_JIB = 28, 29, 30, 31, 32
S_JMD = 34
S_WOO, S_CT = 33, 35
S_OTAB = 36
S_OB, S_WB = 44, 45
S_IDX, S_XC, S_B2 = 46, 47, 48
S_W2048 = 49
S_KV = 50
S_CNT = 51
S_T0, S_T1, S_T2 = 52, 53, 54
S_OK = 55
S_SCALE = 56
S_POLL, S_INIT = 58, 59
S_STAMP = 60
SRD_WO, SRD_OO, SRD_OUT, SRD_FL, SRD_DBG = 64, 68, 72, 76, 80
S_B, S_H, S_SI, S_VV, S_W4096 = 92, 93, 94, 95, 96

V_CT, V_IN = 12, 14
V_KA = 16
V_VA = 20
V_KD = 28
V_VD = 32
V_JD = 34
V_WA = 38
V_XA = 42
V_AA = 34
V_Q = 48
V_S = 112
V_P = 144
V_NM = 208
V_LM = 224
V_QACC = 112
V_ST = 240
V_OD = 243
V_WDD = 244
V_ONE = 248
V_OS = 254
V_Z = 255

A_O = 0
A_K = 128
A_V = 160
A_K0 = 192
A_QA = 128
A_QB = 192

LDS_V = 65536
LDS_WQ = 131072
XBUF = [32768, LDS_V + 32768]


def unit(t):
    return (t % 8) * 8192


nstamp = [0]


def stamp(b, lane=None, force=False):
    if not OPT["stamp"]:
        return
    if OPT["stamp"] == 4 and not force and lane != 0:
        return
    b(f"s_memrealtime {s(S_STAMP, 2)}")
    b(f"s_memtime {s(S_STAMP + 2, 2)}")
    b("s_waitcnt lgkmcnt(0)")
    b(f"v_writelane_b32 {v(V_ST)}, {s(S_STAMP)}, {lane}")
    b(f"v_writelane_b32 {v(V_ST + 1)}, {s(S_STAMP + 2)}, {lane}")


def stamp_store(b, endlabel):
    b(f"""
    s_cmp_lg_u32 {s(S_WAVE)}, 0
    s_cbranch_scc1 {endlabel}
    s_add_u32 s8, s90, 0x4000000
    s_addc_u32 s9, s91, 0
    s_mov_b32 s10, 0x100000
    s_mov_b32 s11, 0x20000
    s_lshl_b32 s12, s2, 9
    v_lshlrev_b32 v1, 3, v0
    buffer_store_dwordx2 {v(V_ST, 2)}, v1, s[8:11], s12 offen
    """)


class VM:
    def __init__(self):
        self.ops = []

    def add(self, tag, n=1):
        self.ops += [tag] * n

    def cnt(self, *tags):
        last = max(i for i, x in enumerate(self.ops) if x in tags)
        return min(63, len(self.ops) - 1 - last)


def k_dma(n, soff):
    return f"buffer_load_dwordx4 {v(V_KD + n)}, {s(SRD_K, 4)}, {soff} offen offset:{1024 * n} nt lds"


def v_dma(n, soff):
    return f"buffer_load_dwordx4 {v(V_VD + n % 2)}, {s(SRD_V, 4)}, {soff} offen offset:{1024 * n} nt lds"


CTOUCH = f"buffer_load_dword v6, {v(V_CT)}, {s(SRD_CODE, 4)}, 0 offen"


def kv_pair(u, isv):
    r = S_VV if isv else S_KV
    return ([f"s_add_u32 m0, {s(S_W4096)}, {(LDS_V if isv else 0) + unit(u)}"]
            + [(v_dma if isv else k_dma)(n, s(r)) for n in range(4)] + [f"s_add_u32 {s(r)}, {s(r)}, 16384"])


def k_read(t, kt, st, base=A_K):
    return f"ds_read_b128 {a(base + 16 * kt + 4 * st, 4)}, {v(V_KA + st)} offset:{unit(t) + 4096 * kt}"


def v_reads(u, hf, base=A_V):
    return [f"ds_read_b64_tr_b16 {a(base + 8 * dd + 4 * sub + 2 * kt, 2)}, {v(V_VA + 4 * hf + dd)} offset:{unit(u + sub) + 4096 * kt}"
            for dd in range(4) for sub in range(2) for kt in range(2)]


def qk_all(zero=False, base=A_K):
    out = []
    for i, (qt, kt) in enumerate([(0, 0), (0, 1), (1, 1), (1, 0), (2, 0), (2, 1), (3, 1), (3, 0)]):
        d = v(V_S + 8 * qt + 4 * kt, 4)
        for n, st in enumerate([0, 1, 2, 3] if i % 2 == 0 else [3, 2, 1, 0]):
            c = d if n else ("0" if zero else v(V_NM + 4 * qt, 4))
            out.append(f"{MF} {d}, {a(base + 16 * kt + 4 * st, 4)}, {v(V_Q + 16 * qt + 4 * st, 4)}, {c}")
    return out


def preg(t, qt):
    return v(V_P + 16 * (t % 4) + 4 * qt, 4)


def pv(qt, dt, t, vreg):
    d = a(A_O + 32 * qt + 4 * dt, 4)
    return f"{MF} {d}, {preg(t, qt)}, {a(vreg, 4)}, {d}"


def ones_mf(qt, t):
    d = v(V_LM + 4 * qt, 4)
    return f"{MF} {d}, {preg(t, qt)}, {v(V_ONE, 4)}, {d}"


def pv_chains(order, u, base_of):
    out = []
    for i, (qt, dt) in enumerate(order):
        for sub in ((0, 1) if i % 2 == 0 else (1, 0)):
            out.append(pv(qt, dt, u + sub, base_of(dt) + 8 * (dt % 4) + 4 * sub))
    return out


def sm_exp(e):
    r = v(V_S + e)
    return f"v_exp_f32 {r}, {r}"


def sm_cvt(e, t):
    return f"v_cvt_pk_bf16_f32 {v(V_P + 16 * (t % 4) + e // 2)}, {v(V_S + e - 1)}, {v(V_S + e)}"


NG = 68
EG = [10 + 2 * e for e in range(32)]
V_GAPS = list(range(1, 32, 2))
D_GAPS = [39, 45, 51, 57]
K_GAPS = [41, 43, 47, 49, 53, 55, 59, 61]
G_VWAIT, G_WAIT, G_BAR, G_M0, G_INC, G_KWAIT = 30, 36, 37, 38, 58, 67
G_CNT, G_CMP = 62, 64
CG = {}
for e in range(1, 32, 2):
    g = EG[e] + 1
    while g % NG in D_GAPS:
        g += 2
    CG[e] = g
XD_GAPS = [6, 12, 18, 24]


def head_of(i):
    return (i // 4 + OPT["hrot"]) % 8


def wo_off(i):
    return f"s_add_u32 {s(S_WOO)}, {s(S_WB)}, {(head_of(i) * 128 + (i % 4) * 4) * 1280}"


def wo_dma(n):
    return f"buffer_load_dwordx4 {v(V_WDD + n)}, {s(SRD_WO, 4)}, {s(S_WOO)} offen offset:{1024 * n} lds"


CX = [(S_XC, 0), (S_XC, 4096)]
CK = [(S_W4096, 16384 * i) for i in range(4)]
CV = [(S_W4096, LDS_V + 16384 * i) for i in range(4)]
NREG0 = 4
CELL0 = [CX[0], CX[1], CX[0], CK[0], CX[1], CK[1], CV[0], CX[0], CK[2], CV[1], CK[0], CK[3], CV[2]]


XSCHED = {1: 2, 2: 4, 4: 6, 5: 7, 6: 9}
DSCHED = {1: 3, 3: 5, 5: 8, 6: 10, 7: 11}
RSCHED = {0: [0, 1], 4: [2], 5: [3]}
if OPT["wlast"]:
    CELL0 = [CX[0], CX[1], CK[0], CK[1], CX[0], CV[0], CX[1], CK[2], CK[0], CV[1], CK[1], CK[3], CV[2]]
    XSCHED = {0: 0, 1: 1, 4: 4, 5: 6, 6: 8, 7: 10}
    DSCHED = {1: 2, 3: 3, 4: 5, 5: 7, 6: 9, 7: 11}
    RSCHED = {3: [0], 4: [1], 5: [2], 6: [3]}


def quad(q, off=0, n=4):
    kind, base = q
    return (a if kind == "a" else v)(base + off, n)


def wo_reads(quads, cell):
    wdw = 2 if cell[0] == S_XC else cell[1] // LDS_V
    return [f"ds_read_b64_tr_b16 {quad(quads[nt], 2 * e, 2)}, {v(V_AA + 4 * wdw + nt)} offset:{cell[1] % LDS_V + 2048 * e}"
            for nt in range(4) for e in range(2)]


AREG0 = {i: [("a", 192 + 16 * i + 4 * nt) for nt in range(4)] for i in range(NREG0)}


def cell_m0(c):
    return f"s_add_u32 m0, {s(c[0])}, {c[1]}"


def subtile(t, vm=None, last=False):
    hf = t % 2
    u = t - 2 - hf
    order = [(qq if dd % 2 == 0 else 3 - qq, 4 * hf + dd) for dd in range(4) for qq in range(4)]
    mf = qk_all() + pv_chains(order, u, lambda dt: A_V)
    mf += [ones_mf(2 * hf, u), ones_mf(2 * hf, u + 1), ones_mf(2 * hf + 1, u + 1), ones_mf(2 * hf + 1, u)]
    gaps = [[] for _ in range(NG)]
    for r, g in zip(v_reads(u, hf), V_GAPS):
        gaps[g].append(r)
    gaps[G_VWAIT].append("s_waitcnt lgkmcnt(2)")
    if last and t == 7:
        fg = [41, 43, 47, 49, 53, 55, 59, 61, 63, 65, 40, 44, 48, 52, 56, 60]
        for r, g in zip(v_reads(6, 0, A_K), sorted(fg)):
            gaps[g].append(r)
    else:
        for r, g in zip([k_read(t + 1, kt, st) for kt in range(2) for st in range(4)], K_GAPS):
            gaps[g].append(r)
        gaps[G_KWAIT].append("s_waitcnt lgkmcnt(0)")

    def wo_group(i, g_pre, dg):
        vm.add(("wo", i), 4)
        gaps[dg[0] - g_pre[0]].append(wo_off(i))
        gaps[dg[0] - g_pre[1]].append(cell_m0(CELL0[i]))
        for n in range(4):
            gaps[dg[n]].append(wo_dma(n))

    def kv_put(ops):
        for x, g in zip(ops, [G_M0] + D_GAPS + [G_INC]):
            gaps[g].append(x)

    n = OPT['cap'] if hf else None
    if last:
        if t in XSCHED:
            wo_group(XSCHED[t], [4, 2], XD_GAPS)
        if t == 0:
            gaps[28].append(f"buffer_load_dword {v(V_IN)}, {v(V_Z)}, {s(SRD_DBG, 4)}, 0 offen offset:128 sc1")
            vm.add("init")
        rd0 = RSCHED.get(t)
        if rd0 is not None:
            fg = [40, 42, 44, 48, 52, 54, 63, 65] + [56, 58, 60, 62, 63, 64, 65, 66]
            rr = [x for i in rd0 for x in wo_reads(AREG0[i], CELL0[i])]
            for r, g in zip(rr, sorted(fg[:len(rr)])):
                gaps[g].append(r)
        tags = ([("K", t + 57), ("V", t + 55)] if hf else []) + [("wo", i) for i in (rd0 or []) if ("wo", i) in vm.ops]
        n = vm.cnt(*tags) if tags else None
    gaps[G_WAIT].append("s_waitcnt lgkmcnt(0)" if n is None else f"s_waitcnt vmcnt({n}) lgkmcnt(0)")
    if hf:
        gaps[G_BAR].append("s_barrier")
    if last:
        if t in (0, 2):
            kv_put(kv_pair(t + 4, 1))
            vm.add(("V", t + 60), 4)
        elif t in DSCHED:
            wo_group(DSCHED[t], [5, 1], D_GAPS)
    else:
        kv_put(kv_pair(t + 7, 0) if hf else kv_pair(t + 4, 1))
        if t == 3:
            gaps[65].append(CTOUCH)
        if t == 7:
            gaps[G_CNT].append(f"s_sub_u32 {s(S_CNT)}, {s(S_CNT)}, 1")
            gaps[G_CMP].append(f"s_cmp_gt_u32 {s(S_CNT)}, {0 if OPT['wmid'] else 1}")
    for e in range(32):
        gaps[EG[e] % NG].append(sm_exp(e))
    for e, g in CG.items():
        gaps[g % NG].append(sm_cvt(e, t if g < NG else t - 1))
    cand = [g for g in range(NG) if len(gaps[g]) == 2 and gaps[g][0].startswith("ds_") and gaps[g][1].startswith("v_cvt")]
    k = min(OPT["adk"], len(cand))
    for i in range(k):
        gaps[cand[(i * len(cand)) // k]].reverse()
    for i in range(OPT["diagpace"]):
        gaps[(2 * i) % NG].append("s_nop 1")
    if OPT["nodma"]:
        gaps = [[x for x in g if not x.startswith("buffer")] for g in gaps]
    if OPT["drop"] and not last:
        pre = {1: "s_barrier", 2: "s_waitcnt", 4: "ds_read_b128", 8: "ds_read_b64", 16: "v_cvt", 32: "s_add"}
        dl = tuple(x for k_, x in pre.items() if OPT["drop"] & k_)
        gaps = [[x for x in g if not x.startswith(dl)] for g in gaps]
    res = interleave(mf, gaps)
    if OPT["stamp"] == 4:
        sb = Block()
        sb(f"s_mov_b32 m0, {s(S_SI)}")
        stamp(sb, "m0", True)
        sb(f"s_add_u32 {s(S_SI)}, {s(S_SI)}, 1")
        if not last and t == 7:
            sb(f"s_cmp_gt_u32 {s(S_CNT)}, {0 if OPT['wmid'] else 1}")
        res += sb.lines
    return res


def flat(lst):
    out = []
    for i, x in enumerate(lst):
        out.append(x)
        if " m0," in x and i + 1 < len(lst) and lst[i + 1].startswith("buffer"):
            out.append("s_nop 0")
    return out


def conv_q(qt, packed):
    out = []
    for st in range(4):
        acc = V_QACC + 4 * (8 * qt + 2 * st)
        if packed:
            out += [f"v_pk_mul_f32 {v(acc + 2 * i, 2)}, {v(acc + 2 * i, 2)}, {s(S_SCALE, 2)}" for i in range(4)]
        else:
            out += [f"v_mul_f32 {v(acc + i)}, {s(S_SCALE)}, {v(acc + i)}" for i in range(8)]
        out += [f"v_cvt_pk_bf16_f32 {v(V_Q + 16 * qt + 4 * st + i)}, {v(acc + 2 * i)}, {v(acc + 2 * i + 1)}" for i in range(4)]
    return out


def spread(gaps, dm, start, step):
    gi = start
    si = 0
    busy = set()
    for d in dm:
        if d.startswith("buffer"):
            gaps[gi].append(d)
            busy.add(gi)
            si = gi + 1
            gi += step
        else:
            g = min(si, gi - 1, len(gaps) - 1)
            gaps[g].append(d)
            si = g + 1
    return busy


def job(i):
    ld = [f"buffer_load_dwordx4 {v(V_JD + n)}, {s(SRD_J, 4)}, {{}} offen offset:{1024 * n} lds" for n in range(4)]
    out = [f"s_mov_b32 m0, {s(S_JM + i % 4)}", f"s_add_u32 {s(S_J1)}, {s(S_J0)}, {s(S_JDG)}"]
    out += [x.format(s(S_J0)) for x in ld]
    out += [f"s_add_u32 m0, {s(S_JM + i % 4)}, {s(S_JMD)}", f"s_add_u32 {s(S_J0)}, {s(S_J0)}, {s(S_JIA if i % 2 == 0 else S_JIB)}"]
    out += [ld[0].format(s(S_J1))]
    if i % 2 == 1:
        out += [f"s_cmp_ge_u32 {s(S_J0)}, {s(S_JLIM)}", f"s_cselect_b32 {s(S_T0)}, {s(S_JWRAP)}, 0",
                f"s_sub_u32 {s(S_J0)}, {s(S_J0)}, {s(S_T0)}"]
    out += [x.format(s(S_J1)) for x in ld[1:]]
    return out


def kv_half(i):
    u, isv, hf = i // 4, (i % 4) // 2, i % 2
    out = [f"s_mov_b32 m0, {(LDS_V if isv else 0) + unit(u) + 4096 * hf}", f"s_mov_b32 {s(S_J0)}, {u * 8192 + 4096 * hf}"]
    return out + [(v_dma if isv else k_dma)(n, s(S_J0)) for n in range(4)]


def q_areads(j):
    base = A_QA + 32 * (j % 2)
    return [f"ds_read_b64_tr_b16 {a(base + 4 * (2 * st + e) + 2 * jj, 2)}, {v(V_WA + st)} offset:{(j % 4) * 8192 + 1024 * jj + 8 * e}"
            for st in range(4) for e in range(2) for jj in range(2)]


def q_breads(j):
    stg = j // 2
    base = A_QB + 32 * (stg % 2)
    return [f"ds_read_b128 {a(base + 16 * ks + 4 * qt, 4)}, {v(V_XA + 2 * (stg % 2) + ks)} offset:{2048 * qt}"
            for ks in range(2) for qt in (2 * (j % 2), 2 * (j % 2) + 1)]


def q_mfmas(j):
    ab = A_QA + 32 * (j % 2)
    bb = A_QB + 32 * ((j // 2) % 2) + 16 * (j % 2)
    out = []
    for qt in range(4):
        for dd in range(8):
            dtile = dd if qt % 2 == 0 else 7 - dd
            d = v(V_QACC + 4 * (8 * qt + dtile), 4)
            out.append(f"{MF} {d}, {a(ab + 4 * dtile, 4)}, {a(bb + 4 * qt, 4)}, {'0' if j == 0 else d}")
    return out


def q_step(b, j, dm, wait, zero):
    if wait is not None:
        b(f"s_waitcnt vmcnt({wait})")
    b("s_barrier")
    if j == 1:
        stamp(b, 1)
    if OPT["stamp"] == 3:
        stamp(b, 32 + j)
    rd = q_breads(j) + q_areads(j)
    if j == 0:
        b.extend(rd)
        b.extend(flat(dm))
    else:
        gaps = [[] for _ in range(32)]
        nd = sum(x.startswith("buffer") for x in dm)
        busy = spread(gaps, dm, 2, 4 if nd > 6 else 5)
        fr = [g for g in range(30) if g not in busy]
        extra = len(rd) - len(fr)
        gi = 0
        for r in rd:
            lone = not gaps[fr[gi]]
            gaps[fr[gi]].append(r)
            if extra > 0 and sum(x.startswith("ds_") for x in gaps[fr[gi]]) == 1:
                extra -= 1
            else:
                if lone and zero:
                    gaps[fr[gi]].append(zero.pop(0))
                gi += 1
        if j % 2 == 1:
            nds = sum(x.startswith("ds_") for g in gaps[:15] for x in g)
            gaps[15].insert(0, f"s_waitcnt lgkmcnt({nds - 2})")
        b.extend(interleave(q_mfmas(j - 1), gaps))
    b("s_waitcnt lgkmcnt(0)")


JSPLIT = 19


def qproj_role(role3):
    b = Block()
    zero = [f"v_accvgpr_write_b32 {a(A_O + i)}, 0" for i in range(128)]
    for j in range(JSPLIT):
        if role3:
            dm = kv_half(j - OPT["kv3"]) if 0 <= j - OPT["kv3"] < 16 else []
            if OPT["ewt"] == 3 and j >= OPT["ew0"] and (j - OPT["ew0"]) % OPT["ews"] == 0 and (j - OPT["ew0"]) // OPT["ews"] < 4:
                i4 = (j - OPT["ew0"]) // OPT["ews"]
                dm = dm + [f"buffer_load_dword {v(V_JD + i4)}, v15, {s(SRD_WO, 4)}, {s(S_T2)} offen",
                           f"s_sub_u32 {s(S_T2)}, {s(S_T2)}, {(8 - OPT['ewh']) * 5 * 128}"]
            wait = 0 if j == 18 else (44 if j >= 11 else None)
        else:
            dm = job(j + 3) if j + 3 < 20 else []
            wait = 16 if j < 18 else 8
        if j == 18:
            dm = kv_pair(4, 0)
        q_step(b, j, dm, wait, zero)
    assert not zero
    return b


def qproj_end():
    b = Block()
    q_step(b, 19, kv_pair(6, 0), 4, [])
    gaps = [[] for _ in range(32)]
    kr = [k_read(0, kt, st, A_K0) for kt in range(2) for st in range(4)] + [k_read(2, kt, st) for kt in range(2) for st in range(4)]
    busy = set()
    gi = 0
    for r in kr[:13]:
        while gi in busy:
            gi += 1
        gaps[gi].append(r)
        gi += 1
    cv = conv_q(0, False)
    kr = kr[13:]
    for g in range(13, 32):
        if kr:
            gaps[g] += [kr.pop(0), cv.pop(0)]
        else:
            gaps[g] += [cv.pop(0), cv.pop(0)]
    b.extend(interleave(q_mfmas(19), gaps))
    for kt in range(2):
        for st in range(4):
            b(k_read(1, kt, st, A_K0 + 32))
    b.extend(cv)
    return b


def kernel():
    b = Block()
    b(KNAME + ":")
    b(f"""
    s_load_dwordx4 s[36:39], s[0:1], 0
    s_load_dwordx4 s[40:43], s[0:1], 16
    s_load_dwordx4 s[84:87], s[0:1], 32
    s_load_dwordx4 s[88:91], s[0:1], 48
    s_cmp_ge_u32 s2, 256
    s_cbranch_scc1 L1_end
    v_lshrrev_b32 v1, 6, v0
    v_and_b32 v0, 63, v0
    v_readfirstlane_b32 {s(S_WAVE)}, v1
    ; attention problem of this workgroup: b = 4*(j&1) + idx%4, h = 8*(j>>1) + idx/4  (j = id%8, idx = id/8)
    s_and_b32 {s(S_T0)}, s2, 7
    s_lshr_b32 {s(S_IDX)}, s2, 3
    s_and_b32 {s(S_B)}, {s(S_T0)}, 1
    s_lshl_b32 {s(S_B)}, {s(S_B)}, 2
    s_and_b32 {s(S_H)}, {s(S_IDX)}, 3
    s_add_u32 {s(S_B)}, {s(S_B)}, {s(S_H)}
    s_lshr_b32 {s(S_H)}, {s(S_T0)}, 1
    s_lshl_b32 {s(S_H)}, {s(S_H)}, 3
    s_lshr_b32 {s(S_T0)}, {s(S_IDX)}, 2
    s_add_u32 {s(S_H)}, {s(S_H)}, {s(S_T0)}
    s_lshl_b32 {s(S_W2048)}, {s(S_WAVE)}, 11
    ; instruction prefetch: every workgroup pulls one 8 KB chunk of this kernel's code into its L2 (16 lines per wave)
    s_getpc_b64 {s(SRD_CODE, 2)}
    L1_pc:
    s_sub_u32 {s(SRD_CODE)}, {s(SRD_CODE)}, L1_pc-{KNAME}
    s_subb_u32 {s(SRD_CODE + 1)}, {s(SRD_CODE + 1)}, 0
    s_mov_b32 {s(SRD_CODE + 2)}, L1_end-{KNAME}
    s_mov_b32 {s(SRD_CODE + 3)}, 0x20000
    s_and_b32 {s(S_T0)}, {s(S_IDX)}, 7
    s_lshl_b32 {s(S_T0)}, {s(S_T0)}, 13
    s_add_u32 {s(S_T0)}, {s(S_T0)}, {s(S_W2048)}
    ; lane fields: v1 = G = l/16, v2 = l%16, v3 = l/8, v4 = c = l%4, v5 = l%8, v7 = r = (l/4)%4
    v_and_b32 v2, 15, v0
    v_lshrrev_b32 v1, 4, v0
    v_lshl_add_u32 {v(V_CT)}, v2, 7, {s(S_T0)}
    v_lshrrev_b32 v3, 3, v0
    v_and_b32 v5, 7, v0
    {CTOUCH}
    ; job voffsets.  wq (wave 0): (4n + G)*8192 + ((l%16) ^ (G<<2))*16 - 1024n
    ;                x (waves 1, 2): (8n + l/8)*1280 + ((l%8) ^ (4(n&1) + G))*16 - 1024n
    v_lshlrev_b32 v9, 2, v1
    v_xor_b32 v9, v2, v9
    v_lshlrev_b32 v9, 4, v9
    v_lshl_add_u32 v9, v1, 13, v9
    v_xor_b32 v8, v5, v1
    v_lshlrev_b32 v8, 4, v8
    v_mul_u32_u24 v10, 1280, v3
    v_xor_b32 v11, 64, v8
    v_add_u32 v8, v10, v8
    v_add_u32 v11, v10, v11
    s_mov_b32 {s(S_T1)}, {8 * 1280 - 1024}
    s_cmp_eq_u32 {s(S_WAVE)}, 0
    s_cselect_b64 vcc, -1, 0
    s_cselect_b32 {s(S_T1)}, {4 * 8192 - 1024}, {s(S_T1)}
    s_lshl_b32 {s(S_T2)}, {s(S_T1)}, 1
    v_cndmask_b32 {v(V_JD)}, v8, v9, vcc
    v_cndmask_b32 v11, v11, v9, vcc
    v_add_u32 {v(V_JD + 1)}, {s(S_T1)}, v11
    v_add_u32 {v(V_JD + 2)}, {s(S_T2)}, {v(V_JD)}
    v_add_u32 {v(V_JD + 3)}, {s(S_T2)}, {v(V_JD + 1)}
    ; start stage of the k loop: (h%8 + 3*(b%4)) % 10, so that workgroups sharing x or wq fetch for each other
    s_and_b32 {s(S_T0)}, {s(S_IDX)}, 3
    s_mul_i32 {s(S_T0)}, {s(S_T0)}, {3 * OPT["qrot"]}
    s_lshr_b32 {s(S_T1)}, {s(S_IDX)}, 2
    s_mul_i32 {s(S_T1)}, {s(S_T1)}, {OPT["qrot"]}
    s_add_u32 {s(S_T0)}, {s(S_T0)}, {s(S_T1)}
    s_cmp_ge_u32 {s(S_T0)}, 10
    s_cselect_b32 {s(S_T1)}, 10, 0
    s_sub_u32 {s(S_T0)}, {s(S_T0)}, {s(S_T1)}
    s_sub_u32 {s(S_T1)}, {s(S_WAVE)}, 1
    s_mul_i32 {s(S_CNT)}, {s(S_T1)}, {128 * 1280}
    s_lshl_b32 {s(S_J0)}, {s(S_T0)}, 7
    s_add_u32 {s(S_J0)}, {s(S_J0)}, {s(S_CNT)}
    s_add_u32 {s(S_CNT)}, {s(S_CNT)}, 1280
    s_mov_b32 {s(S_KV)}, 1280
    s_mov_b32 {s(S_JDG)}, {64 * 1280}
    s_mov_b32 {s(S_JIA)}, {32 * 1280}
    s_mov_b32 {s(S_JIB)}, {128 - 32 * 1280}
    s_mov_b32 {s(S_JMD)}, 8192
    s_lshl_b32 {s(S_T1)}, {s(S_T1)}, 14
    s_add_u32 {s(S_JM)}, {s(S_T1)}, {XBUF[0]}
    s_add_u32 {s(S_JM + 1)}, {s(S_T1)}, {XBUF[0] + 4096}
    s_add_u32 {s(S_JM + 2)}, {s(S_T1)}, {XBUF[1]}
    s_add_u32 {s(S_JM + 3)}, {s(S_T1)}, {XBUF[1] + 4096}
    s_mul_i32 {s(S_T2)}, {s(S_B)}, 307200
    s_mov_b32 {s(SRD_J + 2)}, 307200
    s_mov_b32 {s(SRD_J + 3)}, 0x20000
    s_cmp_lg_u32 {s(S_WAVE)}, 0
    s_cbranch_scc1 L1_xjob
    s_lshl_b32 {s(S_J0)}, {s(S_T0)}, 19
    s_mov_b32 {s(S_CNT)}, {640 * 8192}
    s_mov_b32 {s(S_KV)}, {640 * 8192}
    s_mov_b32 {s(S_JDG)}, {16 * 8192}
    s_mov_b32 {s(S_JIA)}, {32 * 8192}
    s_mov_b32 {s(S_JIB)}, {32 * 8192}
    s_mov_b32 {s(S_JMD)}, 4096
    s_mov_b32 {s(S_JM)}, {LDS_WQ}
    s_mov_b32 {s(S_JM + 1)}, {LDS_WQ + 8192}
    s_mov_b32 {s(S_JM + 2)}, {LDS_WQ + 2 * 8192}
    s_mov_b32 {s(S_JM + 3)}, {LDS_WQ + 3 * 8192}
    s_lshl_b32 {s(S_T2)}, {s(S_H)}, 8
    s_sub_u32 {s(SRD_J + 2)}, {640 * 8192}, {s(S_T2)}
    L1_xjob:
    s_waitcnt lgkmcnt(0)
    s_mov_b32 {s(S_JLIM)}, {s(S_CNT)}
    s_mov_b32 {s(S_JWRAP)}, {s(S_KV)}
    s_cmp_eq_u32 {s(S_WAVE)}, 0
    s_cselect_b32 {s(SRD_J)}, s42, s36
    s_cselect_b32 {s(SRD_J + 1)}, s43, s37
    s_add_u32 {s(SRD_J)}, {s(SRD_J)}, {s(S_T2)}
    s_addc_u32 {s(SRD_J + 1)}, {s(SRD_J + 1)}, 0
    """)
    stamp(b, 0)
    b(f"""
    s_mov_b32 {s(SRD_WO)}, s84
    s_mov_b32 {s(SRD_WO + 1)}, s85
    s_mov_b32 {s(SRD_WO + 2)}, {4096 * 1280}
    s_mov_b32 {s(SRD_WO + 3)}, 0x20000
    s_cmp_eq_u32 {s(S_WAVE)}, 3
    s_cbranch_scc1 L1_w3
    """)
    jobs0 = Block()
    jobs0.extend(flat(job(0) + job(1) + job(2)))
    jobs0("s_branch L1_nojob")
    jobs0("L1_w3:")
    w3 = Block()
    if OPT["ewt"] == 1:
        nl = (8 - OPT["ewh"]) * 20
        w3(f"""
        ; wave 3 pulls this workgroup's share of wo (heads {OPT["ewh"]}..7 of every group of 8) into the last-level cache
        s_lshr_b32 {s(S_T0)}, s2, 6
        s_mul_i32 {s(S_T2)}, {s(S_T0)}, {1024 * 1280}
        s_and_b32 {s(S_T0)}, s2, 63
        s_mul_i32 {s(S_T0)}, {s(S_T0)}, {nl * 128}
        s_add_u32 {s(S_T2)}, {s(S_T2)}, {s(S_T0)}
        s_add_u32 {s(S_T2)}, {s(S_T2)}, {OPT["ewh"] * 128 * 1280}
        v_lshlrev_b32 v8, 7, v0
        """)
        done_ = 0
        i_ = 0
        while done_ < nl:
            if nl - done_ < 64:
                w3(f"v_min_u32 v8, {(nl - done_ - 1) * 128}, v8")
            w3(f"buffer_load_dword {v(V_JD + i_)}, v8, {s(SRD_WO, 4)}, {s(S_T2)} offen")
            w3(f"s_add_u32 {s(S_T2)}, {s(S_T2)}, 8192")
            done_ += 64
            i_ += 1
    b2 = Block()
    b2("L1_nojob:")
    b2(f"""
    ; hand-off counters live in ws + 32 MB (256 B apart); wave 3 of workgroups 0..31 clears one each
    s_add_u32 {s(SRD_FL)}, s90, 0x2000000
    s_addc_u32 {s(SRD_FL + 1)}, s91, 0
    s_mov_b32 {s(SRD_FL + 2)}, 8192
    s_mov_b32 {s(SRD_FL + 3)}, 0x20000
    s_mov_b32 {s(SRD_DBG)}, s88
    s_mov_b32 {s(SRD_DBG + 1)}, s89
    s_mov_b32 {s(SRD_DBG + 2)}, 256
    s_mov_b32 {s(SRD_DBG + 3)}, 0x20000
    v_mov_b32 {v(V_Z)}, 0
    s_xor_b32 {s(S_T0)}, {s(S_WAVE)}, 3
    s_lshl_b32 {s(S_T0)}, {s(S_T0)}, 5
    s_add_u32 {s(S_INIT)}, {s(S_T0)}, s2
    s_cmp_ge_u32 {s(S_INIT)}, 32
    s_cbranch_scc1 L1_noclr
    s_lshl_b32 {s(S_T0)}, s2, 8
    s_mov_b64 exec, 1
    buffer_store_dword {v(V_Z)}, {v(V_Z)}, {s(SRD_FL, 4)}, {s(S_T0)} offen sc1 ; rare
    s_mov_b64 exec, -1
    L1_noclr:
    s_lshl_b32 {s(S_XC)}, {s(S_WAVE)}, 13
    v_and_b32 v4, 3, v0
    v_bfe_u32 v7, v0, 2, 2
    v_lshl_add_u32 v8, v1, 3, v7
    v_lshlrev_b32 v8, 8, v8
    v_lshl_add_u32 v8, v7, 6, v8
    v_lshl_add_u32 v8, v4, 4, v8
    v_add_u32 {v(V_WA)}, {LDS_WQ}, v8
    v_xor_b32 {v(V_WA + 1)}, 64, {v(V_WA)}
    v_xor_b32 {v(V_WA + 2)}, 0x80, {v(V_WA)}
    v_xor_b32 {v(V_WA + 3)}, 0xc0, {v(V_WA)}
    ; x read: buffer + w*8192 + (l%16)*128 + ((G ^ ((l%16)>>1))*16) ^ (ks*64)
    v_lshrrev_b32 v8, 1, v2
    v_xor_b32 v8, v1, v8
    v_lshlrev_b32 v8, 4, v8
    v_lshl_add_u32 v8, v2, 7, v8
    v_add_u32 v8, {s(S_XC)}, v8
    v_add_u32 {v(V_XA)}, {XBUF[0]}, v8
    v_xor_b32 {v(V_XA + 1)}, 64, {v(V_XA)}
    v_add_u32 {v(V_XA + 2)}, {XBUF[1]}, v8
    v_xor_b32 {v(V_XA + 3)}, 64, {v(V_XA + 2)}
    s_add_u32 {s(S_XC)}, {s(S_XC)}, {LDS_WQ}
    s_lshl_b32 {s(S_T0)}, {s(S_B)}, 5
    s_add_u32 {s(S_T0)}, {s(S_T0)}, {s(S_H)}
    s_lshl_b32 {s(S_T0)}, {s(S_T0)}, 19
    s_add_u32 {s(SRD_K)}, s38, {s(S_T0)}
    s_addc_u32 {s(SRD_K + 1)}, s39, 0
    s_mov_b32 {s(SRD_K + 2)}, 524288
    s_mov_b32 {s(SRD_K + 3)}, 0x20000
    s_add_u32 {s(SRD_V)}, s40, {s(S_T0)}
    s_addc_u32 {s(SRD_V + 1)}, s41, 0
    s_mov_b32 {s(SRD_V + 2)}, 524288
    s_mov_b32 {s(SRD_V + 3)}, 0x20000
    ; K DMA voffsets: G*256 + ((l%16) ^ (4n + G))*16 ; V: G*256 + ((l%16) ^ ((4(n&1) + G)<<1))*16
    s_lshl_b32 {s(S_W4096)}, {s(S_WAVE)}, 12
    s_add_u32 {s(S_KV)}, {s(S_W4096)}, {4 * 8192}
    s_mov_b32 {s(S_VV)}, {s(S_KV)}
    v_xor_b32 v8, v2, v1
    v_lshlrev_b32 v8, 4, v8
    v_lshl_add_u32 {v(V_KD)}, v1, 8, v8
    v_xor_b32 {v(V_KD + 1)}, 64, {v(V_KD)}
    v_xor_b32 {v(V_KD + 2)}, 0x80, {v(V_KD)}
    v_xor_b32 {v(V_KD + 3)}, 0xc0, {v(V_KD)}
    v_lshlrev_b32 v9, 1, v1
    v_xor_b32 v9, v2, v9
    v_lshlrev_b32 v9, 4, v9
    v_lshl_add_u32 {v(V_VD)}, v1, 8, v9
    v_xor_b32 {v(V_VD + 1)}, 0x80, {v(V_VD)}
    s_mul_i32 {s(S_T0)}, {s(S_B)}, {15 * 131072}
    s_add_u32 {s(SRD_O)}, s90, {s(S_T0)}
    s_addc_u32 {s(SRD_O + 1)}, s91, 0
    s_mov_b32 {s(SRD_O + 2)}, {15 * 131072}
    s_mov_b32 {s(SRD_O + 3)}, 0x20000
    ; K read: (l%16)*256 + ((G ^ (l%16))*16) ^ (s*64)
    v_lshl_add_u32 {v(V_KA)}, v2, 8, v8
    v_xor_b32 {v(V_KA + 1)}, 64, {v(V_KA)}
    v_xor_b32 {v(V_KA + 2)}, 0x80, {v(V_KA)}
    v_xor_b32 {v(V_KA + 3)}, 0xc0, {v(V_KA)}
    v_lshl_add_u32 v8, v1, 2, v7
    v_and_b32 v9, 7, v8
    v_lshlrev_b32 v8, 8, v8
    v_lshl_add_u32 v8, v9, 5, v8
    v_lshl_add_u32 v8, v4, 3, v8
    v_add_u32 {v(V_VA)}, {LDS_V}, v8
    """)
    for dt in range(1, 8):
        b2(f"v_xor_b32 {v(V_VA + dt)}, {32 * dt}, {v(V_VA)}")
    for i in range(4):
        b2(f"v_mov_b32 {v(V_ONE + i)}, 0x3f803f80")
    b2(f"""
    v_lshlrev_b32 {v(V_OD)}, 4, v0
    ; O store voffset: ((l%16)/4)*1024 + (4*(l%4) + G)*16
    v_lshl_add_u32 v8, v4, 2, v1
    v_lshlrev_b32 v8, 4, v8
    v_lshl_add_u32 {v(V_OS)}, v7, 10, v8
    s_mov_b32 {s(S_SCALE)}, {f32(SCALE)}
    s_mov_b32 {s(S_SCALE + 1)}, {f32(SCALE)}
    ; ---- O-projection tile of this workgroup: batch 4*(1 - (j&1)) + (j>>1), row tile idx/10, column tile idx%10
    s_mul_i32 {s(S_T1)}, {s(S_IDX)}, 26
    s_lshr_b32 {s(S_T1)}, {s(S_T1)}, 8
    s_mul_i32 {s(S_T0)}, {s(S_T1)}, 10
    s_sub_u32 {s(S_CT)}, {s(S_IDX)}, {s(S_T0)}
    s_andn2_b32 {s(S_B2)}, 1, s2
    s_lshl_b32 {s(S_B2)}, {s(S_B2)}, 2
    s_bfe_u32 {s(S_T0)}, s2, 0x20001
    s_add_u32 {s(S_B2)}, {s(S_B2)}, {s(S_T0)}
    s_mul_i32 {s(S_T0)}, {s(S_B2)}, 15
    s_min_u32 {s(S_T1)}, {s(S_T1)}, 2
    s_mul_i32 {s(S_T1)}, {s(S_T1)}, 5
    s_add_u32 {s(S_T0)}, {s(S_T0)}, {s(S_T1)}
    s_lshl_b32 {s(S_T1)}, {s(S_T0)}, 17
    s_add_u32 {s(SRD_OO)}, s90, {s(S_T1)}
    s_addc_u32 {s(SRD_OO + 1)}, s91, 0
    s_mov_b32 {s(SRD_OO + 2)}, {5 * 131072}
    s_mov_b32 {s(SRD_OO + 3)}, 0x20000
    s_mul_i32 {s(S_T1)}, {s(S_T0)}, {16 * 1280}
    s_add_u32 {s(SRD_OUT)}, s86, {s(S_T1)}
    s_addc_u32 {s(SRD_OUT + 1)}, s87, 0
    s_mov_b32 {s(SRD_OUT + 2)}, {80 * 1280}
    s_mov_b32 {s(SRD_OUT + 3)}, 0x20000
    s_mul_i32 {s(S_WB)}, {s(S_WAVE)}, {1024 * 1280}
    s_lshl_b32 {s(S_T0)}, {s(S_CT)}, 7
    s_add_u32 {s(S_WB)}, {s(S_WB)}, {s(S_T0)}
    s_lshl_b32 {s(S_OB)}, {s(S_WAVE)}, 15
    ; share of wo (heads {OPT["ewh"]}..7 of every group of 8) that this wave pulls into the last-level cache
    s_lshr_b32 {s(S_T0)}, s2, 6
    s_mul_i32 {s(S_T2)}, {s(S_T0)}, {1024 * 1280}
    s_and_b32 {s(S_T0)}, s2, 63
    s_lshl_b32 {s(S_T0)}, {s(S_T0)}, 2
    s_add_u32 {s(S_T0)}, {s(S_T0)}, {s(S_WAVE)}
    s_mul_i32 {s(S_T0)}, {s(S_T0)}, {(8 - OPT["ewh"]) * 5 * 128}
    s_add_u32 {s(S_T2)}, {s(S_T2)}, {s(S_T0)}
    s_add_u32 {s(S_T2)}, {s(S_T2)}, {OPT["ewh"] * 128 * 1280}
    v_min_u32 v15, {(8 - OPT["ewh"]) * 5 - 1}, v0
    v_lshlrev_b32 v15, 7, v15
    s_lshl_b32 {s(S_POLL)}, {s(S_B2)}, 2
    s_add_u32 {s(S_POLL)}, {s(S_POLL)}, {s(S_WAVE)}
    s_lshl_b32 {s(S_POLL)}, {s(S_POLL)}, 8
    ; wo DMA voffset n: (64(n/2) + 2(n%2) + 16*((l/8)%4) + l/32)*1280 + (((l%8) ^ (G<<1))*16) - 1024n
    v_and_b32 v8, 3, v3
    v_lshlrev_b32 v8, 4, v8
    v_lshrrev_b32 v9, 5, v0
    v_add_u32 v8, v8, v9
    v_mul_u32_u24 v8, 1280, v8
    v_lshlrev_b32 v9, 1, v1
    v_xor_b32 v9, v5, v9
    v_lshl_add_u32 {v(V_WDD)}, v9, 4, v8
    v_add_u32 {v(V_WDD + 1)}, {2 * 1280 - 1024}, {v(V_WDD)}
    v_add_u32 {v(V_WDD + 2)}, {64 * 1280 - 2048}, {v(V_WDD)}
    v_add_u32 {v(V_WDD + 3)}, {66 * 1280 - 3072}, {v(V_WDD)}
    s_cmp_eq_u32 {s(S_WAVE)}, 3
    s_cbranch_scc1 L1_q3
    """)
    qa = qproj_role(False)
    qb = qproj_role(True)
    qe = qproj_end()
    stamp(qe, 2)

    mid = Block()
    mid.extend(conv_q(1, True))
    mid(f"""
    s_waitcnt lgkmcnt(0)
    s_barrier
    s_cmp_ge_u32 {s(S_INIT)}, 32
    s_cbranch_scc1 L1_norep
    v_mov_b32 v8, 1
    s_mov_b64 exec, 1
    buffer_atomic_add v8, {v(V_Z)}, {s(SRD_DBG, 4)}, 0 offen offset:128 sc1 ; rare
    s_mov_b64 exec, -1
    L1_norep:
    """)
    cv = conv_q(2, True) + conv_q(3, True)
    pos = 0
    for x in kv_pair(4, 1):
        mid(x)
        n = 14 if x.startswith("buffer") else 2
        mid.extend(cv[pos:pos + n])
        pos += n
    mid.extend(cv[pos:])
    mid(f"s_cmp_eq_u32 {s(S_WAVE)}, 3")
    mid(f"s_cselect_b32 {s(S_T1)}, {f32(1e4)}, 0")

    def max_chain(qt):
        S = V_S + 8 * qt
        m = V_P + 32 + 2 * qt
        out = [f"v_max3_f32 {v(m)}, {v(S)}, {v(S + 1)}, {v(S + 2)}",
               f"v_max3_f32 {v(m + 1)}, {v(S + 3)}, {v(S + 4)}, {v(S + 5)}",
               f"v_max3_f32 {v(m)}, {v(m)}, {v(S + 6)}, {v(S + 7)}",
               f"v_max_f32 {v(m)}, {v(m)}, {v(m + 1)}",
               f"v_mov_b32 {v(m + 1)}, {v(m)}", "s_nop 1",
               f"v_permlane16_swap_b32 {v(m)}, {v(m + 1)}",
               f"v_max_f32 {v(m)}, {v(m)}, {v(m + 1)}",
               f"v_mov_b32 {v(m + 1)}, {v(m)}", "s_nop 1",
               f"v_permlane32_swap_b32 {v(m)}, {v(m + 1)}",
               f"v_max_f32 {v(m)}, {v(m)}, {v(m + 1)}"]
        if qt == 3:
            out.append(f"v_add_f32 {v(m)}, {s(S_T1)}, {v(m)}")
        out += [f"v_sub_f32 {v(V_NM + 4 * qt + i)}, 0, {v(m)}" for i in range(4)]
        out += [f"v_sub_f32 {v(S + i)}, {v(S + i)}, {v(m)}" for i in range(8)]
        out += [sm_exp(8 * qt + i) for i in range(8)]
        out += [sm_cvt(8 * qt + i, 0) for i in range(1, 8, 2)]
        return out

    def soft1(qt):
        out = [sm_exp(e) for e in range(8 * qt, 8 * qt + 8) if EG[e] < NG]
        return out + [sm_cvt(e, 1) for e in range(8 * qt + 1, 8 * qt + 8, 2) if CG[e] < NG]

    addr = [f"v_mov_b32 {v(V_LM + i)}, 0" for i in range(16)]
    addr += ["v_lshl_add_u32 v10, v1, 2, v7", "v_bfe_u32 v9, v10, 1, 2", "v_lshlrev_b32 v10, 7, v10",
             "v_lshl_add_u32 v10, v4, 3, v10", "v_lshl_add_u32 v10, v9, 5, v10",
             f"v_add_u32 {v(V_AA)}, {s(S_W4096)}, v10", f"v_add_u32 {v(V_AA + 4)}, {LDS_V}, {v(V_AA)}",
             f"v_add_u32 {v(V_AA + 8)}, {s(S_XC)}, v10"]
    addr += [f"v_xor_b32 {v(V_AA + 4 * wdw + nt)}, {32 * nt}, {v(V_AA + 4 * wdw)}" for wdw in range(3) for nt in range(1, 4)]
    mfs = qk_all(True, A_K0) + qk_all(False, A_K0 + 32)
    work = [(x, qt) for qt in range(4) for x in max_chain(qt)] + [(x, 4 + qt) for qt in range(4) for x in soft1(qt)]
    chain_end = {qt: max(i for i, (_, blk) in enumerate(work) if blk == qt) for qt in range(4)}
    seq = []
    mi = wi = 0
    fin_at = {}

    def ready():
        return wi < len(work) and work[wi][1] in fin_at and len(seq) - fin_at[work[wi][1]] > 8

    while mi < len(mfs) or wi < len(work):
        can_mf = mi < len(mfs) and (mi < 32 or wi > chain_end[(mi - 32) // 8])
        slots = 1
        if can_mf:
            seq.append(mfs[mi])
            if mi % 8 == 7:
                fin_at[mi // 8] = len(seq) - 1
            mi += 1
            slots = 2
        n0 = len(seq)
        while slots > 0:
            if ready():
                x = work[wi][0]
                wi += 1
            elif addr:
                x = addr.pop(0)
            else:
                break
            seq.append(x)
            slots -= 2 if x.startswith("v_exp") else 1
        if not can_mf and len(seq) == n0:
            seq.append("s_nop 0")
    seq += addr
    if True:
        wo01 = kv_pair(8, 0)
        mpos = [i for i, x in enumerate(seq) if x.startswith("v_mfma")]
        at = 12
        ins = {}
        for x in wo01:
            ins[mpos[at]] = x
            at += 8 if x.startswith("buffer") else 1
        seq = [y for i, x in enumerate(seq) for y in ([x, ins[i]] if i in ins else [x])]
    mid("; wo tr-read addresses: (4G + r)*128 + ((nt ^ (2(G&1) + r/2))*32) + 8c + window base")
    mid.extend(seq)
    mid(f"s_mov_b32 {s(S_CNT)}, 7")
    if OPT["stamp"] == 4:
        mid(f"s_mov_b32 {s(S_SI)}, 2")
    stamp(mid, 3)
    mid("s_branch L1_it2")

    it0 = Block()
    it0.extend(subtile(0))
    it0.extend(subtile(1))
    body = Block()
    for t in range(2, 8):
        body.extend(subtile(t))
    if OPT["stamp"] in (2, 3):
        body(f"s_sub_u32 {s(S_T0)}, 22, {s(S_CNT)}")
        body(f"s_mov_b32 m0, {s(S_T0)}")
        stamp(body, "m0")
        body(f"s_cmp_gt_u32 {s(S_CNT)}, {0 if OPT['wmid'] else 1}")
    body("s_cbranch_scc1 L1_loop")
    wo01 = Block()
    wo01(f"s_cmp_eq_u32 {s(S_CNT)}, 0")
    wo01("s_cbranch_scc1 L1_last")
    for i in range(0 if OPT["wmid"] else 2):
        wo01.extend([x + " ; rare" for x in [cell_m0(CELL0[i]), wo_off(i)] + [wo_dma(n) for n in range(4)]])
    wo01("s_branch L1_loop ; rare")
    wo01("L1_last:")

    post = Block()
    vm = VM()
    for tag in [("K", 58), ("V", 56), ("K", 60), ("V", 58), ("K", 62)]:
        vm.add(tag, 4)
    for t in range(8):
        post.extend(subtile(t, vm, True))
    stamp(post, 23)
    vr = v_reads(6, 1)
    post.extend(vr[:4])
    for e in range(32):
        if EG[e] >= NG:
            post(sm_exp(e))
    post(f"s_mov_b32 {s(S_T2)}, {f32(2.0 ** 40)}")
    for e, g in CG.items():
        if g >= NG:
            post(sm_cvt(e, 63))
    post(wo_off(12))
    post(cell_m0(CELL0[12]))
    om = [ones_mf(qt, 62 + sub) for qt in range(4) for sub in ((0, 1) if qt % 2 == 0 else (1, 0))]
    post.extend(interleave(om, [vr[4:6], vr[6:8], vr[8:10], vr[10:12], vr[12:14], vr[14:16], [wo_dma(0)], [wo_dma(1)]]))
    post(wo_dma(2))
    post(wo_dma(3))
    post("s_waitcnt lgkmcnt(0)")
    epi = Block()
    epi("L1_epi:")
    tail1, fast, tail2 = oproj_tail()
    epi.extend(tail1)
    n_slow = len(epi.instrs())
    epi.extend(fast)
    epi.extend(tail2)
    epi("L1_fin:")
    if OPT["stamp"]:
        epi("s_waitcnt vmcnt(0)")
        stamp(epi, 25)
        stamp_store(epi, "L1_end")
    epi("L1_end:")
    epi("s_endpgm")

    V_M = V_P + 16
    V_T = V_P + 20
    fb = Block()
    fb("L1_fallback:")
    fb(f"""
    s_waitcnt vmcnt(0) lgkmcnt(0)
    s_mov_b32 {s(S_T2)}, 0x7f800000
    s_sub_u32 {s(S_T0)}, {s(S_W4096)}, {LDS_V - 32768}
    v_lshlrev_b32 v11, 4, v1
    s_nop 7
    """)
    for i in range(4):
        fb(f"v_add_u32 {v(V_KA + i)}, {s(S_W4096)}, {v(V_KA + i)}")
    for i in range(8):
        fb(f"v_add_u32 {v(V_VA + i)}, {s(S_T0)}, {v(V_VA + i)}")
    for i in range(128):
        fb(f"v_accvgpr_write_b32 {a(A_O + i)}, 0")
    for i in range(16):
        fb(f"v_mov_b32 {v(V_LM + i)}, 0")
    for qt in range(4):
        fb(f"v_mov_b32 {v(V_M + qt)}, {f32(-3e38)}")
    fb(f"s_mov_b32 {s(S_KV)}, 0")
    fbl = Block()
    for q in range(2):
        fbl(f"s_add_u32 m0, {s(S_W4096)}, {16384 * q}")
        fbl(f"s_add_u32 {s(S_T0)}, {s(S_KV)}, {4096 * q}")
        for n in range(4):
            fbl(k_dma(n, s(S_T0)))
        fbl(f"s_add_u32 m0, {s(S_W4096)}, {32768 + 16384 * q}")
        fbl("s_nop 0")
        for n in range(4):
            fbl(v_dma(n, s(S_T0)))
    fbl("s_waitcnt vmcnt(0)")
    for kt in range(2):
        for st in range(4):
            fbl(f"ds_read_b128 {a(A_K + 16 * kt + 4 * st, 4)}, {v(V_KA + st)} offset:{kt * 16384}")
    for dt in range(8):
        for kt in range(2):
            fbl(f"ds_read_b64_tr_b16 {a(A_V + 4 * dt + 2 * kt, 2)}, {v(V_VA + dt)} offset:{kt * 16384}")
        if dt % 2:
            fbl("s_waitcnt lgkmcnt(0)")
    fbl.extend(qk_all(True))
    fbl("s_nop 7")
    for qt in range(4):
        S = V_S + 8 * qt
        m, m2, al, alt = V_T, V_T + 1, V_T + 2, V_T + 4
        M = V_M + qt
        fbl(f"v_max3_f32 {v(m)}, {v(S)}, {v(S + 1)}, {v(M)}")
        for i in range(2, 8, 2):
            fbl(f"v_max3_f32 {v(m)}, {v(m)}, {v(S + i)}, {v(S + i + 1)}")
        for swap in ("v_permlane16_swap_b32", "v_permlane32_swap_b32"):
            fbl(f"v_mov_b32 {v(m2)}, {v(m)}")
            fbl("s_nop 1")
            fbl(f"{swap} {v(m)}, {v(m2)}")
            fbl(f"v_max_f32 {v(m)}, {v(m)}, {v(m2)}")
        fbl(f"v_sub_f32 {v(al)}, {v(M)}, {v(m)}")
        fbl(f"v_exp_f32 {v(al)}, {v(al)}")
        fbl(f"v_mov_b32 {v(M)}, {v(m)}")
        for r in range(4):
            fbl(f"ds_bpermute_b32 {v(alt + r)}, v11, {v(al)} offset:{4 * r}")
        for e in range(8):
            fbl(f"v_sub_f32 {v(S + e)}, {v(S + e)}, {v(m)}")
        for e in range(8):
            fbl(sm_exp(8 * qt + e))
        fbl("s_waitcnt lgkmcnt(0)")
        for e in range(1, 8, 2):
            fbl(sm_cvt(8 * qt + e, 0))
        for r in range(4):
            fbl(f"v_mul_f32 {v(V_LM + 4 * qt + r)}, {v(V_LM + 4 * qt + r)}, {v(alt + r)}")
        for i in range(32):
            r = A_O + 32 * qt + i
            fbl(f"v_accvgpr_read_b32 {v(m2)}, {a(r)}")
            fbl(f"v_mul_f32 {v(m2)}, {v(m2)}, {v(alt + i % 4)}")
            fbl(f"v_accvgpr_write_b32 {a(r)}, {v(m2)}")
        fbl("s_nop 1")
        for dt in range(8):
            fbl(pv(qt, dt, 0, A_V + 4 * dt))
        fbl(ones_mf(qt, 0))
    fbl("s_nop 7")
    fbl(f"s_add_u32 {s(S_KV)}, {s(S_KV)}, 8192")
    fbl(f"s_cmp_lt_u32 {s(S_KV)}, 524288")
    fbl("s_cbranch_scc1 L1_fbloop")
    fbe = Block()
    for i in range(32):
        fbe(f"v_mov_b32 {v(V_P + 32 + i)}, 0")
    for i in range(64):
        fbe(f"v_accvgpr_write_b32 {a(A_K + i)}, 0")
    for i in range(NREG0, NREG0 + 9):
        fbe(cell_m0(CELL0[i]))
        fbe(wo_off(i))
        for n in range(4):
            fbe(wo_dma(n))
    fbe("s_branch L1_epi")

    ep = epi.instrs()
    nf = len(fast.instrs())
    ep_slow = ep[:n_slow] + ep[n_slow + nf:]
    br = next(i for i, x in enumerate(ep) if "L1_ready" in x) + 1
    ep_fast = ep[:br] + ep[n_slow:]
    loop = body.instrs() + it0.instrs() + body.instrs()
    check_trace(b.instrs() + jobs0.instrs() + b2.instrs() + qa.instrs() + qe.instrs() + mid.instrs() + loop + post.instrs() + ep_slow, "main")
    check_trace(b.instrs() + w3.instrs() + b2.instrs() + qb.instrs() + qe.instrs() + mid.instrs() + body.instrs(), "wave3")
    check_trace(post.instrs() + ep_fast, "fast")
    cut = next(i for i, x in enumerate(ep) if "L1_fallback" in x) + 1
    check_trace(post.instrs() + ep[:cut] + fb.instrs() + fbl.instrs() * 2 + fbe.instrs() + ep_slow, "fallback")

    out = Block()
    out.extend(b)
    out.extend(jobs0)
    out.extend(w3)
    out.extend(b2)
    out.extend(qa)
    out("s_branch L1_qend")
    out("L1_q3:")
    out.extend(qb)
    out("L1_qend:")
    out.extend(qe)
    out.extend(mid)
    out(".p2align 6")
    out("L1_loop:")
    out.extend(it0)
    out("L1_it2:")
    out.extend(body)
    if not OPT["wmid"]:
        out.extend(wo01)
    out.extend(post)
    out.extend(epi)
    out.extend(fb)
    out("L1_fbloop:")
    out.extend(fbl)
    out.extend(fbe)
    return out


def oproj_tail():
    V_OA = 16
    V_OUT = 21
    V_PL = 22
    V_R = V_NM
    V_TMP = V_S
    NPRE = OPT["npre"]
    N0 = NREG0 + 9
    t1 = Block()
    vm = VM()
    for i in range(NREG0, N0):
        vm.add(("wo", i), 4)
    cellof = {i: CELL0[i] for i in range(N0)}
    freecells = []
    pool = [("v", 48 + 4 * i) for i in range(16)]
    pool += [("a", 128 + 4 * i) for i in range(16)]
    pool += [("v", 144 + 4 * i) for i in range(16)]
    pool += [("v", V_LM + 4 * i) for i in range(4)]
    late = [("a", 80 + 4 * i) for i in range(12)] + [("v", 112 + 4 * i) for i in range(8)] + [("v", V_NM + 4 * i) for i in range(4)]
    areg = dict(AREG0)

    def a_reads(i):
        areg[i] = [pool.pop(0) for _ in range(4)]
        return wo_reads(areg[i], cellof[i])

    nd = [N0]

    def wo_grp():
        i = nd[0]
        nd[0] += 1
        cellof[i] = freecells.pop(0)
        vm.add(("wo", i), 4)
        return [cell_m0(cellof[i]), wo_off(i)] + [wo_dma(n) for n in range(4)]

    fin = pv_chains([(qt, dd if qt % 2 == 0 else 7 - dd) for qt in range(4) for dd in range(8)], 62,
                    lambda dt: A_K if dt < 4 else A_V)
    m = 8
    guard = [f"v_max3_f32 {v(m)}, {v(V_LM)}, {v(V_LM + 1)}, {v(V_LM + 2)}"]
    guard += [f"v_max3_f32 {v(m)}, {v(m)}, {v(V_LM + i)}, {v(V_LM + i + 1)}" for i in range(3, 15, 2)]
    guard += [f"v_max_f32 {v(m)}, {v(m)}, {v(V_LM + 15)}"]
    gaps = [[], [], []] + [guard[2 * i:2 * i + 2] for i in range(4)]
    gaps[0] = ["s_nop 1"]
    t1.extend(interleave(fin[:7], gaps))
    t1(f"v_cmp_gt_f32 vcc, {v(m)}, {s(S_T2)}")
    t1(fin[7])
    t1(f"s_lshl_b32 {s(S_T0)}, {s(S_WAVE)}, 19")
    t1("s_cbranch_vccnz L1_fallback")
    t1(f"s_lshl_b32 {s(S_T1)}, {s(S_H)}, 12")
    t1(f"s_add_u32 {s(S_T0)}, {s(S_T0)}, {s(S_T1)}")
    rcp = [f"v_rcp_f32 {v(V_R + i)}, {v(V_LM + i)}" for i in range(16)]

    def group(qt, r, packed):
        tb = V_TMP + 12 * ((4 * qt + r) % 2)
        out = [f"v_accvgpr_read_b32 {v(tb + i)}, {a(A_O + 32 * qt + 4 * i + r)}" for i in range(8)]
        if packed:
            sel = "op_sel_hi:[1,0]" if r % 2 == 0 else "op_sel:[0,1] op_sel_hi:[1,1]"
            out += [f"v_pk_mul_f32 {v(tb + 2 * i, 2)}, {v(tb + 2 * i, 2)}, {v(V_R + 4 * qt + (r & 2), 2)} {sel}" for i in range(4)]
        else:
            out += [f"v_mul_f32 {v(tb + i)}, {v(tb + i)}, {v(V_R + 4 * qt + r)}" for i in range(8)]
        out += [f"v_cvt_pk_bf16_f32 {v(tb + 8 + i)}, {v(tb + 2 * i)}, {v(tb + 2 * i + 1)}" for i in range(4)]
        out.append(f"buffer_store_dwordx4 {v(tb + 8, 4)}, {v(V_OS)}, {s(SRD_O, 4)}, {s(S_T0)} offen offset:{r * 256} sc1")
        return out

    NEARLY = OPT["nearly"]
    na = NREG0
    mem = []
    for i in range(NREG0, NREG0 + OPT["drc"]):
        mem.append(lambda i=i: f"s_waitcnt vmcnt({vm.cnt(('wo', i))})")
        mem += a_reads(i)
        if i > NREG0:
            mem.append("s_waitcnt lgkmcnt(8)")
            mem.append(("refill", i - 1))
        na += 1
    val = rcp[:8] + [None] + [x for r in range(NEARLY) for x in group(0, r, False)]
    gaps = [[] for _ in range(56)]
    for gi in range(56):
        slots = 2
        if val and val[0] is not None and val[0].startswith("buffer"):
            gaps[gi].append(val.pop(0))
            vm.add("st")
            continue
        if mem:
            x = mem.pop(0)
            if isinstance(x, tuple):
                freecells.append(cellof[x[1]])
                i = nd[0]
                nd[0] += 1
                cellof[i] = freecells.pop(0)
                mem = [wo_off(i)] + [y for n in range(4) for y in (("dma", i, n), "")] + mem
                mem = [((lambda i=y[1], n=y[2]: (vm.add(("wo", i)), wo_dma(n))[1]) if isinstance(y, tuple) and y[0] == "dma" else y) for y in mem]
                x = cell_m0(cellof[i])
            elif callable(x):
                x = x()
            if x:
                gaps[gi].append(x)
            slots = 0 if x.startswith("buffer") else (1 if x.startswith("ds_") else 2)
        while slots > 0 and val:
            if val[0] is None:
                if gi < 12:
                    break
                val.pop(0)
                continue
            if val[0].startswith("buffer"):
                break
            cost = 2 if val[0].startswith("v_rcp") else 1
            gaps[gi].append(val.pop(0))
            slots -= cost
    assert not mem, mem
    t1.extend(interleave(fin[8:], gaps))
    for x in val:
        t1(x)
        if x.startswith("buffer"):
            vm.add("st")
    t1.extend(rcp[8:])
    t1(f"""
    ; O load voffset: ((l%16)/4)*256 + G*64 + (l%4)*16 + mt*131072
    v_lshlrev_b32 v8, 8, v7
    v_lshl_add_u32 v8, v1, 6, v8
    v_lshl_add_u32 {v(V_OA)}, v4, 4, v8
    v_add_u32 {v(V_OA + 1)}, 0x20000, {v(V_OA)}
    v_add_u32 {v(V_OA + 2)}, 0x40000, {v(V_OA)}
    v_add_u32 {v(V_OA + 3)}, 0x60000, {v(V_OA)}
    v_add_u32 {v(V_OA + 4)}, 0x80000, {v(V_OA)}
    ; out voffset: (4*(l%4) + (l%16)/4)*1280 + G*8
    v_lshl_add_u32 v8, v4, 2, v7
    v_mul_u32_u24 v8, 1280, v8
    v_lshl_add_u32 {v(V_OUT)}, v1, 3, v8
    s_mov_b32 {s(S_CNT)}, 0x40000
    L1_chk:
    v_readfirstlane_b32 {s(S_T1)}, {v(V_IN)}
    s_sub_u32 {s(S_CNT)}, {s(S_CNT)}, 1
    s_cbranch_scc1 L1_clr
    s_cmp_ge_u32 {s(S_T1)}, 32
    s_cbranch_scc1 L1_clr
    buffer_load_dword {v(V_IN)}, {v(V_Z)}, {s(SRD_DBG, 4)}, 0 offen offset:128 sc1 ; rare
    s_waitcnt vmcnt(0) ; rare
    s_branch L1_chk ; rare
    L1_clr:
    s_mov_b32 {s(S_CNT)}, 0x40000
    """)
    stamp(t1, 4)
    POLL = f"buffer_load_dword {v(V_PL)}, {v(V_Z)}, {s(SRD_FL, 4)}, {s(S_POLL)} offen sc1"
    for idx in range(NEARLY, 16):
        qt, r = idx // 4, idx % 4
        if r == 0:
            t1(f"s_add_u32 {s(S_T0)}, {s(S_T0)}, 131072")
        t1.extend(group(qt, r, True))
        vm.add("st")
        if idx == OPT["pollat"]:
            t1(POLL)
            vm.add("poll")
        if na > NREG0 and nd[0] == na + 8:
            t1("s_waitcnt lgkmcnt(0)")
            freecells.append(cellof[na - 1])
            t1.extend(wo_grp())
        if na < NPRE:
            t1(f"s_waitcnt vmcnt({vm.cnt(('wo', na))})")
            t1.extend(a_reads(na))
            na += 1
    assert na == NPRE and nd[0] == NPRE + 9, (na, nd)
    stamp(t1, 5)
    pool.extend(late)
    freecells.append(CV[3])

    breg = {}
    nb = [0]
    free = pool

    def b_loads():
        ks = nb[0]
        nb[0] += 1
        breg[ks] = [free.pop(0) for _ in range(5)]
        vm.add(("o", ks), 5)
        out = [f"s_add_u32 {s(S_OK)}, {s(S_OB)}, {head_of(ks) * 4096}"] if ks % 4 == 0 else []
        return out + [f"buffer_load_dwordx4 {quad(breg[ks][mt])}, {v(V_OA + mt)}, {s(SRD_OO, 4)}, {s(S_OK)} offen offset:{(ks % 4) * 1024} sc1"
                      for mt in range(5)]

    def signal(lbl):
        return f"""
        s_waitcnt vmcnt(0)
        s_barrier
        s_cmp_lg_u32 {s(S_WAVE)}, 0
        s_cbranch_scc1 {lbl}
        s_lshr_b32 {s(S_T0)}, {s(S_H)}, 3
        s_lshl_b32 {s(S_T1)}, {s(S_B)}, 2
        s_add_u32 {s(S_T0)}, {s(S_T0)}, {s(S_T1)}
        s_lshl_b32 {s(S_T0)}, {s(S_T0)}, 8
        v_mov_b32 v8, 1
        s_mov_b64 exec, 1
        buffer_atomic_add v8, {v(V_Z)}, {s(SRD_FL, 4)}, {s(S_T0)} offen sc1
        s_mov_b64 exec, -1
        {lbl}:
        """

    t1(f"s_waitcnt vmcnt({vm.cnt('poll')})")
    t1(f"""
    v_readfirstlane_b32 {s(S_T1)}, {v(V_PL)}
    s_cmp_ge_u32 {s(S_IDX)}, 30
    s_cselect_b32 {s(S_T1)}, 0, {s(S_T1)}
    s_cmp_ge_u32 {s(S_T1)}, 8
    s_cbranch_scc1 L1_ready
    """)
    first_b = []
    while len(free) >= 5 and nb[0] < OPT["bdepth"]:
        first_b += b_loads()
    t1("; publish (every wave's O stores have been drained, then one atomic per workgroup), poll, load")
    t1(signal("L1_nosig"))
    stamp(t1, 6)
    t1(f"""
    s_cmp_ge_u32 {s(S_IDX)}, 30
    s_cbranch_scc1 L1_fin
    L1_poll:
    {POLL}
    s_sub_u32 {s(S_CNT)}, {s(S_CNT)}, 1
    s_cbranch_scc1 L1_go
    s_waitcnt vmcnt(0)
    v_readfirstlane_b32 {s(S_T1)}, {v(V_PL)}
    s_nop 0
    s_cmp_lt_u32 {s(S_T1)}, 8
    s_cbranch_scc1 L1_poll
    L1_go:
    """)
    stamp(t1, 7)
    t1.extend(first_b)
    t1("s_branch L1_mm")
    t1("L1_ready:")
    fast = Block()
    fast.extend(first_b)
    fast(signal("L1_nosig2"))
    stamp(fast, 6)
    stamp(fast, 7)
    fast("L1_mm:")
    t2 = Block()
    LM_ = OPT["lastm"]
    nd0 = nd[0]
    for ks in range(32 - LM_):
        t2(f"s_waitcnt vmcnt({vm.cnt(('o', ks))})")
        if OPT["stamp"] == 3 and ks % 4 == 0:
            stamp(t2, 52 + ks // 4)
        mf = []
        for nt in range(4):
            for mm in range(5):
                mt = mm if nt % 2 == 0 else 4 - mm
                d = a(4 * (5 * nt + mt), 4)
                mf.append(f"{MF} {d}, {quad(areg[ks][nt])}, {quad(breg[ks][mt])}, {'0' if ks == 0 else d}")
        vmem = []
        dsr = []
        done = max(i for i, x in enumerate(vm.ops) if x == ("o", ks)) + 1
        can_dma = nd[0] < 32 and freecells and (nd[0] - nd0) * 25 <= ks * (32 - nd0)
        if na < nd[0] and len(free) >= 9 and (na - ks <= 3 + (LM_ if na > 27 else 0) or ("wo", na) not in vm.ops[done:]):
            if ("wo", na) in vm.ops[done:]:
                t2(f"s_waitcnt vmcnt({vm.cnt(('wo', na))})")
            dsr = a_reads(na)
            na += 1
        assert na > ks + 1 or na == 32, (ks, na)
        if nb[0] < 32:
            vmem += b_loads()
        if can_dma:
            vmem += wo_grp()
        gaps = [[] for _ in range(20)]
        nv = sum(x.startswith("buffer") for x in vmem)
        step = max(1, 20 // max(nv, 1))
        gi = 0
        busy = set()
        for x in vmem:
            gaps[min(gi, 19)].append(x)
            if x.startswith("buffer"):
                busy.add(gi)
                gi += min(step, 4)
        gi = 0
        for x in dsr:
            while gi in busy and gi < 19:
                gi += 1
            gaps[min(gi, 19)].append(x)
            gi += 1
        t2.extend(interleave(mf, gaps))
        if dsr:
            t2("s_waitcnt lgkmcnt(0)")
            freecells.append(cellof[na - 1])
        free.extend(areg[ks] + breg[ks])
    assert na == 32 and nb[0] == 32 and nd[0] == 32
    VB = 48
    t2(f"v_add_u32 v8, {s(S_W4096)}, {v(V_OD)}")
    t2("v_add_u32 v9, 0x10000, v8")
    t2("s_waitcnt vmcnt(0)")
    tiles = [(nt, mt) for mt in range(5) for nt in range(4)]
    mf = []
    for nt, mt in tiles:
        d = a(4 * (5 * nt + mt), 4)
        for ks in range(32 - LM_, 32):
            mf.append(f"{MF} {d}, {quad(areg[ks][nt])}, {quad(breg[ks][mt])}, {d}")
    wr = [f"ds_write_b128 v{8 + mt // 4}, {a(4 * (5 * nt + mt), 4)} offset:{(mt % 4) * 16384 + nt * 1024}" for nt, mt in tiles]
    gaps = [[] for _ in mf]
    gaps[0] = [f"s_lshl_b32 {s(S_T0)}, {s(S_WAVE)}, 10", f"v_add_u32 v10, {s(S_T0)}, {v(V_OD)}"]
    gaps[1] = [f"s_lshl_b32 {s(S_T0)}, {s(S_CT)}, 7", "v_add_u32 v11, 0x10000, v10"]
    gaps[2] = [f"s_lshl_b32 {s(S_T1)}, {s(S_WAVE)}, 5"]
    gaps[3] = [f"s_add_u32 {s(S_T0)}, {s(S_T0)}, {s(S_T1)}"]
    rest = []
    for i, w_ in enumerate(wr):
        g = LM_ * (i + 1) - 1 + 7
        if g < len(mf):
            gaps[g].append(w_)
        else:
            rest.append(w_)
    t2.extend(interleave(mf, gaps))
    stamp(t2, 24)
    t2("s_nop 3")
    t2.extend(rest[:-1])
    t2("s_nop 1")
    t2(rest[-1])
    t2("s_waitcnt lgkmcnt(0)")
    t2("s_barrier")

    def red_reads(mt):
        return [f"ds_read_b128 {v(VB + 16 * mt + 4 * w, 4)}, v{10 + mt // 4} offset:{w * 4096 + (mt % 4) * 16384}" for w in range(4)]

    for mt in range(3):
        t2.extend(red_reads(mt))
    for mt in range(5):
        t2(f"s_waitcnt lgkmcnt({min(8, 4 * (4 - mt))})")
        if mt + 3 < 5:
            t2.extend(red_reads(mt + 3))
        r = VB + 16 * mt
        for i in range(0, 4, 2):
            t2(f"v_pk_add_f32 {v(r + i, 2)}, {v(r + i, 2)}, {v(r + 4 + i, 2)}")
            t2(f"v_pk_add_f32 {v(r + 8 + i, 2)}, {v(r + 8 + i, 2)}, {v(r + 12 + i, 2)}")
        for i in range(0, 4, 2):
            t2(f"v_pk_add_f32 {v(r + i, 2)}, {v(r + i, 2)}, {v(r + 8 + i, 2)}")
        t2(f"v_cvt_pk_bf16_f32 {v(r + 4)}, {v(r)}, {v(r + 1)}")
        t2(f"v_cvt_pk_bf16_f32 {v(r + 5)}, {v(r + 2)}, {v(r + 3)}")
        t2(f"buffer_store_dwordx2 {v(r + 4, 2)}, {v(V_OUT)}, {s(SRD_OUT, 4)}, {s(S_T0)} offen")
        t2(f"s_add_u32 {s(S_T0)}, {s(S_T0)}, {16 * 1280}")
    return t1, fast, t2


HEADER = """; Fused MHA block  out = softmax((x wq) k^T / sqrt(128)) v wo   for gfx950 (written with the generator gen/gen.py)
; Kernarg: 0 x, 8 k_cache, 16 v_cache, 24 wq, 32 wo, 40 out, 48 debug, 56 ws
; One workgroup (4 waves, 512 registers each) per (batch, head); all matrix work uses v_mfma_f32_16x16x32_bf16.
;     is checked (< 2^40) and a wave that fails redoes its rows with the exact running maximum (L1_fallback).
;  3. O is normalised, written through to ws, announced with one atomic per workgroup (counters in ws, cleared in
;     this launch, guarded by a count in d_debug), and 240 workgroups compute 80x64 tiles of O wo.
; @launch grid=(256,1,1) block=(256,1,1) lds=163840
.amdgcn_target "amdgcn-amd-amdhsa--gfx950"
.text
"""


def kd(name, vg, acc):
    return f""".p2align 6
.amdhsa_kernel {name}
  .amdhsa_next_free_vgpr {vg}
  .amdhsa_next_free_sgpr 102
  .amdhsa_accum_offset {acc}
  .amdhsa_group_segment_fixed_size 0
  .amdhsa_kernarg_size 64
  .amdhsa_user_sgpr_count 2
  .amdhsa_user_sgpr_kernarg_segment_ptr 1
  .amdhsa_system_sgpr_workgroup_id_x 1
.end_amdhsa_kernel
"""


def main():
    k1 = kernel()
    txt = HEADER
    txt += f".globl {KNAME}\n.p2align 8\n.type {KNAME},@function\n" + k1.text()
    txt += '.section .rodata,"a"\n' + kd(KNAME, 512, 256)
    open(sys.argv[1], "w").write(txt)


main()
```
